```python
import torch

def _softmax(x, axis=-1):
    return torch.softmax(x, dim=axis)
def _gelu(x):
    return torch.nn.functional.gelu(x, approximate="tanh")
def _silu(x):
    return torch.nn.functional.silu(x)
def _sigmoid(x):
    return torch.sigmoid(x)
def _layernorm(x, axis=-1, eps=1e-5):
    m = x.mean(dim=axis, keepdim=True)
    v = x.var(dim=axis, keepdim=True, unbiased=False)
    return (x - m) / torch.sqrt(v + eps)
def _scatter_add(tgt, idx, src, axis=0):
    return tgt.clone().index_add_(axis, idx, src)
def _segment_sum(src, seg, n):
    out = torch.zeros((n,) + src.shape[1:], dtype=src.dtype)
    return out.index_add_(0, seg, src)
def _pad(x, pw):
    flat = tuple(v for pair in reversed(pw) for v in pair)
    return torch.nn.functional.pad(x, flat)

kernel_name = 'gated_mix__linear_attn_block__glu_gated_bilinear__prompt'

def setup_inputs():

    _w = (lambda a: (lambda t: t.to(torch.bfloat16) if t.is_floating_point() else t)(torch.as_tensor(a)))
    def _A_setup():
        B, S, D = 1, 2048, 1024
        return {
            "x": _w((lambda *s: torch.randn(*s, dtype=torch.bfloat16) * 0.05)(B, S, D)),
            "wqkv": _w((lambda *s: torch.randn(*s, dtype=torch.bfloat16) * 0.8)(D, 3 * D)),
            "wo": _w((lambda *s: torch.randn(*s, dtype=torch.bfloat16) * 0.05)(D, D)),
        }
    _A_in = _A_setup()

    def _B_setup():
        B, S, D, F = 1, 2048, 1024, 3584
        return {
            "x": _w((lambda *s: torch.randn(*s, dtype=torch.bfloat16) * 0.05)(B, S, D)),
            "w_gate": _w((lambda *s: torch.randn(*s, dtype=torch.bfloat16) * 1.6)(D, F) * (D ** -0.5)),
            "w_up": _w((lambda *s: torch.randn(*s, dtype=torch.bfloat16) * 1.6)(D, F) * (D ** -0.5)),
            "w_down": _w((lambda *s: torch.randn(*s, dtype=torch.bfloat16) * 1.6)(F, D) * (F ** -0.5)),
        }
    _B_in = _B_setup()

    return {
        "A_x": _A_in["x"],
        "A_wqkv": _A_in["wqkv"],
        "A_wo": _A_in["wo"],
        "B_x": _B_in["x"],
        "B_w_gate": _B_in["w_gate"],
        "B_w_up": _B_in["w_up"],
        "B_w_down": _B_in["w_down"],
        "gate_w": _w((lambda *s: torch.randn(*s, dtype=torch.bfloat16) * 0.05)(1024) * 16.0),
    }

def reference(A_x, A_wqkv, A_wo, B_x, B_w_gate, B_w_up, B_w_down, gate_w):
    def _A_ref(x, wqkv, wo):
        B, S, D = x.shape
        H = 32; Dh = D // H
        qkv = (lambda x, *d: x.permute(*d))((x @ wqkv).reshape(B, S, 3, H, Dh), 2, 0, 3, 1, 4)
        q, k, v = qkv[0], qkv[1], qkv[2]
        phi = lambda t: torch.where(t > 0, t + 1, torch.exp(t)) + 1e-6
        pq, pk = phi(q), phi(k)
        kv = torch.einsum("bhsd,bhse->bhde", pk, v)
        z = torch.einsum("bhsd->bhd", pk)
        num = torch.einsum("bhqd,bhde->bhqe", pq, kv)
        den = torch.einsum("bhqd,bhd->bhq", pq, z)[..., None] + 1e-6
        o = num / den
        return (lambda x, *d: x.permute(*d))(o, 0, 2, 1, 3).reshape(B, S, D) @ wo

    def _B_ref(x, w_gate, w_up, w_down):
        g = torch.einsum("bsd,df->bsf", x, w_gate)
        u = torch.einsum("bsd,df->bsf", x, w_up)
        h = g * u
        return torch.einsum("bsf,fd->bsd", h, w_down)

    x = A_x
    g = _sigmoid((x * gate_w).sum(-1, keepdims=True))
    a = _A_ref(x, A_wqkv, A_wo)
    b = _B_ref(x, B_w_gate, B_w_up, B_w_down)
    return g * a + (1 - g) * b
```

```python
import sys, os
EXP = os.environ.get("EXP", "")

NAME = "gated_mix__linear_attn_block__glu_gated_bilinear__prompt"

PQ_OFF = 0
A2_OFF = 4 << 20
KVP_OFF = 24 << 20
G_OFF = 27 << 20
P_OFF = 28 << 20
A2_LD = 4608 * 2

LOG2E = 0x3fb8aa3b
EPS6 = 0x358637bd


class E:
    def __init__(self):
        self.lines = []

    def __call__(self, s):
        self.lines.append("    " + s)

    def label(self, s):
        self.lines.append(s + ":")

    def raw(self, s):
        self.lines.append(s)

    def text(self):
        return "\n".join(self.lines) + "\n"


def srd(e, d, base_lo, base_hi, nbytes):
    e(f"s_mov_b32 s{d}, s{base_lo}")
    e(f"s_and_b32 s{d+1}, s{base_hi}, 0xffff")
    e(f"s_mov_b32 s{d+2}, {nbytes:#x}")
    e(f"s_mov_b32 s{d+3}, 0x00020000")


def kernel_desc(name, vgpr, accum, sgpr=102):
    return f""".section .rodata,"a"
.p2align 6
.amdhsa_kernel {name}
  .amdhsa_next_free_vgpr {vgpr}
  .amdhsa_next_free_sgpr {sgpr}
  .amdhsa_accum_offset {accum}
  .amdhsa_group_segment_fixed_size 0
  .amdhsa_kernarg_size 88
  .amdhsa_user_sgpr_count 2
  .amdhsa_user_sgpr_kernarg_segment_ptr 1
  .amdhsa_system_sgpr_workgroup_id_x 1
.end_amdhsa_kernel
.text
"""


def interleave(e, mfmas, fillers, per_gap=None, start=0):
    n = len(mfmas)
    fi = 0
    nf = len(fillers)
    for i, m in enumerate(mfmas):
        e(m)
        if i < start:
            continue
        if per_gap is None:
            tgt = nf * (i + 1 - start) // max(1, (n - start))
        else:
            tgt = min(nf, per_gap * (i + 1 - start))
        while fi < tgt:
            for s in fillers[fi]:
                e(s)
            fi += 1
    while fi < nf:
        for s in fillers[fi]:
            e(s)
        fi += 1


def stamp_end(e, srd_ws, wave_sgpr, lane_v):
    e("s_waitcnt vmcnt(0)")
    e("s_memtime s[86:87]")
    e("s_memrealtime s[90:91]")
    e("s_waitcnt lgkmcnt(0)")
    for i in range(12):
        e(f"v_mov_b32 v{32+i}, s{80+i}")
    e("s_lshl_b32 s3, s2, 8")
    e(f"s_lshl_b32 s92, s{wave_sgpr}, 6")
    e("s_add_u32 s3, s3, s92")
    e(f"s_add_u32 s3, s3, {200<<20}")
    e("v_mov_b32 v3, 0")
    e(f"v_cmp_eq_u32 vcc, 0, v{lane_v}")
    e("s_and_saveexec_b64 s[92:93], vcc")
    for i in range(3):
        e(f"buffer_store_dwordx4 v[{32+4*i}:{35+4*i}], v3, s[{srd_ws}:{srd_ws+3}], s3 offen offset:{16*i}")


def gen_k1():
    e = E()
    kn = "k1_gemm1_kernel"
    STG = 36864
    BOFF = 16384
    NS = 4
    e.raw(f".globl {kn}\n.p2align 8\n.type {kn},@function")
    e.label(kn)
    e("s_cmp_ge_u32 s2, 256")
    e("s_cbranch_scc1 K1_END")
    if "stamp" in EXP:
        e("s_memtime s[80:81]")
        e("s_memrealtime s[88:89]")
    e("s_load_dwordx4 s[64:67], s[0:1], 0")
    e("s_load_dwordx4 s[68:71], s[0:1], 32")
    e("s_load_dwordx2 s[72:73], s[0:1], 80")
    e("s_and_b32 s3, s2, 7")
    e("s_lshr_b32 s32, s2, 3")
    e("s_and_b32 s33, s32, 7")
    e("s_lshr_b32 s32, s32, 3")
    e("s_lshl_b32 s3, s3, 2")
    e("s_add_u32 s34, s3, s32")
    e("v_lshrrev_b32 v1, 6, v0")
    e("v_and_b32 v2, 63, v0")
    e("v_readfirstlane_b32 s35, v1")
    e("s_and_b32 s37, s34, 1")
    e("s_lshr_b32 s38, s34, 1")
    e("s_mul_i32 s39, s38, 7")
    e("s_lshl_b32 s40, s37, 2")
    e("s_add_u32 s40, s39, s40")
    e("s_add_u32 s41, s39, 3")
    e("s_lshl_b32 s42, s34, 6")
    e("s_add_u32 s48, s42, 2048")
    e("s_add_u32 s49, s42, 4096")
    e("s_lshl_b32 s43, s38, 7")
    e("s_add_u32 s47, s43, 64")
    e("s_lshl_b32 s44, s41, 6")
    e("s_cmp_eq_u32 s37, 0")
    e("s_cselect_b32 s50, s43, s44")
    e("s_cselect_b32 s51, s47, s44")
    e(f"s_mov_b32 s58, {32*7168}")
    e(f"s_cselect_b32 s58, {32*6144}, s58")
    e("s_lshl_b32 s44, s40, 6")
    for j in range(3):
        e(f"s_add_u32 s{52+2*j}, s44, {64*j}")
        e(f"s_add_u32 s{53+2*j}, s44, {64*j}")
    e("s_lshr_b32 s36, s35, 1")
    e("s_cmp_eq_u32 s36, 0")
    for i in range(5):
        e(f"s_cselect_b32 s{74+i}, s{48+2*i}, s{49+2*i}")
    e("s_waitcnt lgkmcnt(0)")
    e("s_lshl_b32 s3, s33, 19")
    e("s_add_u32 s64, s64, s3")
    e("s_addc_u32 s65, s65, 0")
    srd(e, 4, 64, 65, 256 * 2048)
    srd(e, 8, 66, 67, 1024 * 6144)
    srd(e, 12, 68, 69, 1024 * 7168)
    srd(e, 16, 70, 71, 1024 * 7168)
    srd(e, 28, 72, 73, 0x10000000)
    e("s_cmp_eq_u32 s36, 0")
    for i in range(4):
        e(f"s_cselect_b32 s{20+i}, s{12+i}, s{16+i}")
    e("s_cmp_eq_u32 s37, 0")
    for i in range(4):
        e(f"s_cselect_b32 s{24+i}, s{8+i}, s{20+i}")
    e("s_mov_b32 s59, 0")
    e("s_mov_b32 s60, 0")
    e("s_mov_b32 s61, 0")
    e("s_mov_b32 s62, 0")
    e("s_lshl_b32 s45, s35, 12")
    e("s_lshl_b32 s46, s35, 10")
    e(f"s_add_u32 s46, s46, {BOFF}")
    e("v_lshrrev_b32 v3, 2, v2")
    e("v_lshlrev_b32 v4, 6, v1")
    e("v_add_u32 v4, v3, v4")
    e("v_lshlrev_b32 v4, 11, v4")
    e("v_lshrrev_b32 v5, 4, v2")
    e("v_and_b32 v6, 3, v2")
    e("v_xor_b32 v7, v6, v5")
    e("v_lshl_add_u32 v10, v7, 4, v4")
    e("v_and_b32 v4, 1, v1")
    e("v_lshlrev_b32 v4, 4, v4")
    e("v_add_u32 v3, v3, v4")
    e("v_lshlrev_b32 v4, 4, v6")
    e("s_movk_i32 s3, 6144")
    e("v_mul_lo_u32 v11, v3, s3")
    e("v_add_u32 v11, v11, v4")
    e("s_movk_i32 s3, 7168")
    e("v_mul_lo_u32 v12, v3, s3")
    e("v_add_u32 v12, v12, v4")
    e("s_cmp_eq_u32 s37, 0")
    e("s_cselect_b64 vcc, -1, 0")
    e("s_nop 1")
    e("v_cndmask_b32 v13, v12, v11, vcc")

    dsrd = [8, 24, 20, 20, 20]
    dvoff = [11, 13, 12, 12, 12]
    dkrun = [60, 62, 61, 61, 61]

    def dma_groups(stage):
        g = []
        for i in range(4):
            g.append([f"s_add_u32 m0, s45, {stage*STG + i*1024}",
                      f"s_add_u32 s3, s59, {i*32768}",
                      f"buffer_load_dwordx4 v10, s[4:7], s3 offen lds"])
        for i in range(5):
            g.append([f"s_add_u32 m0, s46, {stage*STG + i*4096}",
                      f"s_add_u32 s3, s{dkrun[i]}, s{74+i}",
                      f"buffer_load_dwordx4 v{dvoff[i]}, s[{dsrd[i]}:{dsrd[i]+3}], s3 offen lds"])
        g[-1] = g[-1] + ["s_add_u32 s59, s59, 64",
                         f"s_add_u32 s60, s60, {32*6144}",
                         f"s_add_u32 s61, s61, {32*7168}",
                         "s_add_u32 s62, s62, s58"]
        order = [0, 4, 1, 5, 2, 6, 3, 7, 8]
        return [g[i] for i in order]

    for st in range(NS):
        for g in dma_groups(st):
            for s in g:
                e(s)

    e("v_and_b32 v3, 31, v2")
    e("v_lshlrev_b32 v4, 6, v1")
    e("v_add_u32 v4, v4, v3")
    e("v_lshlrev_b32 v4, 6, v4")
    e("v_bfe_u32 v5, v3, 2, 2")
    e("v_lshrrev_b32 v6, 5, v2")
    for s in range(2):
        e(f"v_add_u32 v7, {2*s}, v6")
        e("v_xor_b32 v7, v7, v5")
        e(f"v_lshl_add_u32 v{14+s}, v7, 4, v4")
        for q in range(1, NS):
            e(f"v_add_u32 v{14+2*q+s}, {q*STG}, v{14+s}")
    e("v_lshrrev_b32 v3, 5, v2")
    e("v_lshlrev_b32 v3, 3, v3")
    e("v_bfe_u32 v4, v2, 2, 2")
    e("v_add_u32 v3, v3, v4")
    e("v_lshlrev_b32 v3, 6, v3")
    e("v_bfe_u32 v4, v2, 4, 1")
    e("v_lshlrev_b32 v4, 5, v4")
    e("v_add_u32 v3, v3, v4")
    e("v_and_b32 v4, 3, v2")
    e("v_lshlrev_b32 v4, 3, v4")
    e("v_add_u32 v3, v3, v4")
    for q in range(NS):
        e(f"v_add_u32 v{22+q}, {BOFF+q*STG}, v3")

    AF = 96
    BF = 112

    def accbase(rb, b):
        t = b * 2 + rb
        if t < 6:
            return ("a", 16 * t)
        return ("v", 32 + 16 * (t - 6))

    def acc(rb, b):
        k, o = accbase(rb, b)
        return f"{k}[{o}:{o+15}]"

    def accreg(rb, b, r):
        k, o = accbase(rb, b)
        return f"{k}{o+r}"

    for r in range(96):
        e(f"v_accvgpr_write_b32 a{r}, 0")
    for r in range(32, 256):
        e(f"v_mov_b32 v{r}, 0")

    def read_groups(stage, s, buf):
        g = []
        va = 14 + 2 * stage + s
        vb = 22 + stage
        for rb in range(2):
            d = AF + buf * 8 + rb * 4
            g.append([f"ds_read_b128 a[{d}:{d+3}], v{va} offset:{rb*2048}"])
        for b in range(10):
            d = BF + buf * 40 + b * 4
            g.append([f"ds_read_b64_tr_b16 a[{d}:{d+1}], v{vb} offset:{(b*2+s)*1024}"])
            g.append([f"ds_read_b64_tr_b16 a[{d+2}:{d+3}], v{vb} offset:{(b*2+s)*1024+256}"])
        return g

    def mfmas(buf):
        m = []
        for b in range(10):
            for rb in range(2):
                a = AF + buf * 8 + rb * 4
                bb = BF + buf * 40 + b * 4
                if b < 2:
                    m.append(f"v_mfma_f32_32x32x16_bf16 {acc(rb,b)}, a[{a}:{a+3}], a[{bb}:{bb+3}], {acc(rb,b)}")
                else:
                    m.append(f"v_mfma_f32_32x32x16_bf16 {acc(rb,b)}, a[{bb}:{bb+3}], a[{a}:{a+3}], {acc(rb,b)}")
        return m

    def merge(reads, dmas, nm):
        slots = [[] for _ in range(nm)]
        for i, g in enumerate(reads):
            slots[min(nm - 1, i // 2)].append(g)
        nd = len(dmas)
        for i, g in enumerate(dmas):
            slots[min(nm - 1, (i * nm) // max(1, nd) + 2)].append(g)
        return slots

    def emit_sub(mf, slots):
        for m, sl in zip(mf, slots):
            e(m)
            for g in sl:
                for s in g:
                    e(s)

    def k32step(q, dma_first, dma_second, wait_n, last):
        nodma = "nodma" in EXP
        d0 = dma_groups((q - 1) % NS)[5:] if (dma_first and not nodma) else []
        e("s_waitcnt lgkmcnt(0)")
        emit_sub(mfmas(0), merge(read_groups(q, 1, 1), d0, 20))
        if not last:
            e(f"s_waitcnt vmcnt({wait_n}) lgkmcnt(0)")
            e("s_barrier")
        else:
            e("s_waitcnt lgkmcnt(0)")
        d1 = dma_groups(q)[:5] if (dma_second and not nodma) else []
        rd = read_groups((q + 1) % NS, 0, 0) if not last else []
        emit_sub(mfmas(1), merge(rd, d1, 20))

    e("s_waitcnt vmcnt(27)")
    e("s_barrier")
    for g in read_groups(0, 0, 0):
        for s in g:
            e(s)
    e("s_mov_b32 s63, 0")
    if "stamp" in EXP:
        e("s_memtime s[82:83]")
    k32step(0, False, True, 18, False)
    e.label("K1_LOOP")
    for j in range(4):
        k32step((1 + j) % NS, True, True, 18, False)
    e("s_add_u32 s63, s63, 1")
    e("s_cmp_lt_u32 s63, 6")
    e("s_cbranch_scc1 K1_LOOP")
    k32step(1, True, True, 18, False)
    k32step(2, True, True, 18, False)
    k32step(3, True, True, 18, False)
    k32step(0, True, False, 18, False)
    k32step(1, False, False, 9, False)
    k32step(2, False, False, 0, False)
    k32step(3, False, False, 0, True)
    e("s_nop 15")
    e("s_nop 3")

    if "stamp" in EXP:
        e("s_memtime s[84:85]")
    if "noepi" in EXP:
        e("s_branch K1_END")
    e("v_and_b32 v3, 31, v2")
    e("v_lshlrev_b32 v4, 6, v1")
    e("v_add_u32 v3, v3, v4")
    e("v_lshrrev_b32 v5, 5, v2")
    e("v_lshlrev_b32 v5, 4, v5")
    e(f"s_movk_i32 s3, {A2_LD}")
    e("v_mul_lo_u32 v26, v3, s3")
    e("v_add_u32 v26, v26, v5")
    e("v_lshlrev_b32 v27, 11, v3")
    e("v_add_u32 v27, v27, v5")
    e(f"s_mul_i32 s64, s33, {256*A2_LD}")
    e(f"s_add_u32 s64, s64, {A2_OFF + 2048}")
    e("s_lshl_b32 s65, s33, 19")
    e(f"s_add_u32 s65, s65, {PQ_OFF}")

    def swap_store(P, vaddr, soff):
        e("s_nop 1")
        e(f"v_permlane32_swap_b32 v{P+0}, v{P+2}")
        e(f"v_permlane32_swap_b32 v{P+1}, v{P+3}")
        e(f"v_permlane32_swap_b32 v{P+4}, v{P+6}")
        e(f"v_permlane32_swap_b32 v{P+5}, v{P+7}")
        e(f"buffer_store_dwordx4 v[{P}:{P+3}], v{vaddr}, s[28:31], {soff} offen")
        e(f"buffer_store_dwordx4 v[{P+4}:{P+7}], v{vaddr}, s[28:31], {soff} offen offset:32")

    def glu_group_v(bg, sidx):
        for rb in range(2):
            _, G = accbase(rb, bg)
            _, U = accbase(rb, bg + 1)
            for i in range(8):
                e(f"v_pk_mul_f32 v[{G+2*i}:{G+2*i+1}], v[{G+2*i}:{G+2*i+1}], v[{U+2*i}:{U+2*i+1}]")
            for i in range(8):
                e(f"v_cvt_pk_bf16_f32 v{U+i}, v{G+2*i}, v{G+2*i+1}")
            e(f"s_add_u32 s3, s64, {sidx}")
            if rb:
                e(f"s_add_u32 s3, s3, {32*A2_LD}")
            swap_store(U, 26, "s3")

    glu_group_v(8, "s56")
    T = 192
    glu_group_v(6, "s54")
    KVA = 128
    PK = 232
    PV = 248
    ONES = 28
    for i in range(4):
        e(f"v_mov_b32 v{ONES+i}, 0x3f803f80")

    def phi16(src_fn, dst):
        for r in range(16):
            e(f"v_accvgpr_read_b32 v{dst+r}, {src_fn(r)}")
        for r in range(16):
            e(f"v_mul_f32 v{dst+16+r}, {LOG2E:#x}, v{dst+r}")
        for r in range(16):
            e(f"v_min_f32 v{dst+16+r}, 0, v{dst+16+r}")
        for r in range(16):
            e(f"v_exp_f32 v{dst+16+r}, v{dst+16+r}")
        for r in range(16):
            e(f"v_max_f32 v{dst+r}, 0, v{dst+r}")
        for r in range(16):
            e(f"v_add_f32 v{dst+r}, {EPS6:#x}, v{dst+r}")
        for r in range(16):
            e(f"v_add_f32 v{dst+r}, v{dst+r}, v{dst+16+r}")

    for rb in range(2):
        phi16(lambda r: accreg(rb, 0, r), T)
        for i in range(8):
            e(f"v_cvt_pk_bf16_f32 v{PK+i}, v{T+2*i}, v{T+2*i+1}")
        for r in range(16):
            e(f"v_accvgpr_read_b32 v{T+r}, {accreg(rb,1,r)}")
        for i in range(8):
            e(f"v_cvt_pk_bf16_f32 v{PV+i}, v{T+2*i}, v{T+2*i+1}")
        e("s_nop 1")
        for m in range(2):
            c1 = "0" if (rb == 0 and m == 0) else f"v[{KVA}:{KVA+15}]"
            c2 = "0" if (rb == 0 and m == 0) else f"v[{KVA+16}:{KVA+31}]"
            e(f"v_mfma_f32_32x32x16_bf16 v[{KVA}:{KVA+15}], v[{PK+4*m}:{PK+3+4*m}], v[{PV+4*m}:{PV+3+4*m}], {c1}")
            e(f"v_mfma_f32_32x32x16_bf16 v[{KVA+16}:{KVA+31}], v[{PK+4*m}:{PK+3+4*m}], v[{ONES}:{ONES+3}], {c2}")
    e("s_barrier")
    e("v_lshlrev_b32 v3, 4, v2")
    e("v_lshlrev_b32 v4, 13, v1")
    e("v_add_u32 v3, v3, v4")
    e("s_nop 7")
    e("s_nop 7")
    for rg in range(4):
        e(f"ds_write_b128 v3, v[{KVA+4*rg}:{KVA+4*rg+3}] offset:{rg*1024}")
    for rg in range(4):
        e(f"ds_write_b128 v3, v[{KVA+16+4*rg}:{KVA+16+4*rg+3}] offset:{4096+rg*1024}")
    glu_group_v(4, "s52")
    e("s_cmp_eq_u32 s37, 0")
    e("s_cbranch_scc0 K1_SLOT1_GLU")
    for rb in range(2):
        for r in range(16):
            e(f"v_accvgpr_read_b32 v{T+r}, {accreg(rb,2,r)}")
        for i in range(8):
            e(f"v_cvt_pk_bf16_f32 v{T+16+i}, v{T+2*i}, v{T+2*i+1}")
        e("s_add_u32 s3, s65, s50")
        if rb:
            e(f"s_add_u32 s3, s3, {32*2048}")
        swap_store(T + 16, 27, "s3")
        _, U = accbase(rb, 3)
        for i in range(8):
            e(f"v_cvt_pk_bf16_f32 v{T+24+i}, v{U+2*i}, v{U+2*i+1}")
        e("s_add_u32 s3, s65, s51")
        if rb:
            e(f"s_add_u32 s3, s3, {32*2048}")
        swap_store(T + 24, 27, "s3")
        e("s_nop 1")
    e("s_branch K1_SLOT1_DONE")
    e.label("K1_SLOT1_GLU")
    for rb in range(2):
        _, U = accbase(rb, 3)
        for r in range(16):
            e(f"v_accvgpr_read_b32 v{T+r}, {accreg(rb,2,r)}")
        for i in range(8):
            e(f"v_pk_mul_f32 v[{T+2*i}:{T+2*i+1}], v[{T+2*i}:{T+2*i+1}], v[{U+2*i}:{U+2*i+1}]")
        for i in range(8):
            e(f"v_cvt_pk_bf16_f32 v{U+i}, v{T+2*i}, v{T+2*i+1}")
        e("s_add_u32 s3, s64, s50")
        if rb:
            e(f"s_add_u32 s3, s3, {32*A2_LD}")
        swap_store(U, 26, "s3")
    e.label("K1_SLOT1_DONE")

    e("s_waitcnt lgkmcnt(0)")
    e("s_barrier")
    e("v_lshlrev_b32 v3, 4, v0")
    R = 160
    for w in range(4):
        e(f"ds_read_b128 v[{R+4*w}:{R+4*w+3}], v3 offset:{w*8192}")
        e(f"ds_read_b128 v[{R+16+4*w}:{R+16+4*w+3}], v3 offset:{w*8192+4096}")
    e("s_waitcnt lgkmcnt(0)")
    for half in range(2):
        b = R + 16 * half
        for i in range(4):
            e(f"v_add_f32 v{b+i}, v{b+i}, v{b+4+i}")
            e(f"v_add_f32 v{b+8+i}, v{b+8+i}, v{b+12+i}")
        for i in range(4):
            e(f"v_add_f32 v{b+i}, v{b+i}, v{b+8+i}")
    e("s_lshl_b32 s3, s34, 3")
    e("s_add_u32 s3, s3, s33")
    e("s_lshl_b32 s3, s3, 13")
    e(f"s_add_u32 s3, s3, {KVP_OFF}")
    e(f"buffer_store_dwordx4 v[{R}:{R+3}], v3, s[28:31], s3 offen")
    e("s_add_u32 s3, s3, 4096")
    e(f"buffer_store_dwordx4 v[{R+16}:{R+19}], v3, s[28:31], s3 offen")
    if "stamp" in EXP:
        stamp_end(e, 28, 35, 2)
    e.label("K1_END")
    e("s_endpgm")
    return kn, e.text(), kernel_desc(kn, 448, 256), (256, 256, 147456)


def gen_k2():
    e = E()
    kn = "k2_attn_kernel"
    e.raw(f".globl {kn}\n.p2align 8\n.type {kn},@function")
    e.label(kn)
    e("s_cmp_ge_u32 s2, 256")
    e("s_cbranch_scc1 K2_END")
    e("s_load_dwordx2 s[64:65], s[0:1], 0")
    e("s_load_dwordx2 s[66:67], s[0:1], 56")
    e("s_load_dwordx2 s[72:73], s[0:1], 80")
    e("s_and_b32 s33, s2, 31")
    e("s_lshr_b32 s34, s2, 5")
    e("v_lshrrev_b32 v1, 6, v0")
    e("v_and_b32 v2, 63, v0")
    e("v_readfirstlane_b32 s35, v1")
    e("s_waitcnt lgkmcnt(0)")
    srd(e, 4, 64, 65, 2048 * 2048)
    srd(e, 8, 66, 67, 2048)
    srd(e, 28, 72, 73, 0x10000000)
    e("v_and_b32 v3, 31, v2")
    e("v_lshlrev_b32 v4, 6, v1")
    e("v_add_u32 v3, v3, v4")
    e("v_lshrrev_b32 v5, 5, v2")
    e("v_lshlrev_b32 v5, 4, v5")
    e("v_lshlrev_b32 v6, 11, v3")
    e("v_add_u32 v6, v6, v5")
    e("s_lshl_b32 s36, s34, 19")
    e("s_lshl_b32 s37, s33, 6")
    e("s_add_u32 s36, s36, s37")
    e(f"s_add_u32 s36, s36, {PQ_OFF}")
    e(f"s_add_u32 s38, s36, {32*2048}")
    Q = 32
    e(f"buffer_load_dwordx4 v[{Q}:{Q+3}], v6, s[28:31], s36 offen")
    e(f"buffer_load_dwordx4 v[{Q+4}:{Q+7}], v6, s[28:31], s36 offen offset:32")
    e(f"buffer_load_dwordx4 v[{Q+8}:{Q+11}], v6, s[28:31], s38 offen")
    e(f"buffer_load_dwordx4 v[{Q+12}:{Q+15}], v6, s[28:31], s38 offen offset:32")
    e("v_lshlrev_b32 v7, 4, v0")
    e("s_lshl_b32 s39, s33, 16")
    e(f"s_add_u32 s39, s39, {KVP_OFF}")
    PL = 64
    for rt in range(8):
        e(f"s_add_u32 s3, s39, {rt*8192}")
        e(f"buffer_load_dwordx4 v[{PL+8*rt}:{PL+8*rt+3}], v7, s[28:31], s3 offen")
        e(f"s_add_u32 s3, s39, {rt*8192+4096}")
        e(f"buffer_load_dwordx4 v[{PL+8*rt+4}:{PL+8*rt+7}], v7, s[28:31], s3 offen")
    e("v_lshlrev_b32 v8, 5, v2")
    e("s_lshl_b32 s40, s2, 3")
    e("s_lshl_b32 s41, s35, 1")
    e("s_add_u32 s40, s40, s41")
    e("s_lshl_b32 s41, s40, 11")
    e("s_add_u32 s42, s41, 2048")
    GX = 128
    e(f"buffer_load_dwordx4 v[{GX}:{GX+3}], v8, s[4:7], s41 offen")
    e(f"buffer_load_dwordx4 v[{GX+4}:{GX+7}], v8, s[4:7], s41 offen offset:16")
    e(f"buffer_load_dwordx4 v[{GX+8}:{GX+11}], v8, s[4:7], s42 offen")
    e(f"buffer_load_dwordx4 v[{GX+12}:{GX+15}], v8, s[4:7], s42 offen offset:16")
    e(f"buffer_load_dwordx4 v[{GX+16}:{GX+19}], v8, s[8:11], 0 offen")
    e(f"buffer_load_dwordx4 v[{GX+20}:{GX+23}], v8, s[8:11], 0 offen offset:16")
    e("s_waitcnt vmcnt(22)")
    PQ = 48
    T = 160
    for blk in range(2):
        for i in range(8):
            src = Q + 8 * blk + i
            e(f"v_lshlrev_b32 v{T+2*i}, 16, v{src}")
            e(f"v_and_b32 v{T+2*i+1}, 0xffff0000, v{src}")
        for r in range(16):
            e(f"v_mul_f32 v{T+16+r}, {LOG2E:#x}, v{T+r}")
        for r in range(16):
            e(f"v_min_f32 v{T+16+r}, 0, v{T+16+r}")
        for r in range(16):
            e(f"v_exp_f32 v{T+16+r}, v{T+16+r}")
        for r in range(16):
            e(f"v_max_f32 v{T+r}, 0, v{T+r}")
        for r in range(16):
            e(f"v_add_f32 v{T+r}, {EPS6:#x}, v{T+r}")
        for r in range(16):
            e(f"v_add_f32 v{T+r}, v{T+r}, v{T+16+r}")
        for i in range(8):
            e(f"v_cvt_pk_bf16_f32 v{PQ+8*blk+i}, v{T+2*i}, v{T+2*i+1}")
    e("s_waitcnt vmcnt(6)")
    for rt in range(1, 8):
        for i in range(8):
            e(f"v_add_f32 v{PL+i}, v{PL+i}, v{PL+8*rt+i}")
    for i in range(4):
        e(f"v_cvt_pk_bf16_f32 v{T+i}, v{PL+2*i}, v{PL+2*i+1}")
    e("v_and_b32 v9, 31, v2")
    e("v_lshlrev_b32 v9, 6, v9")
    e("v_lshlrev_b32 v10, 4, v1")
    e("v_add_u32 v9, v9, v10")
    e("v_lshrrev_b32 v10, 5, v2")
    e("v_lshlrev_b32 v10, 3, v10")
    e("v_add_u32 v9, v9, v10")
    e(f"ds_write_b64 v9, v[{T}:{T+1}]")
    e(f"ds_write_b64 v9, v[{T+2}:{T+3}] offset:2048")
    e("s_waitcnt vmcnt(0)")
    e("v_mov_b32 v12, 0")
    e("v_mov_b32 v13, 0")
    for i in range(8):
        e(f"v_dot2_f32_bf16 v12, v{GX+i}, v{GX+16+i}, v12")
        e(f"v_dot2_f32_bf16 v13, v{GX+8+i}, v{GX+16+i}, v13")
    e("s_waitcnt lgkmcnt(0)")
    e("s_barrier")
    e("v_and_b32 v9, 31, v2")
    e("v_lshlrev_b32 v9, 6, v9")
    e("v_add_u32 v9, v9, v5")
    KA = 64
    e(f"ds_read_b128 v[{KA}:{KA+3}], v9")
    e(f"ds_read_b128 v[{KA+4}:{KA+7}], v9 offset:32")
    e(f"ds_read_b128 v[{KA+8}:{KA+11}], v9 offset:2048")
    e(f"ds_read_b128 v[{KA+12}:{KA+15}], v9 offset:2080")
    for off in (0x041F, 0x081F, 0x101F, 0x201F, 0x401F):
        e(f"ds_swizzle_b32 v14, v12 offset:{off:#x}")
        e(f"ds_swizzle_b32 v15, v13 offset:{off:#x}")
        e("s_waitcnt lgkmcnt(0)")
        e("v_add_f32 v12, v12, v14")
        e("v_add_f32 v13, v13, v15")
    e("s_nop 0")
    e("v_readlane_b32 s44, v12, 32")
    e("v_readlane_b32 s45, v13, 32")
    e("s_nop 1")
    e("v_add_f32 v12, s44, v12")
    e("v_add_f32 v13, s45, v13")
    e(f"v_mul_f32 v12, {LOG2E | 0x80000000:#x}, v12")
    e(f"v_mul_f32 v13, {LOG2E | 0x80000000:#x}, v13")
    e("v_exp_f32 v12, v12")
    e("v_exp_f32 v13, v13")
    e("s_nop 0")
    e("v_add_f32 v12, 1.0, v12")
    e("v_add_f32 v13, 1.0, v13")
    e("v_rcp_f32 v12, v12")
    e("v_rcp_f32 v13, v13")
    e("s_lshl_b32 s3, s40, 2")
    e(f"s_add_u32 s3, s3, {G_OFF}")
    e("v_mov_b32 v14, 0")
    e("v_cmp_eq_u32 vcc, 0, v2")
    e("s_and_saveexec_b64 s[46:47], vcc")
    e("buffer_store_dwordx2 v[12:13], v14, s[28:31], s3 offen")
    e("s_mov_b64 exec, s[46:47]")
    NUM = 96
    for rb in range(2):
        for m in range(2):
            b = PQ + 8 * rb + 4 * m
            n = NUM + 16 * rb
            d = NUM + 32 + 16 * rb
            c1 = "0" if m == 0 else f"v[{n}:{n+15}]"
            c2 = "0" if m == 0 else f"v[{d}:{d+15}]"
            e(f"v_mfma_f32_32x32x16_bf16 v[{n}:{n+15}], v[{KA+4*m}:{KA+4*m+3}], v[{b}:{b+3}], {c1}")
            e(f"v_mfma_f32_32x32x16_bf16 v[{d}:{d+15}], v[{KA+8+4*m}:{KA+8+4*m+3}], v[{b}:{b+3}], {c2}")
    e(f"s_movk_i32 s3, {A2_LD}")
    e("v_mul_lo_u32 v16, v3, s3")
    e("v_add_u32 v16, v16, v5")
    e(f"s_mul_i32 s48, s34, {256*A2_LD}")
    e("s_add_u32 s48, s48, s37")
    e(f"s_add_u32 s48, s48, {A2_OFF}")
    e(f"s_add_u32 s49, s48, {32*A2_LD}")
    e("s_nop 15")
    for rb in range(2):
        n = NUM + 16 * rb
        d = NUM + 32 + 16 * rb
        e(f"v_add_f32 v17, {EPS6:#x}, v{d}")
        e("v_rcp_f32 v17, v17")
        e("s_nop 0")
        for r in range(16):
            e(f"v_mul_f32 v{n+r}, v{n+r}, v17")
        P = T + 8 * rb
        for i in range(8):
            e(f"v_cvt_pk_bf16_f32 v{P+i}, v{n+2*i}, v{n+2*i+1}")
        e("s_nop 1")
        e(f"v_permlane32_swap_b32 v{P+0}, v{P+2}")
        e(f"v_permlane32_swap_b32 v{P+1}, v{P+3}")
        e(f"v_permlane32_swap_b32 v{P+4}, v{P+6}")
        e(f"v_permlane32_swap_b32 v{P+5}, v{P+7}")
        e(f"buffer_store_dwordx4 v[{P}:{P+3}], v16, s[28:31], s{48+rb} offen")
        e(f"buffer_store_dwordx4 v[{P+4}:{P+7}], v16, s[28:31], s{48+rb} offen offset:32")
    e.label("K2_END")
    e("s_endpgm")
    return kn, e.text(), kernel_desc(kn, 192, 192), (256, 256, 4096)


def gen_k3():
    e = E()
    kn = "k3_gemm2_kernel"
    STG = 32768
    BOFF = 16384
    NS = 4
    e.raw(f".globl {kn}\n.p2align 8\n.type {kn},@function")
    e.label(kn)
    e("s_cmp_ge_u32 s2, 256")
    e("s_cbranch_scc1 K3_END")
    if "stamp3" in EXP:
        e("s_memtime s[80:81]")
        e("s_memrealtime s[88:89]")
    e("s_load_dwordx2 s[64:65], s[0:1], 16")
    e("s_load_dwordx2 s[66:67], s[0:1], 48")
    e("s_load_dwordx2 s[72:73], s[0:1], 80")
    e("s_and_b32 s3, s2, 7")
    e("s_lshr_b32 s32, s2, 3")
    e("s_and_b32 s36, s32, 1")
    e("s_bfe_u32 s33, s32, 0x10001")
    e("s_lshl_b32 s3, s3, 1")
    e("s_add_u32 s33, s33, s3")
    e("s_lshr_b32 s34, s32, 2")
    e("v_lshrrev_b32 v1, 6, v0")
    e("v_and_b32 v2, 63, v0")
    e("v_readfirstlane_b32 s35, v1")
    e("s_waitcnt lgkmcnt(0)")
    srd(e, 28, 72, 73, 0x10000000)
    e(f"s_mul_i32 s3, s33, {128*A2_LD}")
    e(f"s_mul_i32 s37, s36, {2304*2}")
    e("s_add_u32 s3, s3, s37")
    e(f"s_add_u32 s3, s3, {A2_OFF}")
    e("s_add_u32 s68, s72, s3")
    e("s_addc_u32 s69, s73, 0")
    srd(e, 4, 68, 69, 128 * A2_LD)
    srd(e, 8, 64, 65, 1024 * 2048)
    srd(e, 12, 66, 67, 3584 * 2048)
    e("s_cmp_eq_u32 s36, 0")
    for i in range(4):
        e(f"s_cselect_b32 s{20+i}, s{8+i}, s{12+i}")
    e(f"s_mul_i32 s60, s36, {1280*2048}")
    e(f"s_mul_i32 s61, s36, {2304*2048}")
    e("s_lshl_b32 s3, s34, 8")
    e("s_add_u32 s60, s60, s3")
    e("s_add_u32 s61, s61, s3")
    e("s_mov_b32 s59, 0")
    e("s_mov_b32 s62, 0")
    e("s_lshl_b32 s45, s35, 12")
    e("s_lshl_b32 s46, s35, 10")
    e(f"s_add_u32 s46, s46, {BOFF}")
    e("v_lshrrev_b32 v3, 3, v2")
    e("v_lshlrev_b32 v4, 5, v1")
    e("v_add_u32 v3, v3, v4")
    e(f"s_movk_i32 s3, {A2_LD}")
    e("v_mul_lo_u32 v3, v3, s3")
    e("v_lshrrev_b32 v5, 4, v2")
    e("v_and_b32 v6, 7, v2")
    e("v_xor_b32 v7, v6, v5")
    e("v_lshl_add_u32 v10, v7, 4, v3")
    e("v_xor_b32 v7, 4, v7")
    e("v_lshl_add_u32 v11, v7, 4, v3")
    e("v_lshrrev_b32 v3, 2, v2")
    e("v_lshlrev_b32 v4, 4, v1")
    e("v_add_u32 v3, v3, v4")
    e("v_lshlrev_b32 v3, 11, v3")
    e("v_and_b32 v4, 3, v2")
    e("v_lshl_add_u32 v12, v4, 4, v3")

    def dma_groups(stage):
        g = []
        for i in range(4):
            g.append([f"s_add_u32 m0, s45, {stage*STG + i*1024}",
                      f"s_add_u32 s3, s59, {i*8*A2_LD}",
                      f"buffer_load_dwordx4 v{10+(i&1)}, s[4:7], s3 offen lds"])
            g.append([f"s_add_u32 m0, s46, {stage*STG + i*4096}",
                      f"s_add_u32 s3, s60, {i*64}",
                      f"buffer_load_dwordx4 v12, s[20:23], s3 offen lds"])
        g[-1] = g[-1] + ["s_add_u32 s59, s59, 128",
                         f"s_add_u32 s60, s60, {64*2048}",
                         "s_add_u32 s62, s62, 1",
                         "s_cmp_eq_u32 s62, 16",
                         "s_cselect_b32 s60, s61, s60",
                         "s_cselect_b32 s20, s12, s20",
                         "s_cselect_b32 s21, s13, s21",
                         "s_cselect_b32 s22, s14, s22"]
        return g

    for st in range(NS - 1):
        for g in dma_groups(st):
            for s in g:
                e(s)
    e("v_and_b32 v3, 31, v2")
    e("v_lshrrev_b32 v4, 1, v1")
    e("v_lshlrev_b32 v4, 6, v4")
    e("v_add_u32 v4, v4, v3")
    e("v_lshlrev_b32 v4, 7, v4")
    e("v_bfe_u32 v5, v3, 1, 3")
    e("v_lshrrev_b32 v6, 5, v2")
    for s in range(4):
        e(f"v_add_u32 v7, {2*s}, v6")
        e("v_xor_b32 v7, v7, v5")
        e(f"v_lshl_add_u32 v{14+s}, v7, 4, v4")
        e(f"v_add_u32 v{18+s}, {2*STG}, v{14+s}")
    e("v_lshrrev_b32 v3, 5, v2")
    e("v_lshlrev_b32 v3, 3, v3")
    e("v_bfe_u32 v4, v2, 2, 2")
    e("v_add_u32 v3, v3, v4")
    e("v_lshlrev_b32 v3, 6, v3")
    e("v_bfe_u32 v4, v2, 4, 1")
    e("v_lshlrev_b32 v4, 5, v4")
    e("v_add_u32 v3, v3, v4")
    e("v_and_b32 v4, 3, v2")
    e("v_lshlrev_b32 v4, 3, v4")
    e("v_add_u32 v3, v3, v4")
    e("v_and_b32 v4, 1, v1")
    e("v_lshlrev_b32 v4, 13, v4")
    e("v_add_u32 v3, v3, v4")
    e(f"v_add_u32 v22, {BOFF}, v3")
    e(f"v_add_u32 v23, {BOFF+2*STG}, v3")

    AF = 32
    BF = 48
    ACC = 64
    for r in range(128):
        e(f"v_mov_b32 v{ACC+r}, 0")

    def read_groups(stage, s, buf):
        g = []
        va = 14 + 4 * (stage >> 1) + s
        vb = 22 + (stage >> 1)
        so = (stage & 1) * STG
        for rb in range(2):
            d = AF + buf * 8 + rb * 4
            g.append([f"ds_read_b128 v[{d}:{d+3}], v{va} offset:{so + rb*4096}"])
        for b in range(2):
            d = BF + buf * 8 + b * 4
            g.append([f"ds_read_b64_tr_b16 v[{d}:{d+1}], v{vb} offset:{so + (b*4+s)*1024}"])
            g.append([f"ds_read_b64_tr_b16 v[{d+2}:{d+3}], v{vb} offset:{so + (b*4+s)*1024+256}"])
        return g

    def mfmas(buf, aset):
        m = []
        for b in range(2):
            for rb in range(2):
                a = AF + buf * 8 + rb * 4
                bb = BF + buf * 8 + b * 4
                c = ACC + aset * 64 + (b * 2 + rb) * 16
                m.append(f"v_mfma_f32_32x32x16_bf16 v[{c}:{c+15}], v[{bb}:{bb+3}], v[{a}:{a+3}], v[{c}:{c+15}]")
        return m

    def kstep(q, aset, dma, wait_n, last):
        dg = dma_groups((q + 3) % NS) if dma else []
        for s in range(4):
            cur = s & 1
            if s < 3:
                rd = read_groups(q, s + 1, cur ^ 1)
            elif not last:
                rd = read_groups((q + 1) % NS, 0, cur ^ 1)
            else:
                rd = []
            e("s_waitcnt lgkmcnt(0)")
            mf = mfmas(cur, aset)
            dd = dg[2 * s:2 * s + 2]
            e(mf[0])
            for g in rd[0:3]:
                for x in g:
                    e(x)
            e(mf[1])
            for g in rd[3:6]:
                for x in g:
                    e(x)
            e(mf[2])
            for g in dd[0:1]:
                for x in g:
                    e(x)
            e(mf[3])
            for g in dd[1:2]:
                for x in g:
                    e(x)
            if s == 2 and not last:
                e(f"s_waitcnt vmcnt({wait_n}) lgkmcnt(0)")
                e("s_barrier")

    e("s_waitcnt vmcnt(16)")
    e("s_barrier")
    for g in read_groups(0, 0, 0):
        for s in g:
            e(s)
    if "stamp3" in EXP:
        e("s_memtime s[82:83]")
    e("s_mov_b32 s63, 0")
    e.label("K3_LOOP1")
    for q in range(4):
        kstep(q, 0, True, 14, False)
    e("s_add_u32 s63, s63, 1")
    e("s_cmp_lt_u32 s63, 4")
    e("s_cbranch_scc1 K3_LOOP1")
    e("s_mov_b32 s63, 0")
    e.label("K3_LOOP2")
    for q in range(4):
        kstep(q, 1, True, 14, False)
    e("s_add_u32 s63, s63, 1")
    e("s_cmp_lt_u32 s63, 4")
    e("s_cbranch_scc1 K3_LOOP2")
    kstep(0, 1, True, 14, False)
    kstep(1, 1, False, 8, False)
    kstep(2, 1, False, 0, False)
    kstep(3, 1, False, 0, True)
    if "stamp3" in EXP:
        e("s_memtime s[84:85]")
    e("v_and_b32 v3, 31, v2")
    e("v_lshrrev_b32 v4, 1, v1")
    e("v_lshlrev_b32 v4, 6, v4")
    e("v_add_u32 v3, v3, v4")
    e("v_lshlrev_b32 v3, 2, v3")
    e("s_lshl_b32 s3, s33, 9")
    e(f"s_add_u32 s3, s3, {G_OFF}")
    e("buffer_load_dword v24, v3, s[28:31], s3 offen")
    e("buffer_load_dword v25, v3, s[28:31], s3 offen offset:128")
    e("s_waitcnt vmcnt(0)")
    e("v_sub_f32 v26, 1.0, v24")
    e("v_sub_f32 v27, 1.0, v25")
    e("s_cmp_eq_u32 s36, 0")
    e("s_cselect_b64 vcc, -1, 0")
    e("s_nop 1")
    e("v_cndmask_b32 v24, v26, v24, vcc")
    e("v_cndmask_b32 v25, v27, v25, vcc")
    e("s_nop 7")
    e("s_lshl_b32 s3, s33, 3")
    e("s_add_u32 s3, s3, s34")
    e("s_lshl_b32 s3, s3, 2")
    e("s_add_u32 s3, s3, s35")
    e("s_lshl_b32 s3, s3, 14")
    e("s_lshl_b32 s37, s36, 23")
    e("s_add_u32 s3, s3, s37")
    e(f"s_add_u32 s3, s3, {P_OFF}")
    e("v_lshlrev_b32 v3, 4, v2")
    for t in range(4):
        rb = t & 1
        c1 = ACC + t * 16
        c2 = ACC + 64 + t * 16
        for r in range(16):
            e(f"v_mul_f32 v{c1+r}, v{c1+r}, v{24+rb}")
        for r in range(16):
            e(f"v_fmac_f32 v{c1+r}, v{c2+r}, v{26+rb}")
        for rg in range(4):
            e(f"buffer_store_dwordx4 v[{c1+4*rg}:{c1+4*rg+3}], v3, s[28:31], s3 offen offset:{rg*1024}")
        e("s_add_u32 s3, s3, 4096")
    if "stamp3" in EXP:
        stamp_end(e, 28, 35, 2)
    e.label("K3_END")
    e("s_endpgm")
    return kn, e.text(), kernel_desc(kn, 192, 192), (256, 256, 131072)


def gen_k4():
    e = E()
    kn = "k4_comb_kernel"
    e.raw(f".globl {kn}\n.p2align 8\n.type {kn},@function")
    e.label(kn)
    e("s_cmp_ge_u32 s2, 512")
    e("s_cbranch_scc1 K4_END")
    e("s_load_dwordx2 s[64:65], s[0:1], 64")
    e("s_load_dwordx2 s[72:73], s[0:1], 80")
    e("v_lshrrev_b32 v1, 6, v0")
    e("v_and_b32 v2, 63, v0")
    e("v_readfirstlane_b32 s35, v1")
    e("s_waitcnt lgkmcnt(0)")
    srd(e, 28, 72, 73, 0x10000000)
    srd(e, 4, 64, 65, 2048 * 2048)
    e("s_lshl_b32 s3, s2, 2")
    e("s_add_u32 s3, s3, s35")
    e("s_lshl_b32 s3, s3, 12")
    e(f"s_add_u32 s3, s3, {P_OFF}")
    e(f"s_add_u32 s36, s3, {1<<23}")
    e("v_lshlrev_b32 v3, 4, v2")
    for rg in range(4):
        e(f"buffer_load_dwordx4 v[{16+4*rg}:{19+4*rg}], v3, s[28:31], s3 offen offset:{rg*1024}")
        e(f"buffer_load_dwordx4 v[{32+4*rg}:{35+4*rg}], v3, s[28:31], s36 offen offset:{rg*1024}")
    e("s_lshr_b32 s37, s2, 5")
    e("s_bfe_u32 s38, s2, 0x30002")
    e("s_bfe_u32 s39, s2, 0x10001")
    e("s_and_b32 s40, s2, 1")
    e("s_lshl_b32 s37, s37, 7")
    e("s_lshl_b32 s39, s39, 6")
    e("s_add_u32 s37, s37, s39")
    e("s_and_b32 s41, s35, 1")
    e("s_lshl_b32 s41, s41, 5")
    e("s_add_u32 s37, s37, s41")
    e("s_lshl_b32 s37, s37, 11")
    e("s_lshl_b32 s38, s38, 8")
    e("s_lshl_b32 s40, s40, 7")
    e("s_add_u32 s38, s38, s40")
    e("s_lshr_b32 s41, s35, 1")
    e("s_lshl_b32 s41, s41, 6")
    e("s_add_u32 s38, s38, s41")
    e("s_add_u32 s37, s37, s38")
    e("v_and_b32 v4, 31, v2")
    e("v_lshlrev_b32 v4, 11, v4")
    e("v_lshrrev_b32 v5, 5, v2")
    e("v_lshl_add_u32 v4, v5, 4, v4")
    e("s_waitcnt vmcnt(0)")
    for r in range(16):
        e(f"v_add_f32 v{16+r}, v{16+r}, v{32+r}")
    P = 48
    for i in range(8):
        e(f"v_cvt_pk_bf16_f32 v{P+i}, v{16+2*i}, v{16+2*i+1}")
    e("s_nop 1")
    e(f"v_permlane32_swap_b32 v{P+0}, v{P+2}")
    e(f"v_permlane32_swap_b32 v{P+1}, v{P+3}")
    e(f"v_permlane32_swap_b32 v{P+4}, v{P+6}")
    e(f"v_permlane32_swap_b32 v{P+5}, v{P+7}")
    e(f"buffer_store_dwordx4 v[{P}:{P+3}], v4, s[4:7], s37 offen")
    e(f"buffer_store_dwordx4 v[{P+4}:{P+7}], v4, s[4:7], s37 offen offset:32")
    e.label("K4_END")
    e("s_endpgm")
    return kn, e.text(), kernel_desc(kn, 64, 64), (512, 256, 0)


def main():
    kernels = [gen_k1(), gen_k2(), gen_k3(), gen_k4()]
    which = sys.argv[2] if len(sys.argv) > 2 else None
    out = []
    for kn, _, _, (g, b, lds) in kernels:
        out.append(f"; @launch kernel={kn} grid=({g},1,1) block=({b},1,1) lds={lds}")
    out.append('.amdgcn_target "amdgcn-amd-amdhsa--gfx950"')
    out.append(".text")
    for kn, body, desc, _ in kernels:
        out.append(body)
        out.append(desc)
    open(sys.argv[1], "w").write("\n".join(out))


if __name__ == "__main__":
    main()
```

```python
import sys, os
EXP = os.environ.get("EXP", "")

NAME = "gated_mix__linear_attn_block__glu_gated_bilinear__prompt"

PQ_OFF = 0
A2_OFF = 4 << 20
KVP_OFF = 24 << 20
G_OFF = 27 << 20
P_OFF = 28 << 20
FLG_OFF = (27 << 20) + 65536
A2_LD = 4608 * 2

LOG2E = 0x3fb8aa3b
EPS6 = 0x358637bd


class E:
    def __init__(self):
        self.lines = []
        self.vmlog = []
        self.tag = None

    def __call__(self, s):
        self.lines.append("    " + s)
        if s.startswith("buffer_"):
            self.vmlog.append(self.tag)

    def vm_needed(self, tags):
        last = -1
        for i, t in enumerate(self.vmlog):
            if t in tags:
                last = i
        return len(self.vmlog) - 1 - last

    def capture(self, fn):
        saved, savedlog = self.lines, self.vmlog
        self.lines, self.vmlog = [], []
        fn()
        out, self.lines, self.vmlog = self.lines, saved, savedlog
        groups, cur = [], None
        for l in out:
            l = l.strip()
            if l == "{":
                cur = []
            elif l == "}":
                groups.append(cur)
                cur = None
            elif cur is not None:
                cur.append(l)
            else:
                groups.append([l])
        return groups

    def label(self, s):
        self.lines.append(s + ":")

    def raw(self, s):
        self.lines.append(s)

    def text(self):
        return "\n".join(self.lines) + "\n"


def srd(e, d, base_lo, base_hi, nbytes):
    e(f"s_mov_b32 s{d}, s{base_lo}")
    e(f"s_and_b32 s{d+1}, s{base_hi}, 0xffff")
    e(f"s_mov_b32 s{d+2}, {nbytes:#x}")
    e(f"s_mov_b32 s{d+3}, 0x00020000")


def kernel_desc(name, vgpr, accum, sgpr=102):
    return f""".section .rodata,"a"
.p2align 6
.amdhsa_kernel {name}
  .amdhsa_next_free_vgpr {vgpr}
  .amdhsa_next_free_sgpr {sgpr}
  .amdhsa_accum_offset {accum}
  .amdhsa_group_segment_fixed_size 0
  .amdhsa_kernarg_size 88
  .amdhsa_user_sgpr_count 2
  .amdhsa_user_sgpr_kernarg_segment_ptr 1
  .amdhsa_system_sgpr_workgroup_id_x 1
.end_amdhsa_kernel
.text
"""


def interleave(e, mfmas, fillers, per_gap=None, start=0):
    n = len(mfmas)
    fi = 0
    nf = len(fillers)
    for i, m in enumerate(mfmas):
        e(m)
        if i < start:
            continue
        if per_gap is None:
            tgt = nf * (i + 1 - start) // max(1, (n - start))
        else:
            tgt = min(nf, per_gap * (i + 1 - start))
        while fi < tgt:
            for s in fillers[fi]:
                e(s)
            fi += 1
    while fi < nf:
        for s in fillers[fi]:
            e(s)
        fi += 1


def stamp_end(e, srd_ws, wave_sgpr, lane_v):
    e("s_waitcnt vmcnt(0)")
    e("s_memtime s[86:87]")
    e("s_memrealtime s[90:91]")
    e("s_waitcnt lgkmcnt(0)")
    for i in range(12):
        e(f"v_mov_b32 v{32+i}, s{80+i}")
    e("s_lshl_b32 s3, s2, 8")
    e(f"s_lshl_b32 s92, s{wave_sgpr}, 6")
    e("s_add_u32 s3, s3, s92")
    e(f"s_add_u32 s3, s3, {200<<20}")
    e("v_mov_b32 v3, 0")
    e(f"v_cmp_eq_u32 vcc, 0, v{lane_v}")
    e("s_and_saveexec_b64 s[92:93], vcc")
    for i in range(3):
        e(f"buffer_store_dwordx4 v[{32+4*i}:{35+4*i}], v3, s[{srd_ws}:{srd_ws+3}], s3 offen offset:{16*i}")


def gen_k1():
    e = E()
    kn = "k1_gemm1_kernel"
    STG = 36864
    BOFF = 16384
    NS = 4
    e.raw(f".globl {kn}\n.p2align 8\n.type {kn},@function")
    e.label(kn)
    e("s_cmp_ge_u32 s2, 256")
    e("s_cbranch_scc1 K1_END")
    if "stamp" in EXP:
        e("s_memtime s[80:81]")
        e("s_memrealtime s[88:89]")
    e("s_load_dwordx4 s[64:67], s[0:1], 0")
    e("s_load_dwordx4 s[68:71], s[0:1], 32")
    e("s_load_dwordx2 s[72:73], s[0:1], 80")
    e("s_load_dwordx2 s[96:97], s[0:1], 16")
    e("s_load_dwordx2 s[98:99], s[0:1], 48")
    e("s_and_b32 s3, s2, 7")
    e("s_lshr_b32 s32, s2, 3")
    e("s_and_b32 s33, s32, 7")
    e("s_lshr_b32 s32, s32, 3")
    e("s_lshl_b32 s3, s3, 2")
    e("s_add_u32 s34, s3, s32")
    e("v_lshrrev_b32 v1, 6, v0")
    e("v_and_b32 v2, 63, v0")
    e("v_readfirstlane_b32 s35, v1")
    e("s_and_b32 s37, s34, 1")
    e("s_lshr_b32 s38, s34, 1")
    e("s_mul_i32 s39, s38, 7")
    e("s_lshl_b32 s40, s37, 2")
    e("s_add_u32 s40, s39, s40")
    e("s_add_u32 s41, s39, 3")
    e("s_lshl_b32 s42, s34, 6")
    e("s_add_u32 s48, s42, 2048")
    e("s_add_u32 s49, s42, 4096")
    e("s_lshl_b32 s43, s38, 7")
    e("s_add_u32 s47, s43, 64")
    e("s_lshl_b32 s44, s41, 6")
    e("s_cmp_eq_u32 s37, 0")
    e("s_cselect_b32 s50, s43, s44")
    e("s_cselect_b32 s51, s47, s44")
    e(f"s_mov_b32 s58, {32*7168}")
    e(f"s_cselect_b32 s58, {32*6144}, s58")
    e("s_lshl_b32 s44, s40, 6")
    for j in range(3):
        e(f"s_add_u32 s{52+2*j}, s44, {64*j}")
        e(f"s_add_u32 s{53+2*j}, s44, {64*j}")
    e("s_lshr_b32 s36, s35, 1")
    e("s_cmp_eq_u32 s36, 0")
    for i in range(5):
        e(f"s_cselect_b32 s{74+i}, s{48+2*i}, s{49+2*i}")
    e("s_waitcnt lgkmcnt(0)")
    e("s_lshl_b32 s3, s33, 19")
    e("s_add_u32 s64, s64, s3")
    e("s_addc_u32 s65, s65, 0")
    srd(e, 4, 64, 65, 256 * 2048)
    srd(e, 8, 66, 67, 1024 * 6144)
    srd(e, 12, 68, 69, 1024 * 7168)
    srd(e, 16, 70, 71, 1024 * 7168)
    srd(e, 28, 72, 73, 0x10000000)
    e("s_cmp_eq_u32 s36, 0")
    for i in range(4):
        e(f"s_cselect_b32 s{20+i}, s{12+i}, s{16+i}")
    e("s_cmp_eq_u32 s37, 0")
    for i in range(4):
        e(f"s_cselect_b32 s{24+i}, s{8+i}, s{20+i}")
    if "nostag" in EXP:
        e("s_mov_b32 s79, 0")
    else:
        e("s_lshl_b32 s79, s33, 2")
        e("s_and_b32 s3, s34, 3")
        e("s_add_u32 s79, s79, s3")
    e("s_lshl_b32 s59, s79, 6")
    e(f"s_mul_i32 s60, s79, {32*6144}")
    e(f"s_mul_i32 s61, s79, {32*7168}")
    e("s_mul_i32 s62, s79, s58")
    e("s_lshl_b32 s45, s35, 12")
    e("s_lshl_b32 s46, s35, 10")
    e(f"s_add_u32 s46, s46, {BOFF}")
    e("v_lshrrev_b32 v3, 2, v2")
    e("v_lshlrev_b32 v4, 6, v1")
    e("v_add_u32 v4, v3, v4")
    e("v_lshlrev_b32 v4, 11, v4")
    e("v_lshrrev_b32 v5, 4, v2")
    e("v_and_b32 v6, 3, v2")
    e("v_xor_b32 v7, v6, v5")
    e("v_lshl_add_u32 v10, v7, 4, v4")
    e("v_and_b32 v4, 1, v1")
    e("v_lshlrev_b32 v4, 4, v4")
    e("v_add_u32 v3, v3, v4")
    e("v_lshlrev_b32 v4, 4, v6")
    e("s_movk_i32 s3, 6144")
    e("v_mul_lo_u32 v11, v3, s3")
    e("v_add_u32 v11, v11, v4")
    e("s_movk_i32 s3, 7168")
    e("v_mul_lo_u32 v12, v3, s3")
    e("v_add_u32 v12, v12, v4")
    e("s_cmp_eq_u32 s37, 0")
    e("s_cselect_b64 vcc, -1, 0")
    e("s_nop 1")
    e("v_cndmask_b32 v13, v12, v11, vcc")

    dsrd = [8, 24, 20, 20, 20]
    dvoff = [11, 13, 12, 12, 12]
    dkrun = [60, 62, 61, 61, 61]

    def dma_groups(stage):
        g = []
        for i in range(4):
            g.append([f"s_add_u32 m0, s45, {stage*STG + i*1024}",
                      f"s_add_u32 s3, s59, {i*32768}",
                      f"buffer_load_dwordx4 v10, s[4:7], s3 offen lds"])
        for i in range(5):
            g.append([f"s_add_u32 m0, s46, {stage*STG + i*4096}",
                      f"s_add_u32 s3, s{dkrun[i]}, s{74+i}",
                      f"buffer_load_dwordx4 v{dvoff[i]}, s[{dsrd[i]}:{dsrd[i]+3}], s3 offen lds"])
        g[-1] = g[-1] + ["s_add_u32 s79, s79, 1",
                         "s_and_b32 s79, s79, 31",
                         "s_lshl_b32 s59, s79, 6",
                         f"s_mul_i32 s60, s79, {32*6144}",
                         f"s_mul_i32 s61, s79, {32*7168}",
                         "s_mul_i32 s62, s79, s58"]
        order = [0, 4, 1, 5, 2, 6, 3, 7, 8]
        return [g[i] for i in order]

    if "dopf" in EXP:
        e("v_lshlrev_b32 v3, 4, v0")
        e("s_lshl_b32 s3, s34, 14")
        n = 0
        for (sr, per, base) in ((4, 4, "s3"), (8, 6, None), (12, 7, None), (16, 7, None)):
            if base is None:
                e(f"s_mul_i32 s3, s2, {per*4096}")
            for i in range(per):
                e(f"buffer_load_dwordx4 a[{96+4*n}:{99+4*n}], v3, s[{sr}:{sr+3}], s3 offen")
                if i + 1 < per:
                    e("s_add_u32 s3, s3, 4096")
                n += 1
    for st in range(NS):
        for g in dma_groups(st):
            for s in g:
                e(s)

    e("v_and_b32 v3, 31, v2")
    e("v_lshlrev_b32 v4, 6, v1")
    e("v_add_u32 v4, v4, v3")
    e("v_lshlrev_b32 v4, 6, v4")
    e("v_bfe_u32 v5, v3, 2, 2")
    e("v_lshrrev_b32 v6, 5, v2")
    for s in range(2):
        e(f"v_add_u32 v7, {2*s}, v6")
        e("v_xor_b32 v7, v7, v5")
        e(f"v_lshl_add_u32 v{14+s}, v7, 4, v4")
        for q in range(1, NS):
            e(f"v_add_u32 v{14+2*q+s}, {q*STG}, v{14+s}")
    e("v_lshrrev_b32 v3, 5, v2")
    e("v_lshlrev_b32 v3, 3, v3")
    e("v_bfe_u32 v4, v2, 2, 2")
    e("v_add_u32 v3, v3, v4")
    e("v_lshlrev_b32 v3, 6, v3")
    e("v_bfe_u32 v4, v2, 4, 1")
    e("v_lshlrev_b32 v4, 5, v4")
    e("v_add_u32 v3, v3, v4")
    e("v_and_b32 v4, 3, v2")
    e("v_lshlrev_b32 v4, 3, v4")
    e("v_add_u32 v3, v3, v4")
    for q in range(NS):
        e(f"v_add_u32 v{22+q}, {BOFF+q*STG}, v3")

    AF = 96
    BF = 112

    def accbase(rb, b):
        t = b * 2 + rb
        if t < 6:
            return ("a", 16 * t)
        return ("v", 32 + 16 * (t - 6))

    def acc(rb, b):
        k, o = accbase(rb, b)
        return f"{k}[{o}:{o+15}]"

    def accreg(rb, b, r):
        k, o = accbase(rb, b)
        return f"{k}{o+r}"

    for r in range(96):
        e(f"v_accvgpr_write_b32 a{r}, 0")
    for r in range(32, 256):
        e(f"v_mov_b32 v{r}, 0")

    def read_groups(stage, s, buf):
        g = []
        va = 14 + 2 * stage + s
        vb = 22 + stage
        for rb in range(2):
            d = AF + buf * 8 + rb * 4
            g.append([f"ds_read_b128 a[{d}:{d+3}], v{va} offset:{rb*2048}"])
        for b in range(10):
            d = BF + buf * 40 + b * 4
            g.append([f"ds_read_b64_tr_b16 a[{d}:{d+1}], v{vb} offset:{(b*2+s)*1024}"])
            g.append([f"ds_read_b64_tr_b16 a[{d+2}:{d+3}], v{vb} offset:{(b*2+s)*1024+256}"])
        return g

    def mfmas(buf):
        m = []
        for b in range(10):
            for rb in range(2):
                a = AF + buf * 8 + rb * 4
                bb = BF + buf * 40 + b * 4
                if b < 2:
                    m.append(f"v_mfma_f32_32x32x16_bf16 {acc(rb,b)}, a[{a}:{a+3}], a[{bb}:{bb+3}], {acc(rb,b)}")
                else:
                    m.append(f"v_mfma_f32_32x32x16_bf16 {acc(rb,b)}, a[{bb}:{bb+3}], a[{a}:{a+3}], {acc(rb,b)}")
        return m

    def merge(reads, dmas, nm):
        slots = [[] for _ in range(nm)]
        for i, g in enumerate(reads):
            slots[min(nm - 1, i // 2)].append(g)
        nd = len(dmas)
        for i, g in enumerate(dmas):
            slots[min(nm - 1, (i * nm) // max(1, nd) + 2)].append(g)
        return slots

    def emit_sub(mf, slots):
        for m, sl in zip(mf, slots):
            e(m)
            for g in sl:
                for s in g:
                    e(s)

    def k32step(q, dma_first, dma_second, wait_n, last):
        nodma = "nodma" in EXP
        d0 = dma_groups((q - 1) % NS)[5:] if (dma_first and not nodma) else []
        e("s_waitcnt lgkmcnt(0)")
        emit_sub(mfmas(0), merge(read_groups(q, 1, 1), d0, 20))
        if not last:
            e(f"s_waitcnt vmcnt({wait_n}) lgkmcnt(0)")
            e("s_barrier")
        else:
            e("s_waitcnt lgkmcnt(0)")
        d1 = dma_groups(q)[:5] if (dma_second and not nodma) else []
        rd = read_groups((q + 1) % NS, 0, 0) if not last else []
        emit_sub(mfmas(1), merge(rd, d1, 20))

    e("s_waitcnt vmcnt(27)")
    e("s_barrier")
    for g in read_groups(0, 0, 0):
        for s in g:
            e(s)
    e("s_mov_b32 s63, 0")
    if "stamp" in EXP:
        e("s_memtime s[82:83]")
    k32step(0, False, True, 18, False)
    e.label("K1_LOOP")
    for j in range(4):
        k32step((1 + j) % NS, True, True, 18, False)
    e("s_add_u32 s63, s63, 1")
    e("s_cmp_lt_u32 s63, 6")
    e("s_cbranch_scc1 K1_LOOP")
    k32step(1, True, True, 18, False)
    k32step(2, True, True, 18, False)
    k32step(3, True, True, 18, False)
    k32step(0, True, False, 18, False)
    k32step(1, False, False, 9, False)
    k32step(2, False, False, 0, False)
    k32step(3, False, False, 0, True)
    e("s_nop 15")
    e("s_nop 3")

    if "stamp" in EXP:
        e("s_memtime s[84:85]")
    if "noepi" in EXP:
        e("s_branch K1_END")
    e("v_mov_b32 v3, 0")
    e("v_lshlrev_b32 v4, 2, v0")
    e("s_lshl_b32 s3, s2, 7")
    e(f"s_add_u32 s3, s3, {FLG_OFF}")
    e("v_cmp_gt_u32 vcc, 32, v0")
    e("s_and_saveexec_b64 s[92:93], vcc")
    e("buffer_store_dword v3, v4, s[28:31], s3 offen")
    e("s_mov_b64 exec, s[92:93]")
    if "nopf3" not in EXP:
        srd(e, 8, 96, 97, 1024 * 2048)
        srd(e, 12, 98, 99, 3584 * 2048)
        e("v_lshlrev_b32 v3, 4, v0")
        e("s_lshl_b32 s3, s2, 13")
        for i in range(2):
            e(f"buffer_load_dwordx4 a[{96+4*i}:{99+4*i}], v3, s[8:11], s3 offen")
            e("s_add_u32 s3, s3, 4096")
        e("s_mul_i32 s3, s2, 28672")
        for i in range(7):
            e(f"buffer_load_dwordx4 a[{104+4*i}:{107+4*i}], v3, s[12:15], s3 offen")
            e("s_add_u32 s3, s3, 4096")
    e("v_and_b32 v3, 31, v2")
    e("v_lshlrev_b32 v4, 6, v1")
    e("v_add_u32 v3, v3, v4")
    e("v_lshrrev_b32 v5, 5, v2")
    e("v_lshlrev_b32 v5, 4, v5")
    e(f"s_movk_i32 s3, {A2_LD}")
    e("v_mul_lo_u32 v26, v3, s3")
    e("v_add_u32 v26, v26, v5")
    e("v_lshlrev_b32 v27, 11, v3")
    e("v_add_u32 v27, v27, v5")
    e(f"s_mul_i32 s64, s33, {256*A2_LD}")
    e(f"s_add_u32 s64, s64, {A2_OFF + 2048}")
    e("s_lshl_b32 s65, s33, 19")
    e(f"s_add_u32 s65, s65, {PQ_OFF}")

    def swap_store(P, vaddr, soff):
        e("s_nop 1")
        e(f"v_permlane32_swap_b32 v{P+0}, v{P+2}")
        e(f"v_permlane32_swap_b32 v{P+1}, v{P+3}")
        e(f"v_permlane32_swap_b32 v{P+4}, v{P+6}")
        e(f"v_permlane32_swap_b32 v{P+5}, v{P+7}")
        e(f"buffer_store_dwordx4 v[{P}:{P+3}], v{vaddr}, s[28:31], {soff} offen")
        e(f"buffer_store_dwordx4 v[{P+4}:{P+7}], v{vaddr}, s[28:31], {soff} offen offset:32")

    def glu_group_v(bg, sidx):
        for rb in range(2):
            _, G = accbase(rb, bg)
            _, U = accbase(rb, bg + 1)
            for i in range(8):
                e(f"v_pk_mul_f32 v[{G+2*i}:{G+2*i+1}], v[{G+2*i}:{G+2*i+1}], v[{U+2*i}:{U+2*i+1}]")
            for i in range(8):
                e(f"v_cvt_pk_bf16_f32 v{U+i}, v{G+2*i}, v{G+2*i+1}")
            e(f"s_add_u32 s3, s64, {sidx}")
            if rb:
                e(f"s_add_u32 s3, s3, {32*A2_LD}")
            swap_store(U, 26, "s3")

    glu_group_v(8, "s56")
    T = 192
    glu_group_v(6, "s54")
    KVA = 128
    PK = 232
    PV = 248
    ONES = 28
    for i in range(4):
        e(f"v_mov_b32 v{ONES+i}, 0x3f803f80")

    def phi16(src_fn, dst):
        for r in range(16):
            e(f"v_accvgpr_read_b32 v{dst+r}, {src_fn(r)}")
        for r in range(16):
            e(f"v_mul_f32 v{dst+16+r}, {LOG2E:#x}, v{dst+r}")
        for r in range(16):
            e(f"v_min_f32 v{dst+16+r}, 0, v{dst+16+r}")
        for r in range(16):
            e(f"v_exp_f32 v{dst+16+r}, v{dst+16+r}")
        for r in range(16):
            e(f"v_max_f32 v{dst+r}, 0, v{dst+r}")
        for r in range(16):
            e(f"v_add_f32 v{dst+r}, {EPS6:#x}, v{dst+r}")
        for r in range(16):
            e(f"v_add_f32 v{dst+r}, v{dst+r}, v{dst+16+r}")

    for rb in range(2):
        phi16(lambda r: accreg(rb, 0, r), T)
        for i in range(8):
            e(f"v_cvt_pk_bf16_f32 v{PK+i}, v{T+2*i}, v{T+2*i+1}")
        for r in range(16):
            e(f"v_accvgpr_read_b32 v{T+r}, {accreg(rb,1,r)}")
        for i in range(8):
            e(f"v_cvt_pk_bf16_f32 v{PV+i}, v{T+2*i}, v{T+2*i+1}")
        e("s_nop 1")
        for m in range(2):
            c1 = "0" if (rb == 0 and m == 0) else f"v[{KVA}:{KVA+15}]"
            c2 = "0" if (rb == 0 and m == 0) else f"v[{KVA+16}:{KVA+31}]"
            e(f"v_mfma_f32_32x32x16_bf16 v[{KVA}:{KVA+15}], v[{PK+4*m}:{PK+3+4*m}], v[{PV+4*m}:{PV+3+4*m}], {c1}")
            e(f"v_mfma_f32_32x32x16_bf16 v[{KVA+16}:{KVA+31}], v[{PK+4*m}:{PK+3+4*m}], v[{ONES}:{ONES+3}], {c2}")
    e("s_barrier")
    e("v_lshlrev_b32 v3, 4, v2")
    e("v_lshlrev_b32 v4, 13, v1")
    e("v_add_u32 v3, v3, v4")
    e("s_nop 7")
    e("s_nop 7")
    for rg in range(4):
        e(f"ds_write_b128 v3, v[{KVA+4*rg}:{KVA+4*rg+3}] offset:{rg*1024}")
    for rg in range(4):
        e(f"ds_write_b128 v3, v[{KVA+16+4*rg}:{KVA+16+4*rg+3}] offset:{4096+rg*1024}")
    glu_group_v(4, "s52")
    e("s_cmp_eq_u32 s37, 0")
    e("s_cbranch_scc0 K1_SLOT1_GLU")
    for rb in range(2):
        for r in range(16):
            e(f"v_accvgpr_read_b32 v{T+r}, {accreg(rb,2,r)}")
        for i in range(8):
            e(f"v_cvt_pk_bf16_f32 v{T+16+i}, v{T+2*i}, v{T+2*i+1}")
        e("s_add_u32 s3, s65, s50")
        if rb:
            e(f"s_add_u32 s3, s3, {32*2048}")
        swap_store(T + 16, 27, "s3")
        _, U = accbase(rb, 3)
        for i in range(8):
            e(f"v_cvt_pk_bf16_f32 v{T+24+i}, v{U+2*i}, v{U+2*i+1}")
        e("s_add_u32 s3, s65, s51")
        if rb:
            e(f"s_add_u32 s3, s3, {32*2048}")
        swap_store(T + 24, 27, "s3")
        e("s_nop 1")
    e("s_branch K1_SLOT1_DONE")
    e.label("K1_SLOT1_GLU")
    for rb in range(2):
        _, U = accbase(rb, 3)
        for r in range(16):
            e(f"v_accvgpr_read_b32 v{T+r}, {accreg(rb,2,r)}")
        for i in range(8):
            e(f"v_pk_mul_f32 v[{T+2*i}:{T+2*i+1}], v[{T+2*i}:{T+2*i+1}], v[{U+2*i}:{U+2*i+1}]")
        for i in range(8):
            e(f"v_cvt_pk_bf16_f32 v{U+i}, v{T+2*i}, v{T+2*i+1}")
        e("s_add_u32 s3, s64, s50")
        if rb:
            e(f"s_add_u32 s3, s3, {32*A2_LD}")
        swap_store(U, 26, "s3")
    e.label("K1_SLOT1_DONE")

    e("s_waitcnt lgkmcnt(0)")
    e("s_barrier")
    e("v_lshlrev_b32 v3, 4, v0")
    R = 160
    for w in range(4):
        e(f"ds_read_b128 v[{R+4*w}:{R+4*w+3}], v3 offset:{w*8192}")
        e(f"ds_read_b128 v[{R+16+4*w}:{R+16+4*w+3}], v3 offset:{w*8192+4096}")
    e("s_waitcnt lgkmcnt(0)")
    for half in range(2):
        b = R + 16 * half
        for i in range(4):
            e(f"v_add_f32 v{b+i}, v{b+i}, v{b+4+i}")
            e(f"v_add_f32 v{b+8+i}, v{b+8+i}, v{b+12+i}")
        for i in range(4):
            e(f"v_add_f32 v{b+i}, v{b+i}, v{b+8+i}")
    e("s_lshl_b32 s3, s34, 3")
    e("s_add_u32 s3, s3, s33")
    e("s_lshl_b32 s3, s3, 13")
    e(f"s_add_u32 s3, s3, {KVP_OFF}")
    e(f"buffer_store_dwordx4 v[{R}:{R+3}], v3, s[28:31], s3 offen")
    e("s_add_u32 s3, s3, 4096")
    e(f"buffer_store_dwordx4 v[{R+16}:{R+19}], v3, s[28:31], s3 offen")
    if "stamp" in EXP:
        stamp_end(e, 28, 35, 2)
    e.label("K1_END")
    e("s_endpgm")
    return kn, e.text(), kernel_desc(kn, 448, 256), (256, 256, 147456)


def gen_k2():
    e = E()
    kn = "k2_attn_kernel"
    e.raw(f".globl {kn}\n.p2align 8\n.type {kn},@function")
    e.label(kn)
    e("s_cmp_ge_u32 s2, 512")
    e("s_cbranch_scc1 K2_END")
    e("s_cmp_ge_u32 s2, 256")
    e("s_cbranch_scc0 K2_MAIN")
    e("s_load_dwordx2 s[64:65], s[0:1], 16")
    e("s_load_dwordx2 s[66:67], s[0:1], 48")
    e("s_sub_u32 s3, s2, 256")
    e("v_lshlrev_b32 v1, 4, v0")
    e("s_waitcnt lgkmcnt(0)")
    srd(e, 4, 64, 65, 1024 * 2048)
    srd(e, 8, 66, 67, 3584 * 2048)
    e("s_lshl_b32 s32, s3, 13")
    e("s_mul_i32 s33, s3, 28672")
    for i in range(2):
        e(f"buffer_load_dwordx4 v[{4+4*i}:{7+4*i}], v1, s[4:7], s32 offen")
        e("s_add_u32 s32, s32, 4096")
    for i in range(7):
        e(f"buffer_load_dwordx4 v[{12+4*i}:{15+4*i}], v1, s[8:11], s33 offen")
        e("s_add_u32 s33, s33, 4096")
    e("s_waitcnt vmcnt(0)")
    e("s_branch K2_END")
    e.label("K2_MAIN")
    e("s_load_dwordx2 s[64:65], s[0:1], 0")
    e("s_load_dwordx2 s[66:67], s[0:1], 56")
    e("s_load_dwordx2 s[72:73], s[0:1], 80")
    e("s_and_b32 s33, s2, 31")
    e("s_lshr_b32 s34, s2, 5")
    e("v_lshrrev_b32 v1, 6, v0")
    e("v_and_b32 v2, 63, v0")
    e("v_readfirstlane_b32 s35, v1")
    e("s_waitcnt lgkmcnt(0)")
    srd(e, 4, 64, 65, 2048 * 2048)
    srd(e, 8, 66, 67, 2048)
    srd(e, 28, 72, 73, 0x10000000)
    e("v_and_b32 v3, 31, v2")
    e("v_lshlrev_b32 v4, 6, v1")
    e("v_add_u32 v3, v3, v4")
    e("v_lshrrev_b32 v5, 5, v2")
    e("v_lshlrev_b32 v5, 4, v5")
    e("v_lshlrev_b32 v6, 11, v3")
    e("v_add_u32 v6, v6, v5")
    e("s_lshl_b32 s36, s34, 19")
    e("s_lshl_b32 s37, s33, 6")
    e("s_add_u32 s36, s36, s37")
    e(f"s_add_u32 s36, s36, {PQ_OFF}")
    e(f"s_add_u32 s38, s36, {32*2048}")
    Q = 32
    e(f"buffer_load_dwordx4 v[{Q}:{Q+3}], v6, s[28:31], s36 offen")
    e(f"buffer_load_dwordx4 v[{Q+4}:{Q+7}], v6, s[28:31], s36 offen offset:32")
    e(f"buffer_load_dwordx4 v[{Q+8}:{Q+11}], v6, s[28:31], s38 offen")
    e(f"buffer_load_dwordx4 v[{Q+12}:{Q+15}], v6, s[28:31], s38 offen offset:32")
    e("v_lshlrev_b32 v7, 4, v0")
    e("s_lshl_b32 s39, s33, 16")
    e(f"s_add_u32 s39, s39, {KVP_OFF}")
    PL = 64
    for rt in range(8):
        e(f"s_add_u32 s3, s39, {rt*8192}")
        e(f"buffer_load_dwordx4 v[{PL+8*rt}:{PL+8*rt+3}], v7, s[28:31], s3 offen")
        e(f"s_add_u32 s3, s39, {rt*8192+4096}")
        e(f"buffer_load_dwordx4 v[{PL+8*rt+4}:{PL+8*rt+7}], v7, s[28:31], s3 offen")
    e("v_lshlrev_b32 v8, 5, v2")
    e("s_lshl_b32 s40, s2, 3")
    e("s_lshl_b32 s41, s35, 1")
    e("s_add_u32 s40, s40, s41")
    e("s_lshl_b32 s41, s40, 11")
    e("s_add_u32 s42, s41, 2048")
    GX = 128
    e(f"buffer_load_dwordx4 v[{GX}:{GX+3}], v8, s[4:7], s41 offen")
    e(f"buffer_load_dwordx4 v[{GX+4}:{GX+7}], v8, s[4:7], s41 offen offset:16")
    e(f"buffer_load_dwordx4 v[{GX+8}:{GX+11}], v8, s[4:7], s42 offen")
    e(f"buffer_load_dwordx4 v[{GX+12}:{GX+15}], v8, s[4:7], s42 offen offset:16")
    e(f"buffer_load_dwordx4 v[{GX+16}:{GX+19}], v8, s[8:11], 0 offen")
    e(f"buffer_load_dwordx4 v[{GX+20}:{GX+23}], v8, s[8:11], 0 offen offset:16")
    e("s_waitcnt vmcnt(22)")
    PQ = 48
    T = 160
    for blk in range(2):
        for i in range(8):
            src = Q + 8 * blk + i
            e(f"v_lshlrev_b32 v{T+2*i}, 16, v{src}")
            e(f"v_and_b32 v{T+2*i+1}, 0xffff0000, v{src}")
        for r in range(16):
            e(f"v_mul_f32 v{T+16+r}, {LOG2E:#x}, v{T+r}")
        for r in range(16):
            e(f"v_min_f32 v{T+16+r}, 0, v{T+16+r}")
        for r in range(16):
            e(f"v_exp_f32 v{T+16+r}, v{T+16+r}")
        for r in range(16):
            e(f"v_max_f32 v{T+r}, 0, v{T+r}")
        for r in range(16):
            e(f"v_add_f32 v{T+r}, {EPS6:#x}, v{T+r}")
        for r in range(16):
            e(f"v_add_f32 v{T+r}, v{T+r}, v{T+16+r}")
        for i in range(8):
            e(f"v_cvt_pk_bf16_f32 v{PQ+8*blk+i}, v{T+2*i}, v{T+2*i+1}")
    e("s_waitcnt vmcnt(6)")
    for rt in range(1, 8):
        for i in range(8):
            e(f"v_add_f32 v{PL+i}, v{PL+i}, v{PL+8*rt+i}")
    for i in range(4):
        e(f"v_cvt_pk_bf16_f32 v{T+i}, v{PL+2*i}, v{PL+2*i+1}")
    e("v_and_b32 v9, 31, v2")
    e("v_lshlrev_b32 v9, 6, v9")
    e("v_lshlrev_b32 v10, 4, v1")
    e("v_add_u32 v9, v9, v10")
    e("v_lshrrev_b32 v10, 5, v2")
    e("v_lshlrev_b32 v10, 3, v10")
    e("v_add_u32 v9, v9, v10")
    e(f"ds_write_b64 v9, v[{T}:{T+1}]")
    e(f"ds_write_b64 v9, v[{T+2}:{T+3}] offset:2048")
    e("s_waitcnt vmcnt(0)")
    e("v_mov_b32 v12, 0")
    e("v_mov_b32 v13, 0")
    for i in range(8):
        e(f"v_dot2_f32_bf16 v12, v{GX+i}, v{GX+16+i}, v12")
        e(f"v_dot2_f32_bf16 v13, v{GX+8+i}, v{GX+16+i}, v13")
    e("s_waitcnt lgkmcnt(0)")
    e("s_barrier")
    e("v_and_b32 v9, 31, v2")
    e("v_lshlrev_b32 v9, 6, v9")
    e("v_add_u32 v9, v9, v5")
    KA = 64
    e(f"ds_read_b128 v[{KA}:{KA+3}], v9")
    e(f"ds_read_b128 v[{KA+4}:{KA+7}], v9 offset:32")
    e(f"ds_read_b128 v[{KA+8}:{KA+11}], v9 offset:2048")
    e(f"ds_read_b128 v[{KA+12}:{KA+15}], v9 offset:2080")
    for off in (0x041F, 0x081F, 0x101F, 0x201F, 0x401F):
        e(f"ds_swizzle_b32 v14, v12 offset:{off:#x}")
        e(f"ds_swizzle_b32 v15, v13 offset:{off:#x}")
        e("s_waitcnt lgkmcnt(0)")
        e("v_add_f32 v12, v12, v14")
        e("v_add_f32 v13, v13, v15")
    e("s_nop 0")
    e("v_readlane_b32 s44, v12, 32")
    e("v_readlane_b32 s45, v13, 32")
    e("s_nop 1")
    e("v_add_f32 v12, s44, v12")
    e("v_add_f32 v13, s45, v13")
    e(f"v_mul_f32 v12, {LOG2E | 0x80000000:#x}, v12")
    e(f"v_mul_f32 v13, {LOG2E | 0x80000000:#x}, v13")
    e("v_exp_f32 v12, v12")
    e("v_exp_f32 v13, v13")
    e("s_nop 0")
    e("v_add_f32 v12, 1.0, v12")
    e("v_add_f32 v13, 1.0, v13")
    e("v_rcp_f32 v12, v12")
    e("v_rcp_f32 v13, v13")
    e("s_lshl_b32 s3, s40, 2")
    e(f"s_add_u32 s3, s3, {G_OFF}")
    e("v_mov_b32 v14, 0")
    e("v_cmp_eq_u32 vcc, 0, v2")
    e("s_and_saveexec_b64 s[46:47], vcc")
    e("buffer_store_dwordx2 v[12:13], v14, s[28:31], s3 offen")
    e("s_mov_b64 exec, s[46:47]")
    NUM = 96
    for rb in range(2):
        for m in range(2):
            b = PQ + 8 * rb + 4 * m
            n = NUM + 16 * rb
            d = NUM + 32 + 16 * rb
            c1 = "0" if m == 0 else f"v[{n}:{n+15}]"
            c2 = "0" if m == 0 else f"v[{d}:{d+15}]"
            e(f"v_mfma_f32_32x32x16_bf16 v[{n}:{n+15}], v[{KA+4*m}:{KA+4*m+3}], v[{b}:{b+3}], {c1}")
            e(f"v_mfma_f32_32x32x16_bf16 v[{d}:{d+15}], v[{KA+8+4*m}:{KA+8+4*m+3}], v[{b}:{b+3}], {c2}")
    e(f"s_movk_i32 s3, {A2_LD}")
    e("v_mul_lo_u32 v16, v3, s3")
    e("v_add_u32 v16, v16, v5")
    e(f"s_mul_i32 s48, s34, {256*A2_LD}")
    e("s_add_u32 s48, s48, s37")
    e(f"s_add_u32 s48, s48, {A2_OFF}")
    e(f"s_add_u32 s49, s48, {32*A2_LD}")
    e("s_nop 15")
    for rb in range(2):
        n = NUM + 16 * rb
        d = NUM + 32 + 16 * rb
        e(f"v_add_f32 v17, {EPS6:#x}, v{d}")
        e("v_rcp_f32 v17, v17")
        e("s_nop 0")
        for r in range(16):
            e(f"v_mul_f32 v{n+r}, v{n+r}, v17")
        P = T + 8 * rb
        for i in range(8):
            e(f"v_cvt_pk_bf16_f32 v{P+i}, v{n+2*i}, v{n+2*i+1}")
        e("s_nop 1")
        e(f"v_permlane32_swap_b32 v{P+0}, v{P+2}")
        e(f"v_permlane32_swap_b32 v{P+1}, v{P+3}")
        e(f"v_permlane32_swap_b32 v{P+4}, v{P+6}")
        e(f"v_permlane32_swap_b32 v{P+5}, v{P+7}")
        e(f"buffer_store_dwordx4 v[{P}:{P+3}], v16, s[28:31], s{48+rb} offen")
        e(f"buffer_store_dwordx4 v[{P+4}:{P+7}], v16, s[28:31], s{48+rb} offen offset:32")
    e.label("K2_END")
    e("s_endpgm")
    return kn, e.text(), kernel_desc(kn, 192, 192), (512, 256, 4096)


X_OFF = 28 << 20
O_OFF = 40 << 20


def gen_k3():
    e = E()
    kn = "k3_gemm2_kernel"
    STP = [64, 66, 68, 70, 76, 92, 94, 100]
    stn = [0]

    def stamp():
        if "fine" in EXP:
            e(f"s_memtime s[{STP[stn[0]]}:{STP[stn[0]]+1}]")
            stn[0] += 1
    STG = 32768
    BOFF = 16384
    NS = 4
    SCR = 131072
    e.raw(f".globl {kn}\n.p2align 8\n.type {kn},@function")
    e.label(kn)
    e("s_cmp_ge_u32 s2, 256")
    e("s_cbranch_scc1 K3_END")
    if "stamp3" in EXP:
        e("s_memtime s[80:81]")
        e("s_memrealtime s[88:89]")
    e("s_load_dwordx2 s[64:65], s[0:1], 16")
    e("s_load_dwordx2 s[66:67], s[0:1], 48")
    e("s_load_dwordx4 s[72:75], s[0:1], 72")
    e("s_load_dwordx2 s[76:77], s[0:1], 0")
    e("s_load_dwordx4 s[96:99], s[0:1], 56")
    e("s_and_b32 s36, s2, 1")
    e("s_bfe_u32 s3, s2, 0x20001")
    e("s_lshr_b32 s32, s2, 3")
    e("s_and_b32 s33, s32, 3")
    e("s_lshl_b32 s3, s3, 2")
    e("s_add_u32 s33, s33, s3")
    e("s_lshr_b32 s34, s32, 2")
    e("v_lshrrev_b32 v1, 6, v0")
    e("v_and_b32 v2, 63, v0")
    e("v_readfirstlane_b32 s35, v1")
    e("s_waitcnt lgkmcnt(0)")
    srd(e, 28, 74, 75, 0x10000000)
    srd(e, 16, 72, 73, 256)
    e(f"s_mul_i32 s3, s33, {128*A2_LD}")
    e(f"s_add_u32 s3, s3, {A2_OFF}")
    e("s_add_u32 s68, s74, s3")
    e("s_addc_u32 s69, s75, 0")
    srd(e, 4, 68, 69, 128 * A2_LD)
    srd(e, 8, 64, 65, 1024 * 2048)
    srd(e, 12, 66, 67, 3584 * 2048)
    for i in range(4):
        e(f"s_mov_b32 s{20+i}, s{12+i}")
    e("s_cmp_eq_u32 s36, 0")
    for i in range(3):
        e(f"s_cselect_b32 s{24+i}, s{8+i}, s{12+i}")
    e(f"s_mul_i32 s60, s36, {1280*2048}")
    e(f"s_mul_i32 s61, s36, {2560*2048}")
    e("s_lshl_b32 s3, s34, 8")
    e("s_add_u32 s60, s60, s3")
    e("s_add_u32 s61, s61, s3")
    e(f"s_mul_i32 s59, s36, {1280*2}")
    e("s_add_u32 s59, s59, 2048")
    e(f"s_mul_i32 s57, s36, {3584*2}")
    e("s_mov_b32 s62, 0")
    e("s_lshl_b32 s45, s35, 12")
    e("s_lshl_b32 s46, s35, 12")
    e(f"s_add_u32 s46, s46, {BOFF}")
    e("v_lshrrev_b32 v3, 3, v2")
    e("v_lshlrev_b32 v4, 5, v1")
    e("v_add_u32 v3, v3, v4")
    e(f"s_movk_i32 s3, {A2_LD}")
    e("v_mul_lo_u32 v3, v3, s3")
    e("v_lshrrev_b32 v5, 4, v2")
    e("v_and_b32 v6, 7, v2")
    e("v_xor_b32 v7, v6, v5")
    e("v_lshl_add_u32 v10, v7, 4, v3")
    e("v_xor_b32 v7, 4, v7")
    e("v_lshl_add_u32 v11, v7, 4, v3")
    e("v_lshrrev_b32 v3, 4, v2")
    e("v_lshlrev_b32 v4, 4, v1")
    e("v_add_u32 v4, v3, v4")
    e("v_lshlrev_b32 v4, 11, v4")
    e("v_bfe_u32 v5, v2, 2, 2")
    e("v_xor_b32 v5, v5, v3")
    e("v_lshl_add_u32 v4, v5, 6, v4")
    e("v_and_b32 v5, 3, v2")
    e("v_lshl_add_u32 v12, v5, 4, v4")

    def dma_groups(stage, ph2=False):
        g = []
        for i in range(4):
            g.append([f"s_add_u32 m0, s45, {stage*STG + i*1024}",
                      (f"s_add_u32 s3, s59, s{52+i}" if ph2 else f"s_add_u32 s3, s59, {i*8*A2_LD}"),
                      f"buffer_load_dwordx4 v{10+(i&1)}, s[4:7], s3 offen lds"])
            g.append([f"s_add_u32 m0, s46, {stage*STG + i*1024}",
                      f"s_add_u32 s3, s60, {i*4*2048}",
                      f"buffer_load_dwordx4 v12, s[20:23], s3 offen lds"])
        if ph2:
            g[-1] = g[-1] + ["s_add_u32 s59, s59, s27",
                             f"s_add_u32 s60, s60, {64*2048}"]
        else:
            g[-1] = g[-1] + ["s_add_u32 s59, s59, 128",
                             f"s_add_u32 s60, s60, {64*2048}",
                             "s_add_u32 s62, s62, 1",
                             "s_cmp_eq_u32 s62, 20",
                             "s_cselect_b32 s60, s61, s60",
                             "s_cselect_b32 s59, s57, s59",
                             "s_cselect_b32 s20, s24, s20",
                             "s_cselect_b32 s21, s25, s21",
                             "s_cselect_b32 s22, s26, s22"]
        return g

    for st in range(NS - 1):
        e.tag = ("D", st)
        for g in dma_groups(st):
            for s in g:
                e(s)

    e("s_and_b32 s50, s2, 31")
    e("s_lshr_b32 s51, s2, 5")
    srd(e, 40, 76, 77, 2048 * 2048)
    srd(e, 52, 96, 97, 2048)
    R3, R5, R9 = 192, 193, 194
    G0, G1, G2, G3 = 195, 196, 197, 198
    PQ = 200
    T = 216
    PS = 248
    Q, PL, GX = 0, 16, 80
    def att_loads():
        e(f"v_and_b32 v{R3}, 31, v2")
        e("v_lshlrev_b32 v4, 6, v1")
        e(f"v_add_u32 v{R3}, v{R3}, v4")
        e(f"v_lshrrev_b32 v{R5}, 5, v2")
        e(f"v_lshlrev_b32 v{R5}, 4, v{R5}")
        e(f"v_lshlrev_b32 v6, 11, v{R3}")
        e(f"v_add_u32 v6, v6, v{R5}")
        e("s_lshl_b32 s38, s51, 19")
        e("s_lshl_b32 s37, s50, 6")
        e("s_add_u32 s38, s38, s37")
        e(f"s_add_u32 s38, s38, {PQ_OFF}")
        e(f"s_add_u32 s39, s38, {32*2048}")
        e(f"buffer_load_dwordx4 a[{Q}:{Q+3}], v6, s[28:31], s38 offen")
        e(f"buffer_load_dwordx4 a[{Q+4}:{Q+7}], v6, s[28:31], s38 offen offset:32")
        e(f"buffer_load_dwordx4 a[{Q+8}:{Q+11}], v6, s[28:31], s39 offen")
        e(f"buffer_load_dwordx4 a[{Q+12}:{Q+15}], v6, s[28:31], s39 offen offset:32")
        e("v_lshlrev_b32 v7, 4, v0")
        e("s_lshl_b32 s39, s50, 16")
        e(f"s_add_u32 s39, s39, {KVP_OFF}")
        for rt in range(8):
            e(f"s_add_u32 s27, s39, {rt*8192}")
            e(f"buffer_load_dwordx4 a[{PL+8*rt}:{PL+8*rt+3}], v7, s[28:31], s27 offen")
            e(f"s_add_u32 s27, s39, {rt*8192+4096}")
            e(f"buffer_load_dwordx4 a[{PL+8*rt+4}:{PL+8*rt+7}], v7, s[28:31], s27 offen")
        e("v_lshlrev_b32 v8, 5, v2")
        e("s_lshl_b32 s48, s51, 8")
        e("s_lshl_b32 s27, s50, 3")
        e("s_add_u32 s48, s48, s27")
        e("s_lshl_b32 s27, s35, 1")
        e("s_add_u32 s48, s48, s27")
        e("s_lshl_b32 s47, s48, 11")
        e("s_add_u32 s49, s47, 2048")
        e(f"buffer_load_dwordx4 a[{GX}:{GX+3}], v8, s[40:43], s47 offen")
        e(f"buffer_load_dwordx4 a[{GX+4}:{GX+7}], v8, s[40:43], s47 offen offset:16")
        e(f"buffer_load_dwordx4 a[{GX+8}:{GX+11}], v8, s[40:43], s49 offen")
        e(f"buffer_load_dwordx4 a[{GX+12}:{GX+15}], v8, s[40:43], s49 offen offset:16")
        e(f"buffer_load_dwordx4 a[{GX+16}:{GX+19}], v8, s[52:55], 0 offen")
        e(f"buffer_load_dwordx4 a[{GX+20}:{GX+23}], v8, s[52:55], 0 offen offset:16")

    def att_a():
        for blk in range(2):
            for i in range(8):
                e(f"v_accvgpr_read_b32 v{T+2*i+1}, a{Q+8*blk+i}")
            for i in range(8):
                e(f"v_lshlrev_b32 v{T+2*i}, 16, v{T+2*i+1}")
                e(f"v_and_b32 v{T+2*i+1}, 0xffff0000, v{T+2*i+1}")
            for r in range(16):
                e(f"v_mul_f32 v{T+16+r}, {LOG2E:#x}, v{T+r}")
            for r in range(16):
                e(f"v_min_f32 v{T+16+r}, 0, v{T+16+r}")
            for r in range(16):
                e(f"v_exp_f32 v{T+16+r}, v{T+16+r}")
            for r in range(16):
                e(f"v_max_f32 v{T+r}, 0, v{T+r}")
            for r in range(16):
                e(f"v_add_f32 v{T+r}, {EPS6:#x}, v{T+r}")
            for r in range(16):
                e(f"v_add_f32 v{T+r}, v{T+r}, v{T+16+r}")
            for i in range(8):
                e(f"v_cvt_pk_bf16_f32 v{PQ+8*blk+i}, v{T+2*i}, v{T+2*i+1}")
        for i in range(8):
            e(f"v_accvgpr_read_b32 v{PS+i}, a{PL+i}")
        for half in range(2):
            n = 32 if half == 0 else 24
            for i in range(n):
                e(f"v_accvgpr_read_b32 v{T+i}, a{PL+8+32*half+i}")
            for i in range(n):
                e(f"v_add_f32 v{PS+(i&7)}, v{PS+(i&7)}, v{T+i}")
        for i in range(4):
            e(f"v_cvt_pk_bf16_f32 v{T+24+i}, v{PS+2*i}, v{PS+2*i+1}")
        e(f"v_and_b32 v{R9}, 31, v2")
        e(f"v_lshlrev_b32 v{R9}, 6, v{R9}")
        e(f"v_lshlrev_b32 v{G2}, 4, v1")
        e(f"v_add_u32 v{R9}, v{R9}, v{G2}")
        e(f"v_lshrrev_b32 v{G2}, 5, v2")
        e(f"v_lshlrev_b32 v{G2}, 3, v{G2}")
        e(f"v_add_u32 v{R9}, v{R9}, v{G2}")
        e(f"v_add_u32 v{R9}, {SCR}, v{R9}")
        e(f"ds_write_b64 v{R9}, v[{T+24}:{T+25}]")
        e(f"ds_write_b64 v{R9}, v[{T+26}:{T+27}] offset:2048")
        for i in range(24):
            e(f"v_accvgpr_read_b32 v{T+i}, a{GX+i}")
        e(f"v_mov_b32 v{G0}, 0")
        e(f"v_mov_b32 v{G1}, 0")
        for i in range(8):
            e(f"v_dot2_f32_bf16 v{G0}, v{T+i}, v{T+16+i}, v{G0}")
            e(f"v_dot2_f32_bf16 v{G1}, v{T+8+i}, v{T+16+i}, v{G1}")

    def att_b():
        KA = T
        e(f"v_and_b32 v{R9}, 31, v2")
        e(f"v_lshlrev_b32 v{R9}, 6, v{R9}")
        e(f"v_add_u32 v{R9}, v{R9}, v{R5}")
        e(f"v_add_u32 v{R9}, {SCR}, v{R9}")
        e(f"ds_read_b128 v[{KA}:{KA+3}], v{R9}")
        e(f"ds_read_b128 v[{KA+4}:{KA+7}], v{R9} offset:32")
        e(f"ds_read_b128 v[{KA+8}:{KA+11}], v{R9} offset:2048")
        e(f"ds_read_b128 v[{KA+12}:{KA+15}], v{R9} offset:2080")
        for off in (0x041F, 0x081F, 0x101F, 0x201F, 0x401F):
            e(f"ds_swizzle_b32 v{G2}, v{G0} offset:{off:#x}")
            e(f"ds_swizzle_b32 v{G3}, v{G1} offset:{off:#x}")
            e("s_waitcnt lgkmcnt(0)")
            e(f"v_add_f32 v{G0}, v{G0}, v{G2}")
            e(f"v_add_f32 v{G1}, v{G1}, v{G3}")
        for rb in range(2):
            for m in range(2):
                b = PQ + 8 * rb + 4 * m
                n = 16 * rb
                d = 32 + 16 * rb
                c1 = "0" if m == 0 else f"a[{n}:{n+15}]"
                c2 = "0" if m == 0 else f"a[{d}:{d+15}]"
                e(f"v_mfma_f32_32x32x16_bf16 a[{n}:{n+15}], v[{KA+4*m}:{KA+4*m+3}], v[{b}:{b+3}], {c1}")
                e(f"v_mfma_f32_32x32x16_bf16 a[{d}:{d+15}], v[{KA+8+4*m}:{KA+8+4*m+3}], v[{b}:{b+3}], {c2}")
        e(f"v_readlane_b32 s56, v{G0}, 32")
        e(f"v_readlane_b32 s58, v{G1}, 32")
        e("s_nop 1")
        e(f"v_add_f32 v{G0}, s56, v{G0}")
        e(f"v_add_f32 v{G1}, s58, v{G1}")
        e(f"v_mul_f32 v{G0}, {LOG2E | 0x80000000:#x}, v{G0}")
        e(f"v_mul_f32 v{G1}, {LOG2E | 0x80000000:#x}, v{G1}")
        e(f"v_exp_f32 v{G0}, v{G0}")
        e(f"v_exp_f32 v{G1}, v{G1}")
        e("s_nop 0")
        e(f"v_add_f32 v{G0}, 1.0, v{G0}")
        e(f"v_add_f32 v{G1}, 1.0, v{G1}")
        e(f"v_rcp_f32 v{PS}, v{G0}")
        e(f"v_rcp_f32 v{PS+1}, v{G1}")
        e("s_lshl_b32 s27, s48, 2")
        e(f"s_add_u32 s27, s27, {G_OFF}")
        e(f"v_mov_b32 v{G0}, 0")
        e.raw("{")
        e("v_cmp_eq_u32 vcc, 0, v2")
        e("s_and_saveexec_b64 s[78:79], vcc")
        e(f"buffer_store_dwordx2 v[{PS}:{PS+1}], v{G0}, s[28:31], s27 offen sc1")
        e("s_mov_b64 exec, s[78:79]")
        e.raw("}")
        e(f"v_and_b32 v{R9}, 31, v2")
        e(f"v_lshlrev_b32 v{R9}, 5, v{R9}")
        e(f"v_add_u32 v{R9}, v{R9}, v{R5}")
        e("s_lshl_b32 s48, s51, 3")
        e("s_lshl_b32 s27, s35, 1")
        e("s_add_u32 s48, s48, s27")
        e("s_lshl_b32 s48, s48, 5")
        e("s_add_u32 s48, s48, s50")
        e("s_lshl_b32 s48, s48, 11")
        e(f"s_add_u32 s48, s48, {O_OFF}")
        e("s_add_u32 s49, s48, 65536")
        e("s_nop 7")
        for rb in range(2):
            n = 16 * rb
            d = 32 + 16 * rb
            e(f"v_accvgpr_read_b32 v{G1}, a{d}")
            for r in range(16):
                e(f"v_accvgpr_read_b32 v{T+r}, a{n+r}")
            e(f"v_add_f32 v{G1}, {EPS6:#x}, v{G1}")
            e(f"v_rcp_f32 v{G1}, v{G1}")
            e("s_nop 0")
            for r in range(16):
                e(f"v_mul_f32 v{T+r}, v{T+r}, v{G1}")
            P = T + 16 + 8 * rb
            for i in range(8):
                e(f"v_cvt_pk_bf16_f32 v{P+i}, v{T+2*i}, v{T+2*i+1}")
            e("s_nop 1")
            e(f"v_permlane32_swap_b32 v{P+0}, v{P+2}")
            e(f"v_permlane32_swap_b32 v{P+1}, v{P+3}")
            e(f"v_permlane32_swap_b32 v{P+4}, v{P+6}")
            e(f"v_permlane32_swap_b32 v{P+5}, v{P+7}")
            e(f"buffer_store_dwordx4 v[{P}:{P+3}], v{R9}, s[28:31], s{48+rb} offen sc1")
            e(f"buffer_store_dwordx4 v[{P+4}:{P+7}], v{R9}, s[28:31], s{48+rb} offen offset:1024 sc1")

    e("v_and_b32 v3, 31, v2")
    e("v_lshrrev_b32 v4, 1, v1")
    e("v_lshlrev_b32 v4, 6, v4")
    e("v_add_u32 v4, v4, v3")
    e("v_lshlrev_b32 v4, 7, v4")
    e("v_bfe_u32 v5, v3, 1, 3")
    e("v_lshrrev_b32 v6, 5, v2")
    for s in range(4):
        e(f"v_add_u32 v7, {2*s}, v6")
        e("v_xor_b32 v7, v7, v5")
        e(f"v_lshl_add_u32 v{14+s}, v7, 4, v4")
        e(f"v_add_u32 v{18+s}, {2*STG}, v{14+s}")
    e("v_lshrrev_b32 v3, 5, v2")
    e("v_lshlrev_b32 v3, 11, v3")
    e("v_bfe_u32 v4, v2, 2, 2")
    e("v_lshl_add_u32 v3, v4, 8, v3")
    e("v_bfe_u32 v5, v2, 4, 1")
    e("v_lshl_add_u32 v3, v5, 5, v3")
    e("v_and_b32 v5, 3, v2")
    e("v_lshl_add_u32 v3, v5, 3, v3")
    e("v_and_b32 v5, 1, v1")
    e("v_lshlrev_b32 v5, 1, v5")
    for j in range(2):
        e(f"v_add_u32 v6, {j}, v5")
        e("v_xor_b32 v6, v6, v4")
        e("v_lshl_add_u32 v6, v6, 6, v3")
        e(f"v_add_u32 v{22+j}, {BOFF}, v6")
        e(f"v_add_u32 v{28+j}, {BOFF+2*STG}, v6")

    AF = 32
    BF = 48
    ACC = 64
    for r in range(128):
        e(f"v_mov_b32 v{ACC+r}, 0")

    def read_groups(stage, s, buf):
        g = []
        va = 14 + 4 * (stage >> 1) + s
        so = (stage & 1) * STG
        for rb in range(2):
            d = AF + buf * 8 + rb * 4
            g.append([f"ds_read_b128 v[{d}:{d+3}], v{va} offset:{so + rb*4096}"])
        for b in range(2):
            vb = (22 if stage < 2 else 28) + b
            d = BF + buf * 8 + b * 4
            g.append([f"ds_read_b64_tr_b16 v[{d}:{d+1}], v{vb} offset:{so + 4*s*1024}"])
            g.append([f"ds_read_b64_tr_b16 v[{d+2}:{d+3}], v{vb} offset:{so + 4*s*1024+1024}"])
        return g

    def mfmas(buf, aset):
        m = []
        for b in range(2):
            for rb in range(2):
                a = AF + buf * 8 + rb * 4
                bb = BF + buf * 8 + b * 4
                c = ACC + aset * 64 + (b * 2 + rb) * 16
                m.append(f"v_mfma_f32_32x32x16_bf16 v[{c}:{c+15}], v[{bb}:{bb+3}], v[{a}:{a+3}], v[{c}:{c+15}]")
        return m

    def kstep(q, aset, dma, wait_n, last, after_barrier=None, ph2=False, t=None, extra=None, need=()):
        dg = dma_groups((q + 3) % NS, ph2) if (dma and "n3dma" not in EXP) else []
        extra = list(extra or [])
        per = (len(extra) + 15) // 16

        def ex():
            for _ in range(per):
                if extra:
                    tg, e.tag = e.tag, "att"
                    for x in extra.pop(0):
                        e(x)
                    e.tag = tg
        for s in range(4):
            cur = s & 1
            if s < 3:
                rd = read_groups(q, s + 1, cur ^ 1)
            elif not last:
                rd = read_groups((q + 1) % NS, 0, cur ^ 1)
            else:
                rd = []
            e("s_waitcnt lgkmcnt(0)")
            mf = mfmas(cur, aset)
            dd = dg[2 * s:2 * s + 2]
            e.tag = ("D", None if t is None else t + 3)
            e(mf[0])
            for g in rd[0:3]:
                for x in g:
                    e(x)
            ex()
            e(mf[1])
            for g in rd[3:6]:
                for x in g:
                    e(x)
            ex()
            e(mf[2])
            for g in dd[0:1]:
                for x in g:
                    e(x)
            ex()
            e(mf[3])
            for g in dd[1:2]:
                for x in g:
                    e(x)
            ex()
            if s == 2 and not last:
                if wait_n is None:
                    wn = e.vm_needed([("D", t + 1)] + list(need))
                else:
                    wn = wait_n
                e(f"s_waitcnt vmcnt({wn}) lgkmcnt(0)")
                e("s_barrier")
                if after_barrier:
                    after_barrier()

    def signal():
        e("s_cmp_eq_u32 s35, 0")
        e("s_cbranch_scc0 K3_NOSIG")
        e("v_mov_b32 v30, 1")
        e("v_mov_b32 v31, 0")
        e("s_lshl_b32 s3, s51, 2")
        e("v_cmp_eq_u32 vcc, 0, v2")
        e("s_and_saveexec_b64 s[78:79], vcc")
        e("buffer_atomic_add v30, v31, s[16:19], s3 offen sc1")
        e("s_mov_b64 exec, s[78:79]")
        e.label("K3_NOSIG")

    e("s_waitcnt vmcnt(16)")
    e("s_barrier")
    for g in read_groups(0, 0, 0):
        for s in g:
            e(s)
    if "stamp3" in EXP:
        e("s_memtime s[82:83]")
    e("s_lshr_b32 s44, s33, 1")
    e("s_lshl_b32 s44, s44, 2")
    L = e.capture(att_loads)
    A = e.capture(att_a)
    B = e.capture(att_b)

    def split(lst, n):
        k = (len(lst) + n - 1) // n
        return [lst[i * k:(i + 1) * k] for i in range(n)]
    A0, A1 = split(A, 2)
    B0, B1 = split(B, 2)
    kstep(0, 1, True, None, False, t=0, extra=L)
    kstep(1, 1, True, None, False, t=1)
    kstep(2, 1, True, None, False, t=2, need=["att"])
    stamp()
    kstep(3, 1, True, None, False, t=3, extra=A0)
    kstep(0, 1, True, None, False, t=4, extra=A1)
    stamp()
    kstep(1, 1, True, None, False, t=5)
    stamp()
    kstep(2, 1, True, None, False, t=6, extra=B0)
    kstep(3, 1, True, None, False, t=7, extra=B1)
    stamp()
    kstep(0, 1, True, None, False, t=8)
    kstep(1, 1, True, None, False, t=9, need=["att"], after_barrier=signal)
    kstep(2, 1, True, None, False, t=10)
    kstep(3, 1, True, None, False, t=11)
    stamp()
    stamp()
    for q in range(3):
        kstep(q, 1, True, 14, False)
    e("v_mov_b32 v31, 0")
    e("buffer_load_dword v30, v31, s[16:19], s44 offen sc1")
    kstep(3, 1, True, 14, False)
    kstep(0, 1, True, 14, False)
    e("v_readfirstlane_b32 s3, v30")
    e("s_cmp_ge_u32 s3, 32")
    e("s_cbranch_scc1 K3_READY")
    e("s_mov_b32 s47, 0")
    e.label("K3_SPIN")
    e("s_sleep 8")
    e("buffer_load_dword v30, v31, s[16:19], s44 offen sc1")
    e("s_waitcnt vmcnt(0)")
    e("v_readfirstlane_b32 s3, v30")
    e("s_add_u32 s47, s47, 1")
    e("s_cmp_ge_u32 s47, 0x20000")
    e("s_cbranch_scc1 K3_READY")
    e("s_cmp_ge_u32 s3, 32")
    e("s_cbranch_scc0 K3_SPIN")
    e.label("K3_READY")
    for i in range(4):
        e(f"s_mov_b32 s{52+i}, {i*8*A2_LD}")
    e("s_movk_i32 s27, 128")
    e("s_cmp_eq_u32 s36, 0")
    e("s_cbranch_scc0 K3_NOSW")
    for i in range(4):
        e(f"s_movk_i32 s{52+i}, {i*256}")
    e("s_movk_i32 s27, 4096")
    e("s_lshl_b32 s3, s33, 18")
    e(f"s_add_u32 s3, s3, {O_OFF}")
    e("s_add_u32 s4, s74, s3")
    e("s_addc_u32 s5, s75, 0")
    e("s_and_b32 s5, s5, 0xffff")
    e("s_mov_b32 s6, 0x40000")
    e("v_lshrrev_b32 v3, 3, v2")
    e("v_lshlrev_b32 v3, 5, v3")
    e("v_lshlrev_b32 v4, 16, v1")
    e("v_add_u32 v3, v3, v4")
    e("v_lshrrev_b32 v5, 4, v2")
    e("v_and_b32 v6, 7, v2")
    e("v_xor_b32 v7, v6, v5")
    for par in range(2):
        if par:
            e("v_xor_b32 v7, 4, v7")
        e("v_lshrrev_b32 v8, 1, v7")
        e("v_lshl_add_u32 v8, v8, 10, v3")
        e("v_and_b32 v9, 1, v7")
        e(f"v_lshl_add_u32 v{10+par}, v9, 4, v8")
    e.label("K3_NOSW")
    kstep(1, 1, True, 14, False, ph2=True)
    kstep(2, 1, True, 14, False, ph2=True)
    kstep(3, 1, True, 14, False, ph2=True)
    stamp()
    e("s_mov_b32 s63, 0")
    e.label("K3_LOOP2")
    for q in range(4):
        kstep(q, 0, True, 14, False, ph2=True)
    e("s_add_u32 s63, s63, 1")
    e("s_cmp_lt_u32 s63, 3")
    e("s_cbranch_scc1 K3_LOOP2")
    kstep(0, 0, True, 14, False, ph2=True)
    kstep(1, 0, False, 8, False)
    kstep(2, 0, False, 0, False)
    kstep(3, 0, False, 0, True)
    if "stamp3" in EXP:
        e("s_memtime s[84:85]")
    e("v_and_b32 v3, 31, v2")
    e("v_lshrrev_b32 v4, 1, v1")
    e("v_lshlrev_b32 v4, 6, v4")
    e("v_add_u32 v3, v3, v4")
    e("v_lshlrev_b32 v4, 2, v3")
    e("s_lshl_b32 s3, s33, 9")
    e(f"s_add_u32 s3, s3, {G_OFF}")
    e("buffer_load_dword v24, v4, s[28:31], s3 offen sc1")
    e("buffer_load_dword v25, v4, s[28:31], s3 offen offset:128 sc1")
    e("s_waitcnt vmcnt(0)")
    e("v_sub_f32 v26, 1.0, v24")
    e("v_sub_f32 v27, 1.0, v25")
    e("s_cmp_eq_u32 s36, 0")
    e("s_cselect_b64 vcc, -1, 0")
    e("s_nop 1")
    e("v_cndmask_b32 v24, v26, v24, vcc")
    e("v_cndmask_b32 v25, v27, v25, vcc")
    e("s_nop 3")
    for t in range(4):
        rb = t & 1
        c1 = ACC + t * 16
        c2 = ACC + 64 + t * 16
        for r in range(16):
            e(f"v_mul_f32 v{c1+r}, v{c1+r}, v{24+rb}")
        for r in range(16):
            e(f"v_fmac_f32 v{c1+r}, v{c2+r}, v{26+rb}")
    e("s_lshl_b32 s3, s33, 3")
    e("s_add_u32 s3, s3, s34")
    e("s_lshl_b32 s3, s3, 1")
    e("s_add_u32 s38, s3, s36")
    e("s_xor_b32 s39, s38, 1")
    for r_ in (38, 39):
        e(f"s_lshl_b32 s{r_}, s{r_}, 2")
        e(f"s_add_u32 s{r_}, s{r_}, s35")
        e(f"s_lshl_b32 s{r_}, s{r_}, 13")
        e(f"s_add_u32 s{r_}, s{r_}, {X_OFF}")
    e("v_lshlrev_b32 v5, 4, v2")
    srd(e, 40, 98, 99, 2048 * 2048)
    e("v_lshlrev_b32 v6, 11, v3")
    e("v_lshrrev_b32 v7, 5, v2")
    e("v_lshl_add_u32 v6, v7, 4, v6")
    e("s_lshl_b32 s47, s33, 18")
    e("s_lshl_b32 s3, s36, 16")
    e("s_add_u32 s47, s47, s3")
    e("s_lshl_b32 s3, s34, 8")
    e("s_add_u32 s47, s47, s3")
    e("s_and_b32 s3, s35, 1")
    e("s_lshl_b32 s3, s3, 7")
    e("s_add_u32 s47, s47, s3")
    e("s_cmp_eq_u32 s36, 0")
    e("s_cbranch_scc0 K3_S1")
    for sp in range(2):
        if sp == 1:
            e.label("K3_S1")
        keep = sp
        send = sp ^ 1
        for j in range(2):
            c = ACC + (j * 2 + send) * 16
            for rg in range(4):
                e(f"buffer_store_dwordx4 v[{c+4*rg}:{c+4*rg+3}], v5, s[28:31], s39 offen offset:{rg*1024} sc1")
            if j == 0:
                e("s_add_u32 s39, s39, 4096")
        e("s_waitcnt vmcnt(0)")
        e("s_barrier")
        e("s_cmp_eq_u32 s35, 0")
        e(f"s_cbranch_scc0 K3_NOFLAG{sp}")
        e("v_mov_b32 v30, 1")
        e("v_mov_b32 v31, 0")
        e("s_lshl_b32 s3, s2, 7")
        e(f"s_add_u32 s3, s3, {FLG_OFF}")
        e("v_cmp_eq_u32 vcc, 0, v2")
        e("s_and_saveexec_b64 s[78:79], vcc")
        e("buffer_store_dword v30, v31, s[28:31], s3 offen sc1")
        e("s_mov_b64 exec, s[78:79]")
        e.label(f"K3_NOFLAG{sp}")
        e("s_xor_b32 s49, s2, 1")
        e("s_lshl_b32 s49, s49, 7")
        e(f"s_add_u32 s49, s49, {FLG_OFF}")
        e("v_mov_b32 v31, 0")
        e("s_mov_b32 s56, 0")
        e.label(f"K3_XSPIN{sp}")
        e("buffer_load_dword v30, v31, s[28:31], s49 offen sc1")
        e("s_waitcnt vmcnt(0)")
        e("v_readfirstlane_b32 s3, v30")
        e("s_add_u32 s56, s56, 1")
        e("s_cmp_ge_u32 s56, 0x20000")
        e(f"s_cbranch_scc1 K3_XGO{sp}")
        e("s_cmp_eq_u32 s3, 1")
        e(f"s_cbranch_scc1 K3_XGO{sp}")
        e("s_sleep 2")
        e(f"s_branch K3_XSPIN{sp}")
        e.label(f"K3_XGO{sp}")
        RX = 128
        for j in range(2):
            for rg in range(4):
                e(f"buffer_load_dwordx4 v[{RX+16*j+4*rg}:{RX+16*j+4*rg+3}], v5, s[28:31], s38 offen offset:{rg*1024} sc1")
            if j == 0:
                e("s_add_u32 s38, s38, 4096")
        for j in range(2):
            e(f"s_waitcnt vmcnt({4*(1-j)})")
            c = ACC + (j * 2 + keep) * 16
            for r in range(16):
                e(f"v_add_f32 v{c+r}, v{c+r}, v{RX+16*j+r}")
            P = 32 + 8 * j
            for i in range(8):
                e(f"v_cvt_pk_bf16_f32 v{P+i}, v{c+2*i}, v{c+2*i+1}")
            e("s_nop 1")
            e(f"v_permlane32_swap_b32 v{P+0}, v{P+2}")
            e(f"v_permlane32_swap_b32 v{P+1}, v{P+3}")
            e(f"v_permlane32_swap_b32 v{P+4}, v{P+6}")
            e(f"v_permlane32_swap_b32 v{P+5}, v{P+7}")
            e(f"buffer_store_dwordx4 v[{P}:{P+3}], v6, s[40:43], s47 offen offset:{64*j}")
            e(f"buffer_store_dwordx4 v[{P+4}:{P+7}], v6, s[40:43], s47 offen offset:{64*j+32}")
        if sp == 0:
            e("s_branch K3_FIN")
    e.label("K3_FIN")
    if "fine" in EXP:
        e("s_waitcnt lgkmcnt(0)")
        for i in range(7):
            e(f"v_mov_b32 v{48+2*i}, s{STP[i]}")
            e(f"v_mov_b32 v{49+2*i}, s{STP[i]+1}")
        e("s_lshl_b32 s3, s2, 8")
        e("s_lshl_b32 s64, s35, 6")
        e("s_add_u32 s3, s3, s64")
        e(f"s_add_u32 s3, s3, {201<<20}")
        e("v_mov_b32 v3, 0")
        e("v_cmp_eq_u32 vcc, 0, v2")
        e("s_and_saveexec_b64 s[64:65], vcc")
        for i in range(4):
            e(f"buffer_store_dwordx4 v[{48+4*i}:{51+4*i}], v3, s[28:31], s3 offen offset:{16*i}")
        e("s_mov_b64 exec, s[64:65]")
    if "stamp3" in EXP:
        stamp_end(e, 28, 35, 2)
    e.label("K3_END")
    e("s_endpgm")
    return kn, e.text(), kernel_desc(kn, 360, 256), (256, 256, 135168)


def gen_k4():
    e = E()
    kn = "k4_comb_kernel"
    e.raw(f".globl {kn}\n.p2align 8\n.type {kn},@function")
    e.label(kn)
    e("s_cmp_ge_u32 s2, 512")
    e("s_cbranch_scc1 K4_END")
    e("s_load_dwordx2 s[64:65], s[0:1], 64")
    e("s_load_dwordx2 s[72:73], s[0:1], 80")
    e("v_lshrrev_b32 v1, 6, v0")
    e("v_and_b32 v2, 63, v0")
    e("v_readfirstlane_b32 s35, v1")
    e("s_waitcnt lgkmcnt(0)")
    srd(e, 28, 72, 73, 0x10000000)
    srd(e, 4, 64, 65, 2048 * 2048)
    e("s_lshl_b32 s3, s2, 2")
    e("s_add_u32 s3, s3, s35")
    e("s_lshl_b32 s3, s3, 12")
    e(f"s_add_u32 s3, s3, {P_OFF}")
    e(f"s_add_u32 s36, s3, {1<<23}")
    e("v_lshlrev_b32 v3, 4, v2")
    for rg in range(4):
        e(f"buffer_load_dwordx4 v[{16+4*rg}:{19+4*rg}], v3, s[28:31], s3 offen offset:{rg*1024}")
        e(f"buffer_load_dwordx4 v[{32+4*rg}:{35+4*rg}], v3, s[28:31], s36 offen offset:{rg*1024}")
    e("s_lshr_b32 s37, s2, 5")
    e("s_bfe_u32 s38, s2, 0x30002")
    e("s_bfe_u32 s39, s2, 0x10001")
    e("s_and_b32 s40, s2, 1")
    e("s_lshl_b32 s37, s37, 7")
    e("s_lshl_b32 s39, s39, 6")
    e("s_add_u32 s37, s37, s39")
    e("s_and_b32 s41, s35, 1")
    e("s_lshl_b32 s41, s41, 5")
    e("s_add_u32 s37, s37, s41")
    e("s_lshl_b32 s37, s37, 11")
    e("s_lshl_b32 s38, s38, 8")
    e("s_lshl_b32 s40, s40, 7")
    e("s_add_u32 s38, s38, s40")
    e("s_lshr_b32 s41, s35, 1")
    e("s_lshl_b32 s41, s41, 6")
    e("s_add_u32 s38, s38, s41")
    e("s_add_u32 s37, s37, s38")
    e("v_and_b32 v4, 31, v2")
    e("v_lshlrev_b32 v4, 11, v4")
    e("v_lshrrev_b32 v5, 5, v2")
    e("v_lshl_add_u32 v4, v5, 4, v4")
    e("s_waitcnt vmcnt(0)")
    for r in range(16):
        e(f"v_add_f32 v{16+r}, v{16+r}, v{32+r}")
    P = 48
    for i in range(8):
        e(f"v_cvt_pk_bf16_f32 v{P+i}, v{16+2*i}, v{16+2*i+1}")
    e("s_nop 1")
    e(f"v_permlane32_swap_b32 v{P+0}, v{P+2}")
    e(f"v_permlane32_swap_b32 v{P+1}, v{P+3}")
    e(f"v_permlane32_swap_b32 v{P+4}, v{P+6}")
    e(f"v_permlane32_swap_b32 v{P+5}, v{P+7}")
    e(f"buffer_store_dwordx4 v[{P}:{P+3}], v4, s[4:7], s37 offen")
    e(f"buffer_store_dwordx4 v[{P+4}:{P+7}], v4, s[4:7], s37 offen offset:32")
    e.label("K4_END")
    e("s_endpgm")
    return kn, e.text(), kernel_desc(kn, 64, 64), (512, 256, 0)


def main():
    kernels = [gen_k1(), gen_k3()]
    which = sys.argv[2] if len(sys.argv) > 2 else None
    out = []
    for kn, _, _, (g, b, lds) in kernels:
        out.append(f"; @launch kernel={kn} grid=({g},1,1) block=({b},1,1) lds={lds}")
    out.append('.amdgcn_target "amdgcn-amd-amdhsa--gfx950"')
    out.append(".text")
    for kn, body, desc, _ in kernels:
        out.append(body)
        out.append(desc)
    open(sys.argv[1], "w").write("\n".join(out))


if __name__ == "__main__":
    main()
```

```python
import sys, os
EXP = os.environ.get("EXP", "")

NAME = "gated_mix__linear_attn_block__glu_gated_bilinear__prompt"

PQ_OFF = 0
A2_OFF = 4 << 20
KVP_OFF = 24 << 20
G_OFF = 27 << 20
P_OFF = 28 << 20
FLG_OFF = (27 << 20) + 65536
A2_LD = 4608 * 2

LOG2E = 0x3fb8aa3b
EPS6 = 0x358637bd


class E:
    def __init__(self):
        self.lines = []
        self.vmlog = []
        self.tag = None

    def __call__(self, s):
        self.lines.append("    " + s)
        if s.startswith("buffer_"):
            self.vmlog.append(self.tag)

    def vm_needed(self, tags):
        last = -1
        for i, t in enumerate(self.vmlog):
            if t in tags:
                last = i
        return len(self.vmlog) - 1 - last

    def capture(self, fn):
        saved, savedlog = self.lines, self.vmlog
        self.lines, self.vmlog = [], []
        fn()
        out, self.lines, self.vmlog = self.lines, saved, savedlog
        groups, cur = [], None
        for l in out:
            l = l.strip()
            if l == "{":
                cur = []
            elif l == "}":
                groups.append(cur)
                cur = None
            elif cur is not None:
                cur.append(l)
            else:
                groups.append([l])
        return groups

    def label(self, s):
        self.lines.append(s + ":")

    def raw(self, s):
        self.lines.append(s)

    def text(self):
        return "\n".join(self.lines) + "\n"


def srd(e, d, base_lo, base_hi, nbytes):
    e(f"s_mov_b32 s{d}, s{base_lo}")
    e(f"s_and_b32 s{d+1}, s{base_hi}, 0xffff")
    e(f"s_mov_b32 s{d+2}, {nbytes:#x}")
    e(f"s_mov_b32 s{d+3}, 0x00020000")


def kernel_desc(name, vgpr, accum, sgpr=102):
    return f""".section .rodata,"a"
.p2align 6
.amdhsa_kernel {name}
  .amdhsa_next_free_vgpr {vgpr}
  .amdhsa_next_free_sgpr {sgpr}
  .amdhsa_accum_offset {accum}
  .amdhsa_group_segment_fixed_size 0
  .amdhsa_kernarg_size 88
  .amdhsa_user_sgpr_count 2
  .amdhsa_user_sgpr_kernarg_segment_ptr 1
  .amdhsa_system_sgpr_workgroup_id_x 1
.end_amdhsa_kernel
.text
"""


def interleave(e, mfmas, fillers, per_gap=None, start=0):
    n = len(mfmas)
    fi = 0
    nf = len(fillers)
    for i, m in enumerate(mfmas):
        e(m)
        if i < start:
            continue
        if per_gap is None:
            tgt = nf * (i + 1 - start) // max(1, (n - start))
        else:
            tgt = min(nf, per_gap * (i + 1 - start))
        while fi < tgt:
            for s in fillers[fi]:
                e(s)
            fi += 1
    while fi < nf:
        for s in fillers[fi]:
            e(s)
        fi += 1


def stamp_end(e, srd_ws, wave_sgpr, lane_v):
    e("s_waitcnt vmcnt(0)")
    e("s_memtime s[86:87]")
    e("s_memrealtime s[90:91]")
    e("s_waitcnt lgkmcnt(0)")
    for i in range(12):
        e(f"v_mov_b32 v{32+i}, s{80+i}")
    e("s_lshl_b32 s3, s2, 8")
    e(f"s_lshl_b32 s92, s{wave_sgpr}, 6")
    e("s_add_u32 s3, s3, s92")
    e(f"s_add_u32 s3, s3, {200<<20}")
    e("v_mov_b32 v3, 0")
    e(f"v_cmp_eq_u32 vcc, 0, v{lane_v}")
    e("s_and_saveexec_b64 s[92:93], vcc")
    for i in range(3):
        e(f"buffer_store_dwordx4 v[{32+4*i}:{35+4*i}], v3, s[{srd_ws}:{srd_ws+3}], s3 offen offset:{16*i}")


def gen_k1():
    e = E()
    kn = "k1_gemm1_kernel"
    STG = 36864
    BOFF = 16384
    NS = 4
    e.raw(f".globl {kn}\n.p2align 8\n.type {kn},@function")
    e.label(kn)
    e("s_cmp_ge_u32 s2, 256")
    e("s_cbranch_scc1 K1_END")
    if "stamp" in EXP:
        e("s_memtime s[80:81]")
        e("s_memrealtime s[88:89]")
    e("s_load_dwordx4 s[64:67], s[0:1], 0")
    e("s_load_dwordx4 s[68:71], s[0:1], 32")
    e("s_load_dwordx2 s[72:73], s[0:1], 80")
    e("s_load_dwordx2 s[96:97], s[0:1], 16")
    e("s_load_dwordx2 s[98:99], s[0:1], 48")
    e("s_and_b32 s3, s2, 7")
    e("s_lshr_b32 s32, s2, 3")
    e("s_and_b32 s33, s32, 7")
    e("s_lshr_b32 s32, s32, 3")
    e("s_lshl_b32 s3, s3, 2")
    e("s_add_u32 s34, s3, s32")
    e("v_lshrrev_b32 v1, 6, v0")
    e("v_and_b32 v2, 63, v0")
    e("v_readfirstlane_b32 s35, v1")
    e("s_and_b32 s37, s34, 1")
    e("s_lshr_b32 s38, s34, 1")
    e("s_mul_i32 s39, s38, 7")
    e("s_lshl_b32 s40, s37, 2")
    e("s_add_u32 s40, s39, s40")
    e("s_add_u32 s41, s39, 3")
    e("s_lshl_b32 s42, s34, 6")
    e("s_add_u32 s48, s42, 2048")
    e("s_add_u32 s49, s42, 4096")
    e("s_lshl_b32 s43, s38, 7")
    e("s_add_u32 s47, s43, 64")
    e("s_lshl_b32 s44, s41, 6")
    e("s_cmp_eq_u32 s37, 0")
    e("s_cselect_b32 s50, s43, s44")
    e("s_cselect_b32 s51, s47, s44")
    e(f"s_mov_b32 s58, {32*7168}")
    e(f"s_cselect_b32 s58, {32*6144}, s58")
    e("s_lshl_b32 s44, s40, 6")
    for j in range(3):
        e(f"s_add_u32 s{52+2*j}, s44, {64*j}")
        e(f"s_add_u32 s{53+2*j}, s44, {64*j}")
    e("s_lshr_b32 s36, s35, 1")
    e("s_cmp_eq_u32 s36, 0")
    for i in range(5):
        e(f"s_cselect_b32 s{74+i}, s{48+2*i}, s{49+2*i}")
    e("s_waitcnt lgkmcnt(0)")
    e("s_lshl_b32 s3, s33, 19")
    e("s_add_u32 s64, s64, s3")
    e("s_addc_u32 s65, s65, 0")
    srd(e, 4, 64, 65, 256 * 2048)
    srd(e, 8, 66, 67, 1024 * 6144)
    srd(e, 12, 68, 69, 1024 * 7168)
    srd(e, 16, 70, 71, 1024 * 7168)
    srd(e, 28, 72, 73, 0x10000000)
    e("s_cmp_eq_u32 s36, 0")
    for i in range(4):
        e(f"s_cselect_b32 s{20+i}, s{12+i}, s{16+i}")
    e("s_cmp_eq_u32 s37, 0")
    for i in range(4):
        e(f"s_cselect_b32 s{24+i}, s{8+i}, s{20+i}")
    if "nostag" in EXP:
        e("s_mov_b32 s79, 0")
    else:
        e("s_lshl_b32 s79, s33, 2")
        e("s_and_b32 s3, s34, 3")
        e("s_add_u32 s79, s79, s3")
    e("s_lshl_b32 s59, s79, 6")
    e(f"s_mul_i32 s60, s79, {32*6144}")
    e(f"s_mul_i32 s61, s79, {32*7168}")
    e("s_mul_i32 s62, s79, s58")
    e("s_lshl_b32 s45, s35, 12")
    e("s_lshl_b32 s46, s35, 10")
    e(f"s_add_u32 s46, s46, {BOFF}")
    e("v_lshrrev_b32 v3, 2, v2")
    e("v_lshlrev_b32 v4, 6, v1")
    e("v_add_u32 v4, v3, v4")
    e("v_lshlrev_b32 v4, 11, v4")
    e("v_lshrrev_b32 v5, 4, v2")
    e("v_and_b32 v6, 3, v2")
    e("v_xor_b32 v7, v6, v5")
    e("v_lshl_add_u32 v10, v7, 4, v4")
    e("v_and_b32 v4, 1, v1")
    e("v_lshlrev_b32 v4, 4, v4")
    e("v_add_u32 v3, v3, v4")
    e("v_lshlrev_b32 v4, 4, v6")
    e("s_movk_i32 s3, 6144")
    e("v_mul_lo_u32 v11, v3, s3")
    e("v_add_u32 v11, v11, v4")
    e("s_movk_i32 s3, 7168")
    e("v_mul_lo_u32 v12, v3, s3")
    e("v_add_u32 v12, v12, v4")
    e("s_cmp_eq_u32 s37, 0")
    e("s_cselect_b64 vcc, -1, 0")
    e("s_nop 1")
    e("v_cndmask_b32 v13, v12, v11, vcc")

    dsrd = [8, 24, 20, 20, 20]
    dvoff = [11, 13, 12, 12, 12]
    dkrun = [60, 62, 61, 61, 61]

    def dma_groups(stage):
        g = []
        for i in range(4):
            g.append([f"s_add_u32 m0, s45, {stage*STG + i*1024}",
                      f"s_add_u32 s3, s59, {i*32768}",
                      f"buffer_load_dwordx4 v10, s[4:7], s3 offen lds"])
        for i in range(5):
            g.append([f"s_add_u32 m0, s46, {stage*STG + i*4096}",
                      f"s_add_u32 s3, s{dkrun[i]}, s{74+i}",
                      f"buffer_load_dwordx4 v{dvoff[i]}, s[{dsrd[i]}:{dsrd[i]+3}], s3 offen lds"])
        g[-1] = g[-1] + ["s_add_u32 s79, s79, 1",
                         "s_and_b32 s79, s79, 31",
                         "s_lshl_b32 s59, s79, 6",
                         f"s_mul_i32 s60, s79, {32*6144}",
                         f"s_mul_i32 s61, s79, {32*7168}",
                         "s_mul_i32 s62, s79, s58"]
        order = [0, 4, 1, 5, 2, 6, 3, 7, 8]
        return [g[i] for i in order]

    if "dopf" in EXP:
        e("v_lshlrev_b32 v3, 4, v0")
        e("s_lshl_b32 s3, s34, 14")
        n = 0
        for (sr, per, base) in ((4, 4, "s3"), (8, 6, None), (12, 7, None), (16, 7, None)):
            if base is None:
                e(f"s_mul_i32 s3, s2, {per*4096}")
            for i in range(per):
                e(f"buffer_load_dwordx4 a[{96+4*n}:{99+4*n}], v3, s[{sr}:{sr+3}], s3 offen")
                if i + 1 < per:
                    e("s_add_u32 s3, s3, 4096")
                n += 1
    for st in range(NS):
        for g in dma_groups(st):
            for s in g:
                e(s)

    e("v_and_b32 v3, 31, v2")
    e("v_lshlrev_b32 v4, 6, v1")
    e("v_add_u32 v4, v4, v3")
    e("v_lshlrev_b32 v4, 6, v4")
    e("v_bfe_u32 v5, v3, 2, 2")
    e("v_lshrrev_b32 v6, 5, v2")
    for s in range(2):
        e(f"v_add_u32 v7, {2*s}, v6")
        e("v_xor_b32 v7, v7, v5")
        e(f"v_lshl_add_u32 v{14+s}, v7, 4, v4")
        for q in range(1, NS):
            e(f"v_add_u32 v{14+2*q+s}, {q*STG}, v{14+s}")
    e("v_lshrrev_b32 v3, 5, v2")
    e("v_lshlrev_b32 v3, 3, v3")
    e("v_bfe_u32 v4, v2, 2, 2")
    e("v_add_u32 v3, v3, v4")
    e("v_lshlrev_b32 v3, 6, v3")
    e("v_bfe_u32 v4, v2, 4, 1")
    e("v_lshlrev_b32 v4, 5, v4")
    e("v_add_u32 v3, v3, v4")
    e("v_and_b32 v4, 3, v2")
    e("v_lshlrev_b32 v4, 3, v4")
    e("v_add_u32 v3, v3, v4")
    for q in range(NS):
        e(f"v_add_u32 v{22+q}, {BOFF+q*STG}, v3")

    AF = 96
    BF = 112

    def accbase(rb, b):
        t = b * 2 + rb
        if t < 6:
            return ("a", 16 * t)
        return ("v", 32 + 16 * (t - 6))

    def acc(rb, b):
        k, o = accbase(rb, b)
        return f"{k}[{o}:{o+15}]"

    def accreg(rb, b, r):
        k, o = accbase(rb, b)
        return f"{k}{o+r}"

    for r in range(96):
        e(f"v_accvgpr_write_b32 a{r}, 0")
    for r in range(32, 256):
        e(f"v_mov_b32 v{r}, 0")

    def read_groups(stage, s, buf):
        g = []
        va = 14 + 2 * stage + s
        vb = 22 + stage
        for rb in range(2):
            d = AF + buf * 8 + rb * 4
            g.append([f"ds_read_b128 a[{d}:{d+3}], v{va} offset:{rb*2048}"])
        for b in range(10):
            d = BF + buf * 40 + b * 4
            g.append([f"ds_read_b64_tr_b16 a[{d}:{d+1}], v{vb} offset:{(b*2+s)*1024}"])
            g.append([f"ds_read_b64_tr_b16 a[{d+2}:{d+3}], v{vb} offset:{(b*2+s)*1024+256}"])
        return g

    def mfmas(buf):
        m = []
        for b in range(10):
            for rb in range(2):
                a = AF + buf * 8 + rb * 4
                bb = BF + buf * 40 + b * 4
                if b < 2:
                    m.append(f"v_mfma_f32_32x32x16_bf16 {acc(rb,b)}, a[{a}:{a+3}], a[{bb}:{bb+3}], {acc(rb,b)}")
                else:
                    m.append(f"v_mfma_f32_32x32x16_bf16 {acc(rb,b)}, a[{bb}:{bb+3}], a[{a}:{a+3}], {acc(rb,b)}")
        return m

    def merge(reads, dmas, nm):
        slots = [[] for _ in range(nm)]
        for i, g in enumerate(reads):
            slots[min(nm - 1, i // 2)].append(g)
        nd = len(dmas)
        for i, g in enumerate(dmas):
            slots[min(nm - 1, (i * nm) // max(1, nd) + 2)].append(g)
        return slots

    def emit_sub(mf, slots):
        for m, sl in zip(mf, slots):
            e(m)
            for g in sl:
                for s in g:
                    e(s)

    def k32step(q, dma_first, dma_second, wait_n, last):
        nodma = "nodma" in EXP
        d0 = dma_groups((q - 1) % NS)[5:] if (dma_first and not nodma) else []
        e("s_waitcnt lgkmcnt(0)")
        emit_sub(mfmas(0), merge(read_groups(q, 1, 1), d0, 20))
        if not last:
            e(f"s_waitcnt vmcnt({wait_n}) lgkmcnt(0)")
            e("s_barrier")
        else:
            e("s_waitcnt lgkmcnt(0)")
        d1 = dma_groups(q)[:5] if (dma_second and not nodma) else []
        rd = read_groups((q + 1) % NS, 0, 0) if not last else []
        emit_sub(mfmas(1), merge(rd, d1, 20))

    e("s_waitcnt vmcnt(27)")
    e("s_barrier")
    for g in read_groups(0, 0, 0):
        for s in g:
            e(s)
    e("s_mov_b32 s63, 0")
    if "stamp" in EXP:
        e("s_memtime s[82:83]")
    k32step(0, False, True, 18, False)
    e.label("K1_LOOP")
    for j in range(4):
        k32step((1 + j) % NS, True, True, 18, False)
    e("s_add_u32 s63, s63, 1")
    e("s_cmp_lt_u32 s63, 6")
    e("s_cbranch_scc1 K1_LOOP")
    k32step(1, True, True, 18, False)
    k32step(2, True, True, 18, False)
    k32step(3, True, True, 18, False)
    k32step(0, True, False, 18, False)
    k32step(1, False, False, 9, False)
    k32step(2, False, False, 0, False)
    k32step(3, False, False, 0, True)
    e("s_nop 15")
    e("s_nop 3")

    if "stamp" in EXP:
        e("s_memtime s[84:85]")
    if "noepi" in EXP:
        e("s_branch K1_END")
    e("v_mov_b32 v3, 0")
    e("v_lshlrev_b32 v4, 2, v0")
    e("s_lshl_b32 s3, s2, 7")
    e(f"s_add_u32 s3, s3, {FLG_OFF}")
    e("v_cmp_gt_u32 vcc, 32, v0")
    e("s_and_saveexec_b64 s[92:93], vcc")
    e("buffer_store_dword v3, v4, s[28:31], s3 offen")
    e("s_mov_b64 exec, s[92:93]")
    if "nopf3" not in EXP:
        srd(e, 8, 96, 97, 1024 * 2048)
        srd(e, 12, 98, 99, 3584 * 2048)
        e("v_lshlrev_b32 v3, 4, v0")
        e("s_lshl_b32 s3, s2, 13")
        for i in range(2):
            e(f"buffer_load_dwordx4 a[{96+4*i}:{99+4*i}], v3, s[8:11], s3 offen")
            e("s_add_u32 s3, s3, 4096")
        e("s_mul_i32 s3, s2, 28672")
        for i in range(7):
            e(f"buffer_load_dwordx4 a[{104+4*i}:{107+4*i}], v3, s[12:15], s3 offen")
            e("s_add_u32 s3, s3, 4096")
    W64 = "st32" not in EXP
    if W64:
        e("v_and_b32 v3, 15, v2")
        e("v_lshlrev_b32 v4, 6, v1")
        e("v_add_u32 v3, v3, v4")
        e("v_bfe_u32 v5, v2, 4, 1")
        e("v_lshlrev_b32 v5, 5, v5")
        e("v_lshrrev_b32 v4, 5, v2")
        e("v_lshl_add_u32 v5, v4, 4, v5")
    else:
        e("v_and_b32 v3, 31, v2")
        e("v_lshlrev_b32 v4, 6, v1")
        e("v_add_u32 v3, v3, v4")
        e("v_lshrrev_b32 v5, 5, v2")
        e("v_lshlrev_b32 v5, 4, v5")
    e(f"s_movk_i32 s3, {A2_LD}")
    e("v_mul_lo_u32 v26, v3, s3")
    e("v_add_u32 v26, v26, v5")
    e("v_lshlrev_b32 v27, 11, v3")
    e("v_add_u32 v27, v27, v5")
    e(f"s_mul_i32 s64, s33, {256*A2_LD}")
    e(f"s_add_u32 s64, s64, {A2_OFF + 2048}")
    e("s_lshl_b32 s65, s33, 19")
    e(f"s_add_u32 s65, s65, {PQ_OFF}")

    def swap_store(P, vaddr, soff):
        e("s_nop 1")
        e(f"v_permlane32_swap_b32 v{P+0}, v{P+2}")
        e(f"v_permlane32_swap_b32 v{P+1}, v{P+3}")
        e(f"v_permlane32_swap_b32 v{P+4}, v{P+6}")
        e(f"v_permlane32_swap_b32 v{P+5}, v{P+7}")
        if W64:
            e("s_nop 0")
            for i in range(4):
                e(f"v_permlane16_swap_b32 v{P+i}, v{P+4+i}")
            e(f"buffer_store_dwordx4 v[{P}:{P+3}], v{vaddr}, s[28:31], {soff} offen")
            e(f"s_add_u32 {soff}, {soff}, {16*(A2_LD if vaddr == 26 else 2048)}")
            e(f"buffer_store_dwordx4 v[{P+4}:{P+7}], v{vaddr}, s[28:31], {soff} offen")
        else:
            e(f"buffer_store_dwordx4 v[{P}:{P+3}], v{vaddr}, s[28:31], {soff} offen")
            e(f"buffer_store_dwordx4 v[{P+4}:{P+7}], v{vaddr}, s[28:31], {soff} offen offset:32")

    def glu_group_v(bg, sidx):
        for rb in range(2):
            _, G = accbase(rb, bg)
            _, U = accbase(rb, bg + 1)
            for i in range(8):
                e(f"v_pk_mul_f32 v[{G+2*i}:{G+2*i+1}], v[{G+2*i}:{G+2*i+1}], v[{U+2*i}:{U+2*i+1}]")
            for i in range(8):
                e(f"v_cvt_pk_bf16_f32 v{U+i}, v{G+2*i}, v{G+2*i+1}")
            e(f"s_add_u32 s3, s64, {sidx}")
            if rb:
                e(f"s_add_u32 s3, s3, {32*A2_LD}")
            swap_store(U, 26, "s3")

    glu_group_v(8, "s56")
    T = 192
    glu_group_v(6, "s54")
    KVA = 128
    PK = 232
    PV = 248
    ONES = 28
    for i in range(4):
        e(f"v_mov_b32 v{ONES+i}, 0x3f803f80")

    def phi16(src_fn, dst):
        for r in range(16):
            e(f"v_accvgpr_read_b32 v{dst+r}, {src_fn(r)}")
        for r in range(16):
            e(f"v_mul_f32 v{dst+16+r}, {LOG2E:#x}, v{dst+r}")
        for r in range(16):
            e(f"v_min_f32 v{dst+16+r}, 0, v{dst+16+r}")
        for r in range(16):
            e(f"v_exp_f32 v{dst+16+r}, v{dst+16+r}")
        for r in range(16):
            e(f"v_max_f32 v{dst+r}, 0, v{dst+r}")
        for r in range(16):
            e(f"v_add_f32 v{dst+r}, {EPS6:#x}, v{dst+r}")
        for r in range(16):
            e(f"v_add_f32 v{dst+r}, v{dst+r}, v{dst+16+r}")

    for rb in range(2):
        phi16(lambda r: accreg(rb, 0, r), T)
        for i in range(8):
            e(f"v_cvt_pk_bf16_f32 v{PK+i}, v{T+2*i}, v{T+2*i+1}")
        for r in range(16):
            e(f"v_accvgpr_read_b32 v{T+r}, {accreg(rb,1,r)}")
        for i in range(8):
            e(f"v_cvt_pk_bf16_f32 v{PV+i}, v{T+2*i}, v{T+2*i+1}")
        e("s_nop 1")
        for m in range(2):
            c1 = "0" if (rb == 0 and m == 0) else f"v[{KVA}:{KVA+15}]"
            c2 = "0" if (rb == 0 and m == 0) else f"v[{KVA+16}:{KVA+31}]"
            e(f"v_mfma_f32_32x32x16_bf16 v[{KVA}:{KVA+15}], v[{PK+4*m}:{PK+3+4*m}], v[{PV+4*m}:{PV+3+4*m}], {c1}")
            e(f"v_mfma_f32_32x32x16_bf16 v[{KVA+16}:{KVA+31}], v[{PK+4*m}:{PK+3+4*m}], v[{ONES}:{ONES+3}], {c2}")
    e("s_barrier")
    e("v_lshlrev_b32 v3, 4, v2")
    e("v_lshlrev_b32 v4, 13, v1")
    e("v_add_u32 v3, v3, v4")
    e("s_nop 7")
    e("s_nop 7")
    for rg in range(4):
        e(f"ds_write_b128 v3, v[{KVA+4*rg}:{KVA+4*rg+3}] offset:{rg*1024}")
    for rg in range(4):
        e(f"ds_write_b128 v3, v[{KVA+16+4*rg}:{KVA+16+4*rg+3}] offset:{4096+rg*1024}")
    glu_group_v(4, "s52")
    e("s_cmp_eq_u32 s37, 0")
    e("s_cbranch_scc0 K1_SLOT1_GLU")
    for rb in range(2):
        for r in range(16):
            e(f"v_accvgpr_read_b32 v{T+r}, {accreg(rb,2,r)}")
        for i in range(8):
            e(f"v_cvt_pk_bf16_f32 v{T+16+i}, v{T+2*i}, v{T+2*i+1}")
        e("s_add_u32 s3, s65, s50")
        if rb:
            e(f"s_add_u32 s3, s3, {32*2048}")
        swap_store(T + 16, 27, "s3")
        _, U = accbase(rb, 3)
        for i in range(8):
            e(f"v_cvt_pk_bf16_f32 v{T+24+i}, v{U+2*i}, v{U+2*i+1}")
        e("s_add_u32 s3, s65, s51")
        if rb:
            e(f"s_add_u32 s3, s3, {32*2048}")
        swap_store(T + 24, 27, "s3")
        e("s_nop 1")
    e("s_branch K1_SLOT1_DONE")
    e.label("K1_SLOT1_GLU")
    for rb in range(2):
        _, U = accbase(rb, 3)
        for r in range(16):
            e(f"v_accvgpr_read_b32 v{T+r}, {accreg(rb,2,r)}")
        for i in range(8):
            e(f"v_pk_mul_f32 v[{T+2*i}:{T+2*i+1}], v[{T+2*i}:{T+2*i+1}], v[{U+2*i}:{U+2*i+1}]")
        for i in range(8):
            e(f"v_cvt_pk_bf16_f32 v{U+i}, v{T+2*i}, v{T+2*i+1}")
        e("s_add_u32 s3, s64, s50")
        if rb:
            e(f"s_add_u32 s3, s3, {32*A2_LD}")
        swap_store(U, 26, "s3")
    e.label("K1_SLOT1_DONE")

    e("s_waitcnt lgkmcnt(0)")
    e("s_barrier")
    e("v_lshlrev_b32 v3, 4, v0")
    R = 160
    for w in range(4):
        e(f"ds_read_b128 v[{R+4*w}:{R+4*w+3}], v3 offset:{w*8192}")
        e(f"ds_read_b128 v[{R+16+4*w}:{R+16+4*w+3}], v3 offset:{w*8192+4096}")
    e("s_waitcnt lgkmcnt(0)")
    for half in range(2):
        b = R + 16 * half
        for i in range(4):
            e(f"v_add_f32 v{b+i}, v{b+i}, v{b+4+i}")
            e(f"v_add_f32 v{b+8+i}, v{b+8+i}, v{b+12+i}")
        for i in range(4):
            e(f"v_add_f32 v{b+i}, v{b+i}, v{b+8+i}")
    e("s_lshl_b32 s3, s34, 3")
    e("s_add_u32 s3, s3, s33")
    e("s_lshl_b32 s3, s3, 13")
    e(f"s_add_u32 s3, s3, {KVP_OFF}")
    e(f"buffer_store_dwordx4 v[{R}:{R+3}], v3, s[28:31], s3 offen")
    e("s_add_u32 s3, s3, 4096")
    e(f"buffer_store_dwordx4 v[{R+16}:{R+19}], v3, s[28:31], s3 offen")
    if "stamp" in EXP:
        stamp_end(e, 28, 35, 2)
    e.label("K1_END")
    e("s_endpgm")
    return kn, e.text(), kernel_desc(kn, 448, 256), (256, 256, 147456)


def gen_k2():
    e = E()
    kn = "k2_attn_kernel"
    e.raw(f".globl {kn}\n.p2align 8\n.type {kn},@function")
    e.label(kn)
    e("s_cmp_ge_u32 s2, 512")
    e("s_cbranch_scc1 K2_END")
    e("s_cmp_ge_u32 s2, 256")
    e("s_cbranch_scc0 K2_MAIN")
    e("s_load_dwordx2 s[64:65], s[0:1], 16")
    e("s_load_dwordx2 s[66:67], s[0:1], 48")
    e("s_sub_u32 s3, s2, 256")
    e("v_lshlrev_b32 v1, 4, v0")
    e("s_waitcnt lgkmcnt(0)")
    srd(e, 4, 64, 65, 1024 * 2048)
    srd(e, 8, 66, 67, 3584 * 2048)
    e("s_lshl_b32 s32, s3, 13")
    e("s_mul_i32 s33, s3, 28672")
    for i in range(2):
        e(f"buffer_load_dwordx4 v[{4+4*i}:{7+4*i}], v1, s[4:7], s32 offen")
        e("s_add_u32 s32, s32, 4096")
    for i in range(7):
        e(f"buffer_load_dwordx4 v[{12+4*i}:{15+4*i}], v1, s[8:11], s33 offen")
        e("s_add_u32 s33, s33, 4096")
    e("s_waitcnt vmcnt(0)")
    e("s_branch K2_END")
    e.label("K2_MAIN")
    e("s_load_dwordx2 s[64:65], s[0:1], 0")
    e("s_load_dwordx2 s[66:67], s[0:1], 56")
    e("s_load_dwordx2 s[72:73], s[0:1], 80")
    e("s_and_b32 s33, s2, 31")
    e("s_lshr_b32 s34, s2, 5")
    e("v_lshrrev_b32 v1, 6, v0")
    e("v_and_b32 v2, 63, v0")
    e("v_readfirstlane_b32 s35, v1")
    e("s_waitcnt lgkmcnt(0)")
    srd(e, 4, 64, 65, 2048 * 2048)
    srd(e, 8, 66, 67, 2048)
    srd(e, 28, 72, 73, 0x10000000)
    e("v_and_b32 v3, 31, v2")
    e("v_lshlrev_b32 v4, 6, v1")
    e("v_add_u32 v3, v3, v4")
    e("v_lshrrev_b32 v5, 5, v2")
    e("v_lshlrev_b32 v5, 4, v5")
    e("v_lshlrev_b32 v6, 11, v3")
    e("v_add_u32 v6, v6, v5")
    e("s_lshl_b32 s36, s34, 19")
    e("s_lshl_b32 s37, s33, 6")
    e("s_add_u32 s36, s36, s37")
    e(f"s_add_u32 s36, s36, {PQ_OFF}")
    e(f"s_add_u32 s38, s36, {32*2048}")
    Q = 32
    e(f"buffer_load_dwordx4 v[{Q}:{Q+3}], v6, s[28:31], s36 offen")
    e(f"buffer_load_dwordx4 v[{Q+4}:{Q+7}], v6, s[28:31], s36 offen offset:32")
    e(f"buffer_load_dwordx4 v[{Q+8}:{Q+11}], v6, s[28:31], s38 offen")
    e(f"buffer_load_dwordx4 v[{Q+12}:{Q+15}], v6, s[28:31], s38 offen offset:32")
    e("v_lshlrev_b32 v7, 4, v0")
    e("s_lshl_b32 s39, s33, 16")
    e(f"s_add_u32 s39, s39, {KVP_OFF}")
    PL = 64
    for rt in range(8):
        e(f"s_add_u32 s3, s39, {rt*8192}")
        e(f"buffer_load_dwordx4 v[{PL+8*rt}:{PL+8*rt+3}], v7, s[28:31], s3 offen")
        e(f"s_add_u32 s3, s39, {rt*8192+4096}")
        e(f"buffer_load_dwordx4 v[{PL+8*rt+4}:{PL+8*rt+7}], v7, s[28:31], s3 offen")
    e("v_lshlrev_b32 v8, 5, v2")
    e("s_lshl_b32 s40, s2, 3")
    e("s_lshl_b32 s41, s35, 1")
    e("s_add_u32 s40, s40, s41")
    e("s_lshl_b32 s41, s40, 11")
    e("s_add_u32 s42, s41, 2048")
    GX = 128
    e(f"buffer_load_dwordx4 v[{GX}:{GX+3}], v8, s[4:7], s41 offen")
    e(f"buffer_load_dwordx4 v[{GX+4}:{GX+7}], v8, s[4:7], s41 offen offset:16")
    e(f"buffer_load_dwordx4 v[{GX+8}:{GX+11}], v8, s[4:7], s42 offen")
    e(f"buffer_load_dwordx4 v[{GX+12}:{GX+15}], v8, s[4:7], s42 offen offset:16")
    e(f"buffer_load_dwordx4 v[{GX+16}:{GX+19}], v8, s[8:11], 0 offen")
    e(f"buffer_load_dwordx4 v[{GX+20}:{GX+23}], v8, s[8:11], 0 offen offset:16")
    e("s_waitcnt vmcnt(22)")
    PQ = 48
    T = 160
    for blk in range(2):
        for i in range(8):
            src = Q + 8 * blk + i
            e(f"v_lshlrev_b32 v{T+2*i}, 16, v{src}")
            e(f"v_and_b32 v{T+2*i+1}, 0xffff0000, v{src}")
        for r in range(16):
            e(f"v_mul_f32 v{T+16+r}, {LOG2E:#x}, v{T+r}")
        for r in range(16):
            e(f"v_min_f32 v{T+16+r}, 0, v{T+16+r}")
        for r in range(16):
            e(f"v_exp_f32 v{T+16+r}, v{T+16+r}")
        for r in range(16):
            e(f"v_max_f32 v{T+r}, 0, v{T+r}")
        for r in range(16):
            e(f"v_add_f32 v{T+r}, {EPS6:#x}, v{T+r}")
        for r in range(16):
            e(f"v_add_f32 v{T+r}, v{T+r}, v{T+16+r}")
        for i in range(8):
            e(f"v_cvt_pk_bf16_f32 v{PQ+8*blk+i}, v{T+2*i}, v{T+2*i+1}")
    e("s_waitcnt vmcnt(6)")
    for rt in range(1, 8):
        for i in range(8):
            e(f"v_add_f32 v{PL+i}, v{PL+i}, v{PL+8*rt+i}")
    for i in range(4):
        e(f"v_cvt_pk_bf16_f32 v{T+i}, v{PL+2*i}, v{PL+2*i+1}")
    e("v_and_b32 v9, 31, v2")
    e("v_lshlrev_b32 v9, 6, v9")
    e("v_lshlrev_b32 v10, 4, v1")
    e("v_add_u32 v9, v9, v10")
    e("v_lshrrev_b32 v10, 5, v2")
    e("v_lshlrev_b32 v10, 3, v10")
    e("v_add_u32 v9, v9, v10")
    e(f"ds_write_b64 v9, v[{T}:{T+1}]")
    e(f"ds_write_b64 v9, v[{T+2}:{T+3}] offset:2048")
    e("s_waitcnt vmcnt(0)")
    e("v_mov_b32 v12, 0")
    e("v_mov_b32 v13, 0")
    for i in range(8):
        e(f"v_dot2_f32_bf16 v12, v{GX+i}, v{GX+16+i}, v12")
        e(f"v_dot2_f32_bf16 v13, v{GX+8+i}, v{GX+16+i}, v13")
    e("s_waitcnt lgkmcnt(0)")
    e("s_barrier")
    e("v_and_b32 v9, 31, v2")
    e("v_lshlrev_b32 v9, 6, v9")
    e("v_add_u32 v9, v9, v5")
    KA = 64
    e(f"ds_read_b128 v[{KA}:{KA+3}], v9")
    e(f"ds_read_b128 v[{KA+4}:{KA+7}], v9 offset:32")
    e(f"ds_read_b128 v[{KA+8}:{KA+11}], v9 offset:2048")
    e(f"ds_read_b128 v[{KA+12}:{KA+15}], v9 offset:2080")
    for off in (0x041F, 0x081F, 0x101F, 0x201F, 0x401F):
        e(f"ds_swizzle_b32 v14, v12 offset:{off:#x}")
        e(f"ds_swizzle_b32 v15, v13 offset:{off:#x}")
        e("s_waitcnt lgkmcnt(0)")
        e("v_add_f32 v12, v12, v14")
        e("v_add_f32 v13, v13, v15")
    e("s_nop 0")
    e("v_readlane_b32 s44, v12, 32")
    e("v_readlane_b32 s45, v13, 32")
    e("s_nop 1")
    e("v_add_f32 v12, s44, v12")
    e("v_add_f32 v13, s45, v13")
    e(f"v_mul_f32 v12, {LOG2E | 0x80000000:#x}, v12")
    e(f"v_mul_f32 v13, {LOG2E | 0x80000000:#x}, v13")
    e("v_exp_f32 v12, v12")
    e("v_exp_f32 v13, v13")
    e("s_nop 0")
    e("v_add_f32 v12, 1.0, v12")
    e("v_add_f32 v13, 1.0, v13")
    e("v_rcp_f32 v12, v12")
    e("v_rcp_f32 v13, v13")
    e("s_lshl_b32 s3, s40, 2")
    e(f"s_add_u32 s3, s3, {G_OFF}")
    e("v_mov_b32 v14, 0")
    e("v_cmp_eq_u32 vcc, 0, v2")
    e("s_and_saveexec_b64 s[46:47], vcc")
    e("buffer_store_dwordx2 v[12:13], v14, s[28:31], s3 offen")
    e("s_mov_b64 exec, s[46:47]")
    NUM = 96
    for rb in range(2):
        for m in range(2):
            b = PQ + 8 * rb + 4 * m
            n = NUM + 16 * rb
            d = NUM + 32 + 16 * rb
            c1 = "0" if m == 0 else f"v[{n}:{n+15}]"
            c2 = "0" if m == 0 else f"v[{d}:{d+15}]"
            e(f"v_mfma_f32_32x32x16_bf16 v[{n}:{n+15}], v[{KA+4*m}:{KA+4*m+3}], v[{b}:{b+3}], {c1}")
            e(f"v_mfma_f32_32x32x16_bf16 v[{d}:{d+15}], v[{KA+8+4*m}:{KA+8+4*m+3}], v[{b}:{b+3}], {c2}")
    e(f"s_movk_i32 s3, {A2_LD}")
    e("v_mul_lo_u32 v16, v3, s3")
    e("v_add_u32 v16, v16, v5")
    e(f"s_mul_i32 s48, s34, {256*A2_LD}")
    e("s_add_u32 s48, s48, s37")
    e(f"s_add_u32 s48, s48, {A2_OFF}")
    e(f"s_add_u32 s49, s48, {32*A2_LD}")
    e("s_nop 15")
    for rb in range(2):
        n = NUM + 16 * rb
        d = NUM + 32 + 16 * rb
        e(f"v_add_f32 v17, {EPS6:#x}, v{d}")
        e("v_rcp_f32 v17, v17")
        e("s_nop 0")
        for r in range(16):
            e(f"v_mul_f32 v{n+r}, v{n+r}, v17")
        P = T + 8 * rb
        for i in range(8):
            e(f"v_cvt_pk_bf16_f32 v{P+i}, v{n+2*i}, v{n+2*i+1}")
        e("s_nop 1")
        e(f"v_permlane32_swap_b32 v{P+0}, v{P+2}")
        e(f"v_permlane32_swap_b32 v{P+1}, v{P+3}")
        e(f"v_permlane32_swap_b32 v{P+4}, v{P+6}")
        e(f"v_permlane32_swap_b32 v{P+5}, v{P+7}")
        e(f"buffer_store_dwordx4 v[{P}:{P+3}], v16, s[28:31], s{48+rb} offen")
        e(f"buffer_store_dwordx4 v[{P+4}:{P+7}], v16, s[28:31], s{48+rb} offen offset:32")
    e.label("K2_END")
    e("s_endpgm")
    return kn, e.text(), kernel_desc(kn, 192, 192), (512, 256, 4096)


X_OFF = 28 << 20
O_OFF = 40 << 20


def gen_k3():
    e = E()
    kn = "k3_gemm2_kernel"
    STP = [64, 66, 40, 42, 76, 92, 94, 8]
    stn = [0]

    def stamp():
        if "fine" in EXP:
            e(f"s_memtime s[{STP[stn[0]]}:{STP[stn[0]]+1}]")
            stn[0] += 1
    STG = 32768
    BOFF = 16384
    NS = 4
    SCR = 131072
    e.raw(f".globl {kn}\n.p2align 8\n.type {kn},@function")
    e.label(kn)
    e("s_cmp_ge_u32 s2, 256")
    e("s_cbranch_scc1 K3_END")
    if "stamp3" in EXP:
        e("s_memtime s[80:81]")
        e("s_memrealtime s[88:89]")
    e("s_load_dwordx2 s[64:65], s[0:1], 16")
    e("s_load_dwordx2 s[66:67], s[0:1], 48")
    e("s_load_dwordx4 s[72:75], s[0:1], 72")
    e("s_load_dwordx2 s[76:77], s[0:1], 0")
    e("s_load_dwordx4 s[96:99], s[0:1], 56")
    e("s_and_b32 s36, s2, 1")
    e("s_bfe_u32 s3, s2, 0x20001")
    e("s_lshr_b32 s32, s2, 3")
    e("s_and_b32 s33, s32, 3")
    e("s_lshl_b32 s3, s3, 2")
    e("s_add_u32 s33, s33, s3")
    e("s_lshr_b32 s34, s32, 2")
    e("v_lshrrev_b32 v1, 6, v0")
    e("v_and_b32 v2, 63, v0")
    e("v_readfirstlane_b32 s35, v1")
    e("s_waitcnt lgkmcnt(0)")
    srd(e, 28, 74, 75, 0x10000000)
    srd(e, 16, 72, 73, 256)
    e(f"s_mul_i32 s3, s33, {128*A2_LD}")
    e(f"s_add_u32 s3, s3, {A2_OFF}")
    e("s_add_u32 s68, s74, s3")
    e("s_addc_u32 s69, s75, 0")
    srd(e, 4, 68, 69, 128 * A2_LD)
    srd(e, 8, 64, 65, 1024 * 2048)
    srd(e, 12, 66, 67, 3584 * 2048)
    for i in range(4):
        e(f"s_mov_b32 s{20+i}, s{12+i}")
    e("s_cmp_eq_u32 s36, 0")
    for i in range(3):
        e(f"s_cselect_b32 s{24+i}, s{8+i}, s{12+i}")
    e(f"s_mul_i32 s60, s36, {1280*2048}")
    e(f"s_mul_i32 s61, s36, {2560*2048}")
    e("s_lshl_b32 s3, s34, 8")
    e("s_add_u32 s60, s60, s3")
    e("s_add_u32 s61, s61, s3")
    e(f"s_mul_i32 s59, s36, {1280*2}")
    e("s_add_u32 s59, s59, 2048")
    e(f"s_mul_i32 s57, s36, {3584*2}")
    e("s_mov_b32 s62, 0")
    e("s_mov_b32 s38, s98")
    e("s_mov_b32 s39, s99")
    e("s_mov_b32 s100, s59")
    e("s_mov_b32 s101, s60")
    if "stag3" not in EXP:
        e("s_mov_b32 s99, 0")
    else:
        e("s_and_b32 s3, s33, 3")
        e("s_mul_i32 s99, s3, 5")
        e("s_lshl_b32 s3, s34, 1")
        e("s_add_u32 s99, s99, s3")
        e("s_sub_u32 s3, s99, 20")
        e("s_cmp_ge_u32 s99, 20")
        e("s_cselect_b32 s99, s3, s99")
    e("s_lshl_b32 s3, s99, 7")
    e("s_add_u32 s59, s59, s3")
    e("s_lshl_b32 s3, s99, 17")
    e("s_add_u32 s60, s60, s3")
    srd(e, 68, 38, 39, 2048 * 2048)
    e("s_lshl_b32 s45, s35, 12")
    e("s_lshl_b32 s46, s35, 12")
    e(f"s_add_u32 s46, s46, {BOFF}")
    e("v_lshrrev_b32 v3, 3, v2")
    e("v_lshlrev_b32 v4, 5, v1")
    e("v_add_u32 v3, v3, v4")
    e(f"s_movk_i32 s3, {A2_LD}")
    e("v_mul_lo_u32 v3, v3, s3")
    e("v_lshrrev_b32 v5, 4, v2")
    e("v_and_b32 v6, 7, v2")
    e("v_xor_b32 v7, v6, v5")
    e("v_lshl_add_u32 v10, v7, 4, v3")
    e("v_xor_b32 v7, 4, v7")
    e("v_lshl_add_u32 v11, v7, 4, v3")
    e("v_lshrrev_b32 v3, 4, v2")
    e("v_lshlrev_b32 v4, 4, v1")
    e("v_add_u32 v4, v3, v4")
    e("v_lshlrev_b32 v4, 11, v4")
    e("v_bfe_u32 v5, v2, 2, 2")
    e("v_xor_b32 v5, v5, v3")
    e("v_lshl_add_u32 v4, v5, 6, v4")
    e("v_and_b32 v5, 3, v2")
    e("v_lshl_add_u32 v12, v5, 4, v4")

    def dma_groups(stage, ph2=False):
        g = []
        for i in range(4):
            g.append([f"s_add_u32 m0, s45, {stage*STG + i*1024}",
                      (f"s_add_u32 s3, s59, s{52+i}" if ph2 else f"s_add_u32 s3, s59, {i*8*A2_LD}"),
                      f"buffer_load_dwordx4 v{10+(i&1)}, s[4:7], s3 offen lds"])
            g.append([f"s_add_u32 m0, s46, {stage*STG + i*1024}",
                      f"s_add_u32 s3, s60, {i*4*2048}",
                      f"buffer_load_dwordx4 v12, s[20:23], s3 offen lds"])
        if ph2:
            g[-1] = g[-1] + ["s_add_u32 s59, s59, s27",
                             f"s_add_u32 s60, s60, {64*2048}"]
        else:
            g[-1] = g[-1] + ["s_add_u32 s59, s59, 128",
                             f"s_add_u32 s60, s60, {64*2048}",
                             "s_add_u32 s99, s99, 1",
                             "s_cmp_eq_u32 s99, 20",
                             "s_cselect_b32 s59, s100, s59",
                             "s_cselect_b32 s60, s101, s60",
                             "s_add_u32 s62, s62, 1",
                             "s_cmp_eq_u32 s62, 20",
                             "s_cselect_b32 s60, s61, s60",
                             "s_cselect_b32 s59, s57, s59",
                             "s_cselect_b32 s20, s24, s20",
                             "s_cselect_b32 s21, s25, s21",
                             "s_cselect_b32 s22, s26, s22"]
        return g

    for st in range(NS - 1):
        e.tag = ("D", st)
        for g in dma_groups(st):
            for s in g:
                e(s)

    e("s_and_b32 s50, s2, 31")
    e("s_lshr_b32 s51, s2, 5")
    srd(e, 40, 76, 77, 2048 * 2048)
    srd(e, 52, 96, 97, 2048)
    R3, R5, R9 = 192, 193, 194
    G0, G1, G2, G3 = 195, 196, 197, 198
    PQ = 200
    T = 216
    PS = 248
    Q, PL, GX = 0, 16, 80
    def att_loads():
        e(f"v_and_b32 v{R3}, 31, v2")
        e("v_lshlrev_b32 v4, 6, v1")
        e(f"v_add_u32 v{R3}, v{R3}, v4")
        e(f"v_lshrrev_b32 v{R5}, 5, v2")
        e(f"v_lshlrev_b32 v{R5}, 4, v{R5}")
        e(f"v_lshlrev_b32 v6, 11, v{R3}")
        e(f"v_add_u32 v6, v6, v{R5}")
        e("s_lshl_b32 s38, s51, 19")
        e("s_lshl_b32 s37, s50, 6")
        e("s_add_u32 s38, s38, s37")
        e(f"s_add_u32 s38, s38, {PQ_OFF}")
        e(f"s_add_u32 s39, s38, {32*2048}")
        e(f"buffer_load_dwordx4 a[{Q}:{Q+3}], v6, s[28:31], s38 offen")
        e(f"buffer_load_dwordx4 a[{Q+4}:{Q+7}], v6, s[28:31], s38 offen offset:32")
        e(f"buffer_load_dwordx4 a[{Q+8}:{Q+11}], v6, s[28:31], s39 offen")
        e(f"buffer_load_dwordx4 a[{Q+12}:{Q+15}], v6, s[28:31], s39 offen offset:32")
        e("v_lshlrev_b32 v7, 4, v0")
        e("s_lshl_b32 s39, s50, 16")
        e(f"s_add_u32 s39, s39, {KVP_OFF}")
        for rt in range(8):
            e(f"s_add_u32 s27, s39, {rt*8192}")
            e(f"buffer_load_dwordx4 a[{PL+8*rt}:{PL+8*rt+3}], v7, s[28:31], s27 offen")
            e(f"s_add_u32 s27, s39, {rt*8192+4096}")
            e(f"buffer_load_dwordx4 a[{PL+8*rt+4}:{PL+8*rt+7}], v7, s[28:31], s27 offen")
        e("v_lshlrev_b32 v8, 5, v2")
        e("s_lshl_b32 s48, s51, 8")
        e("s_lshl_b32 s27, s50, 3")
        e("s_add_u32 s48, s48, s27")
        e("s_lshl_b32 s27, s35, 1")
        e("s_add_u32 s48, s48, s27")
        e("s_lshl_b32 s47, s48, 11")
        e("s_add_u32 s49, s47, 2048")
        e(f"buffer_load_dwordx4 a[{GX}:{GX+3}], v8, s[40:43], s47 offen")
        e(f"buffer_load_dwordx4 a[{GX+4}:{GX+7}], v8, s[40:43], s47 offen offset:16")
        e(f"buffer_load_dwordx4 a[{GX+8}:{GX+11}], v8, s[40:43], s49 offen")
        e(f"buffer_load_dwordx4 a[{GX+12}:{GX+15}], v8, s[40:43], s49 offen offset:16")
        e(f"buffer_load_dwordx4 a[{GX+16}:{GX+19}], v8, s[52:55], 0 offen")
        e(f"buffer_load_dwordx4 a[{GX+20}:{GX+23}], v8, s[52:55], 0 offen offset:16")

    def att_a():
        for blk in range(2):
            for i in range(8):
                e(f"v_accvgpr_read_b32 v{T+2*i+1}, a{Q+8*blk+i}")
            for i in range(8):
                e(f"v_lshlrev_b32 v{T+2*i}, 16, v{T+2*i+1}")
                e(f"v_and_b32 v{T+2*i+1}, 0xffff0000, v{T+2*i+1}")
            for r in range(16):
                e(f"v_mul_f32 v{T+16+r}, {LOG2E:#x}, v{T+r}")
            for r in range(16):
                e(f"v_min_f32 v{T+16+r}, 0, v{T+16+r}")
            for r in range(16):
                e(f"v_exp_f32 v{T+16+r}, v{T+16+r}")
            for r in range(16):
                e(f"v_max_f32 v{T+r}, 0, v{T+r}")
            for r in range(16):
                e(f"v_add_f32 v{T+r}, {EPS6:#x}, v{T+r}")
            for r in range(16):
                e(f"v_add_f32 v{T+r}, v{T+r}, v{T+16+r}")
            for i in range(8):
                e(f"v_cvt_pk_bf16_f32 v{PQ+8*blk+i}, v{T+2*i}, v{T+2*i+1}")
        for i in range(8):
            e(f"v_accvgpr_read_b32 v{PS+i}, a{PL+i}")
        for half in range(2):
            n = 32 if half == 0 else 24
            for i in range(n):
                e(f"v_accvgpr_read_b32 v{T+i}, a{PL+8+32*half+i}")
            for i in range(n):
                e(f"v_add_f32 v{PS+(i&7)}, v{PS+(i&7)}, v{T+i}")
        for i in range(4):
            e(f"v_cvt_pk_bf16_f32 v{T+24+i}, v{PS+2*i}, v{PS+2*i+1}")
        e(f"v_and_b32 v{R9}, 31, v2")
        e(f"v_lshlrev_b32 v{R9}, 6, v{R9}")
        e(f"v_lshlrev_b32 v{G2}, 4, v1")
        e(f"v_add_u32 v{R9}, v{R9}, v{G2}")
        e(f"v_lshrrev_b32 v{G2}, 5, v2")
        e(f"v_lshlrev_b32 v{G2}, 3, v{G2}")
        e(f"v_add_u32 v{R9}, v{R9}, v{G2}")
        e(f"v_add_u32 v{R9}, {SCR}, v{R9}")
        e(f"ds_write_b64 v{R9}, v[{T+24}:{T+25}]")
        e(f"ds_write_b64 v{R9}, v[{T+26}:{T+27}] offset:2048")
        for i in range(24):
            e(f"v_accvgpr_read_b32 v{T+i}, a{GX+i}")
        e(f"v_mov_b32 v{G0}, 0")
        e(f"v_mov_b32 v{G1}, 0")
        for i in range(8):
            e(f"v_dot2_f32_bf16 v{G0}, v{T+i}, v{T+16+i}, v{G0}")
            e(f"v_dot2_f32_bf16 v{G1}, v{T+8+i}, v{T+16+i}, v{G1}")

    def att_b():
        KA = T
        e(f"v_and_b32 v{R9}, 31, v2")
        e(f"v_lshlrev_b32 v{R9}, 6, v{R9}")
        e(f"v_add_u32 v{R9}, v{R9}, v{R5}")
        e(f"v_add_u32 v{R9}, {SCR}, v{R9}")
        e(f"ds_read_b128 v[{KA}:{KA+3}], v{R9}")
        e(f"ds_read_b128 v[{KA+4}:{KA+7}], v{R9} offset:32")
        e(f"ds_read_b128 v[{KA+8}:{KA+11}], v{R9} offset:2048")
        e(f"ds_read_b128 v[{KA+12}:{KA+15}], v{R9} offset:2080")
        for off in (0x041F, 0x081F, 0x101F, 0x201F, 0x401F):
            e(f"ds_swizzle_b32 v{G2}, v{G0} offset:{off:#x}")
            e(f"ds_swizzle_b32 v{G3}, v{G1} offset:{off:#x}")
            e("s_waitcnt lgkmcnt(0)")
            e(f"v_add_f32 v{G0}, v{G0}, v{G2}")
            e(f"v_add_f32 v{G1}, v{G1}, v{G3}")
        for rb in range(2):
            for m in range(2):
                b = PQ + 8 * rb + 4 * m
                n = 16 * rb
                d = 32 + 16 * rb
                c1 = "0" if m == 0 else f"a[{n}:{n+15}]"
                c2 = "0" if m == 0 else f"a[{d}:{d+15}]"
                e(f"v_mfma_f32_32x32x16_bf16 a[{n}:{n+15}], v[{KA+4*m}:{KA+4*m+3}], v[{b}:{b+3}], {c1}")
                e(f"v_mfma_f32_32x32x16_bf16 a[{d}:{d+15}], v[{KA+8+4*m}:{KA+8+4*m+3}], v[{b}:{b+3}], {c2}")
        e(f"v_readlane_b32 s56, v{G0}, 32")
        e(f"v_readlane_b32 s58, v{G1}, 32")
        e("s_nop 1")
        e(f"v_add_f32 v{G0}, s56, v{G0}")
        e(f"v_add_f32 v{G1}, s58, v{G1}")
        e(f"v_mul_f32 v{G0}, {LOG2E | 0x80000000:#x}, v{G0}")
        e(f"v_mul_f32 v{G1}, {LOG2E | 0x80000000:#x}, v{G1}")
        e(f"v_exp_f32 v{G0}, v{G0}")
        e(f"v_exp_f32 v{G1}, v{G1}")
        e("s_nop 0")
        e(f"v_add_f32 v{G0}, 1.0, v{G0}")
        e(f"v_add_f32 v{G1}, 1.0, v{G1}")
        e(f"v_rcp_f32 v{PS}, v{G0}")
        e(f"v_rcp_f32 v{PS+1}, v{G1}")
        e("s_lshl_b32 s27, s48, 2")
        e(f"s_add_u32 s27, s27, {G_OFF}")
        e(f"v_mov_b32 v{G0}, 0")
        e.raw("{")
        e("v_cmp_eq_u32 vcc, 0, v2")
        e("s_and_saveexec_b64 s[78:79], vcc")
        e(f"buffer_store_dwordx2 v[{PS}:{PS+1}], v{G0}, s[28:31], s27 offen sc1")
        e("s_mov_b64 exec, s[78:79]")
        e.raw("}")
        e(f"v_and_b32 v{R9}, 31, v2")
        e(f"v_lshlrev_b32 v{R9}, 5, v{R9}")
        e(f"v_add_u32 v{R9}, v{R9}, v{R5}")
        e("s_lshl_b32 s48, s51, 3")
        e("s_lshl_b32 s27, s35, 1")
        e("s_add_u32 s48, s48, s27")
        e("s_lshl_b32 s48, s48, 5")
        e("s_add_u32 s48, s48, s50")
        e("s_lshl_b32 s48, s48, 11")
        e(f"s_add_u32 s48, s48, {O_OFF}")
        e("s_add_u32 s49, s48, 65536")
        e("s_nop 7")
        for rb in range(2):
            n = 16 * rb
            d = 32 + 16 * rb
            e(f"v_accvgpr_read_b32 v{G1}, a{d}")
            for r in range(16):
                e(f"v_accvgpr_read_b32 v{T+r}, a{n+r}")
            e(f"v_add_f32 v{G1}, {EPS6:#x}, v{G1}")
            e(f"v_rcp_f32 v{G1}, v{G1}")
            e("s_nop 0")
            for r in range(16):
                e(f"v_mul_f32 v{T+r}, v{T+r}, v{G1}")
            P = T + 16 + 8 * rb
            for i in range(8):
                e(f"v_cvt_pk_bf16_f32 v{P+i}, v{T+2*i}, v{T+2*i+1}")
            e("s_nop 1")
            e(f"v_permlane32_swap_b32 v{P+0}, v{P+2}")
            e(f"v_permlane32_swap_b32 v{P+1}, v{P+3}")
            e(f"v_permlane32_swap_b32 v{P+4}, v{P+6}")
            e(f"v_permlane32_swap_b32 v{P+5}, v{P+7}")
            e(f"buffer_store_dwordx4 v[{P}:{P+3}], v{R9}, s[28:31], s{48+rb} offen sc1")
            e(f"buffer_store_dwordx4 v[{P+4}:{P+7}], v{R9}, s[28:31], s{48+rb} offen offset:1024 sc1")

    e("v_and_b32 v3, 31, v2")
    e("v_lshrrev_b32 v4, 1, v1")
    e("v_lshlrev_b32 v4, 6, v4")
    e("v_add_u32 v4, v4, v3")
    e("v_lshlrev_b32 v4, 7, v4")
    e("v_bfe_u32 v5, v3, 1, 3")
    e("v_lshrrev_b32 v6, 5, v2")
    for s in range(4):
        e(f"v_add_u32 v7, {2*s}, v6")
        e("v_xor_b32 v7, v7, v5")
        e(f"v_lshl_add_u32 v{14+s}, v7, 4, v4")
        e(f"v_add_u32 v{18+s}, {2*STG}, v{14+s}")
    e("v_lshrrev_b32 v3, 5, v2")
    e("v_lshlrev_b32 v3, 11, v3")
    e("v_bfe_u32 v4, v2, 2, 2")
    e("v_lshl_add_u32 v3, v4, 8, v3")
    e("v_bfe_u32 v5, v2, 4, 1")
    e("v_lshl_add_u32 v3, v5, 5, v3")
    e("v_and_b32 v5, 3, v2")
    e("v_lshl_add_u32 v3, v5, 3, v3")
    e("v_and_b32 v5, 1, v1")
    e("v_lshlrev_b32 v5, 1, v5")
    for j in range(2):
        e(f"v_add_u32 v6, {j}, v5")
        e("v_xor_b32 v6, v6, v4")
        e("v_lshl_add_u32 v6, v6, 6, v3")
        e(f"v_add_u32 v{22+j}, {BOFF}, v6")
        e(f"v_add_u32 v{28+j}, {BOFF+2*STG}, v6")

    AF = 32
    BF = 48
    ACC = 64
    for r in range(128):
        e(f"v_mov_b32 v{ACC+r}, 0")

    def read_groups(stage, s, buf):
        g = []
        va = 14 + 4 * (stage >> 1) + s
        so = (stage & 1) * STG
        for rb in range(2):
            d = AF + buf * 8 + rb * 4
            g.append([f"ds_read_b128 v[{d}:{d+3}], v{va} offset:{so + rb*4096}"])
        for b in range(2):
            vb = (22 if stage < 2 else 28) + b
            d = BF + buf * 8 + b * 4
            g.append([f"ds_read_b64_tr_b16 v[{d}:{d+1}], v{vb} offset:{so + 4*s*1024}"])
            g.append([f"ds_read_b64_tr_b16 v[{d+2}:{d+3}], v{vb} offset:{so + 4*s*1024+1024}"])
        return g

    def mfmas(buf, aset):
        m = []
        for b in range(2):
            for rb in range(2):
                a = AF + buf * 8 + rb * 4
                bb = BF + buf * 8 + b * 4
                c = ACC + aset * 64 + (b * 2 + rb) * 16
                m.append(f"v_mfma_f32_32x32x16_bf16 v[{c}:{c+15}], v[{bb}:{bb+3}], v[{a}:{a+3}], v[{c}:{c+15}]")
        return m

    def kstep(q, aset, dma, wait_n, last, after_barrier=None, ph2=False, t=None, extra=None, need=()):
        dg = dma_groups((q + 3) % NS, ph2) if (dma and "n3dma" not in EXP) else []
        extra = list(extra or [])
        per = (len(extra) + 15) // 16

        def ex():
            for _ in range(per):
                if extra:
                    tg, e.tag = e.tag, "att"
                    for x in extra.pop(0):
                        e(x)
                    e.tag = tg
        for s in range(4):
            cur = s & 1
            if s < 3:
                rd = read_groups(q, s + 1, cur ^ 1)
            elif not last:
                rd = read_groups((q + 1) % NS, 0, cur ^ 1)
            else:
                rd = []
            e("s_waitcnt lgkmcnt(0)")
            mf = mfmas(cur, aset)
            dd = dg[2 * s:2 * s + 2]
            e.tag = ("D", None if t is None else t + 3)
            e(mf[0])
            for g in rd[0:3]:
                for x in g:
                    e(x)
            ex()
            e(mf[1])
            for g in rd[3:6]:
                for x in g:
                    e(x)
            ex()
            e(mf[2])
            for g in dd[0:1]:
                for x in g:
                    e(x)
            ex()
            e(mf[3])
            for g in dd[1:2]:
                for x in g:
                    e(x)
            ex()
            if s == 2 and not last:
                if wait_n is None:
                    wn = e.vm_needed([("D", t + 1)] + list(need))
                else:
                    wn = wait_n
                e(f"s_waitcnt vmcnt({wn}) lgkmcnt(0)")
                e("s_barrier")
                if after_barrier:
                    after_barrier()

    def signal():
        e("s_cmp_eq_u32 s35, 0")
        e("s_cbranch_scc0 K3_NOSIG")
        e("v_mov_b32 v30, 1")
        e("v_mov_b32 v31, 0")
        e("s_lshl_b32 s3, s51, 2")
        e("v_cmp_eq_u32 vcc, 0, v2")
        e("s_and_saveexec_b64 s[78:79], vcc")
        e("buffer_atomic_add v30, v31, s[16:19], s3 offen sc1")
        e("s_mov_b64 exec, s[78:79]")
        e.label("K3_NOSIG")

    e("s_waitcnt vmcnt(16)")
    e("s_barrier")
    for g in read_groups(0, 0, 0):
        for s in g:
            e(s)
    if "stamp3" in EXP:
        e("s_memtime s[82:83]")
    e("s_lshr_b32 s44, s33, 1")
    e("s_lshl_b32 s44, s44, 2")
    L = e.capture(att_loads)
    A = e.capture(att_a)
    B = e.capture(att_b)

    def split(lst, n):
        k = (len(lst) + n - 1) // n
        return [lst[i * k:(i + 1) * k] for i in range(n)]
    A0, A1 = split(A, 2)
    B0, B1 = split(B, 2)
    kstep(0, 1, True, None, False, t=0, extra=L)
    kstep(1, 1, True, None, False, t=1)
    kstep(2, 1, True, None, False, t=2, need=["att"])
    stamp()
    kstep(3, 1, True, None, False, t=3, extra=A0)
    kstep(0, 1, True, None, False, t=4, extra=A1)
    stamp()
    kstep(1, 1, True, None, False, t=5)
    stamp()
    kstep(2, 1, True, None, False, t=6, extra=B0)
    kstep(3, 1, True, None, False, t=7, extra=B1)
    stamp()
    kstep(0, 1, True, None, False, t=8)
    kstep(1, 1, True, None, False, t=9, need=["att"], after_barrier=signal)
    kstep(2, 1, True, None, False, t=10)
    kstep(3, 1, True, None, False, t=11)
    stamp()
    stamp()
    for q in range(3):
        kstep(q, 1, True, 14, False)
    e("v_mov_b32 v31, 0")
    e("buffer_load_dword v30, v31, s[16:19], s44 offen sc1")
    kstep(3, 1, True, 14, False)
    kstep(0, 1, True, 14, False)
    e("v_readfirstlane_b32 s3, v30")
    e("s_cmp_ge_u32 s3, 32")
    e("s_cbranch_scc1 K3_READY")
    e("s_mov_b32 s47, 0")
    e.label("K3_SPIN")
    e("s_sleep 8")
    e("buffer_load_dword v30, v31, s[16:19], s44 offen sc1")
    e("s_waitcnt vmcnt(0)")
    e("v_readfirstlane_b32 s3, v30")
    e("s_add_u32 s47, s47, 1")
    e("s_cmp_ge_u32 s47, 0x20000")
    e("s_cbranch_scc1 K3_READY")
    e("s_cmp_ge_u32 s3, 32")
    e("s_cbranch_scc0 K3_SPIN")
    e.label("K3_READY")
    for i in range(4):
        e(f"s_mov_b32 s{52+i}, {i*8*A2_LD}")
    e("s_movk_i32 s27, 128")
    e("s_cmp_eq_u32 s36, 0")
    e("s_cbranch_scc0 K3_NOSW")
    for i in range(4):
        e(f"s_movk_i32 s{52+i}, {i*256}")
    e("s_movk_i32 s27, 4096")
    e("s_lshl_b32 s3, s33, 18")
    e(f"s_add_u32 s3, s3, {O_OFF}")
    e("s_add_u32 s4, s74, s3")
    e("s_addc_u32 s5, s75, 0")
    e("s_and_b32 s5, s5, 0xffff")
    e("s_mov_b32 s6, 0x40000")
    e("v_lshrrev_b32 v3, 3, v2")
    e("v_lshlrev_b32 v3, 5, v3")
    e("v_lshlrev_b32 v4, 16, v1")
    e("v_add_u32 v3, v3, v4")
    e("v_lshrrev_b32 v5, 4, v2")
    e("v_and_b32 v6, 7, v2")
    e("v_xor_b32 v7, v6, v5")
    for par in range(2):
        if par:
            e("v_xor_b32 v7, 4, v7")
        e("v_lshrrev_b32 v8, 1, v7")
        e("v_lshl_add_u32 v8, v8, 10, v3")
        e("v_and_b32 v9, 1, v7")
        e(f"v_lshl_add_u32 v{10+par}, v9, 4, v8")
    e.label("K3_NOSW")
    e("v_and_b32 v3, 31, v2")
    e("v_lshrrev_b32 v4, 1, v1")
    e("v_lshlrev_b32 v4, 6, v4")
    e("v_add_u32 v3, v3, v4")
    e("v_lshlrev_b32 v4, 2, v3")
    e("s_lshl_b32 s3, s33, 9")
    e(f"s_add_u32 s3, s3, {G_OFF}")
    e("buffer_load_dword v24, v4, s[28:31], s3 offen sc1")
    e("buffer_load_dword v25, v4, s[28:31], s3 offen offset:128 sc1")
    kstep(1, 1, True, 14, False, ph2=True)
    kstep(2, 1, True, 14, False, ph2=True)
    kstep(3, 1, True, 14, False, ph2=True)
    stamp()
    e("s_mov_b32 s63, 0")
    e.label("K3_LOOP2")
    for q in range(4):
        kstep(q, 0, True, 14, False, ph2=True)
    e("s_add_u32 s63, s63, 1")
    e("s_cmp_lt_u32 s63, 3")
    e("s_cbranch_scc1 K3_LOOP2")
    kstep(0, 0, True, 14, False, ph2=True)
    kstep(1, 0, False, 8, False)
    kstep(2, 0, False, 0, False)
    kstep(3, 0, False, 0, True)
    if "stamp3" in EXP:
        e("s_memtime s[84:85]")
    e("v_and_b32 v3, 31, v2")
    e("v_lshrrev_b32 v4, 1, v1")
    e("v_lshlrev_b32 v4, 6, v4")
    e("v_add_u32 v3, v3, v4")
    e("v_sub_f32 v26, 1.0, v24")
    e("v_sub_f32 v27, 1.0, v25")
    e("s_cmp_eq_u32 s36, 0")
    e("s_cselect_b64 vcc, -1, 0")
    e("s_nop 1")
    e("v_cndmask_b32 v24, v26, v24, vcc")
    e("v_cndmask_b32 v25, v27, v25, vcc")
    e("s_nop 3")
    for t in range(4):
        rb = t & 1
        c1 = ACC + t * 16
        c2 = ACC + 64 + t * 16
        for r in range(16):
            e(f"v_mul_f32 v{c1+r}, v{c1+r}, v{24+rb}")
        for r in range(16):
            e(f"v_fmac_f32 v{c1+r}, v{c2+r}, v{26+rb}")
    e("s_lshl_b32 s3, s33, 3")
    e("s_add_u32 s3, s3, s34")
    e("s_lshl_b32 s3, s3, 1")
    e("s_add_u32 s38, s3, s36")
    e("s_xor_b32 s39, s38, 1")
    for r_ in (38, 39):
        e(f"s_lshl_b32 s{r_}, s{r_}, 2")
        e(f"s_add_u32 s{r_}, s{r_}, s35")
        e(f"s_lshl_b32 s{r_}, s{r_}, 13")
        e(f"s_add_u32 s{r_}, s{r_}, {X_OFF}")
    e("v_lshlrev_b32 v5, 4, v2")
    e("v_lshlrev_b32 v6, 11, v3")
    e("v_lshrrev_b32 v7, 5, v2")
    e("v_lshl_add_u32 v6, v7, 4, v6")
    e("s_lshl_b32 s47, s33, 18")
    e("s_lshl_b32 s3, s36, 16")
    e("s_add_u32 s47, s47, s3")
    e("s_lshl_b32 s3, s34, 8")
    e("s_add_u32 s47, s47, s3")
    e("s_and_b32 s3, s35, 1")
    e("s_lshl_b32 s3, s3, 7")
    e("s_add_u32 s47, s47, s3")
    e("s_cmp_eq_u32 s36, 0")
    e("s_cbranch_scc0 K3_S1")
    for sp in range(2):
        if sp == 1:
            e.label("K3_S1")
        keep = sp
        send = sp ^ 1
        for j in range(2):
            c = ACC + (j * 2 + send) * 16
            for rg in range(4):
                e(f"buffer_store_dwordx4 v[{c+4*rg}:{c+4*rg+3}], v5, s[28:31], s39 offen offset:{rg*1024} sc1")
            if j == 0:
                e("s_add_u32 s39, s39, 4096")
        e("s_waitcnt vmcnt(0)")
        e("s_barrier")
        e("s_cmp_eq_u32 s35, 0")
        e(f"s_cbranch_scc0 K3_NOFLAG{sp}")
        e("v_mov_b32 v30, 1")
        e("v_mov_b32 v31, 0")
        e("s_lshl_b32 s3, s2, 7")
        e(f"s_add_u32 s3, s3, {FLG_OFF}")
        e("v_cmp_eq_u32 vcc, 0, v2")
        e("s_and_saveexec_b64 s[78:79], vcc")
        e("buffer_store_dword v30, v31, s[28:31], s3 offen sc1")
        e("s_mov_b64 exec, s[78:79]")
        e.label(f"K3_NOFLAG{sp}")
        e("s_xor_b32 s49, s2, 1")
        e("s_lshl_b32 s49, s49, 7")
        e(f"s_add_u32 s49, s49, {FLG_OFF}")
        e("v_mov_b32 v31, 0")
        e("s_mov_b32 s56, 0")
        e.label(f"K3_XSPIN{sp}")
        e("buffer_load_dword v30, v31, s[28:31], s49 offen sc1")
        e("s_waitcnt vmcnt(0)")
        e("v_readfirstlane_b32 s3, v30")
        e("s_add_u32 s56, s56, 1")
        e("s_cmp_ge_u32 s56, 0x20000")
        e(f"s_cbranch_scc1 K3_XGO{sp}")
        e("s_cmp_eq_u32 s3, 1")
        e(f"s_cbranch_scc1 K3_XGO{sp}")
        e("s_sleep 2")
        e(f"s_branch K3_XSPIN{sp}")
        e.label(f"K3_XGO{sp}")
        RX = 128
        for j in range(2):
            for rg in range(4):
                e(f"buffer_load_dwordx4 v[{RX+16*j+4*rg}:{RX+16*j+4*rg+3}], v5, s[28:31], s38 offen offset:{rg*1024} sc1")
            if j == 0:
                e("s_add_u32 s38, s38, 4096")
        for j in range(2):
            e(f"s_waitcnt vmcnt({4*(1-j)})")
            c = ACC + (j * 2 + keep) * 16
            for r in range(16):
                e(f"v_add_f32 v{c+r}, v{c+r}, v{RX+16*j+r}")
            P = 32 + 8 * j
            for i in range(8):
                e(f"v_cvt_pk_bf16_f32 v{P+i}, v{c+2*i}, v{c+2*i+1}")
            e("s_nop 1")
            e(f"v_permlane32_swap_b32 v{P+0}, v{P+2}")
            e(f"v_permlane32_swap_b32 v{P+1}, v{P+3}")
            e(f"v_permlane32_swap_b32 v{P+4}, v{P+6}")
            e(f"v_permlane32_swap_b32 v{P+5}, v{P+7}")
            e(f"buffer_store_dwordx4 v[{P}:{P+3}], v6, s[68:71], s47 offen offset:{64*j}")
            e(f"buffer_store_dwordx4 v[{P+4}:{P+7}], v6, s[68:71], s47 offen offset:{64*j+32}")
        if sp == 0:
            e("s_branch K3_FIN")
    e.label("K3_FIN")
    if "fine" in EXP:
        e("s_waitcnt lgkmcnt(0)")
        for i in range(7):
            e(f"v_mov_b32 v{48+2*i}, s{STP[i]}")
            e(f"v_mov_b32 v{49+2*i}, s{STP[i]+1}")
        e("s_lshl_b32 s3, s2, 8")
        e("s_lshl_b32 s64, s35, 6")
        e("s_add_u32 s3, s3, s64")
        e(f"s_add_u32 s3, s3, {201<<20}")
        e("v_mov_b32 v3, 0")
        e("v_cmp_eq_u32 vcc, 0, v2")
        e("s_and_saveexec_b64 s[64:65], vcc")
        for i in range(4):
            e(f"buffer_store_dwordx4 v[{48+4*i}:{51+4*i}], v3, s[28:31], s3 offen offset:{16*i}")
        e("s_mov_b64 exec, s[64:65]")
    if "stamp3" in EXP:
        stamp_end(e, 28, 35, 2)
    e.label("K3_END")
    e("s_endpgm")
    return kn, e.text(), kernel_desc(kn, 360, 256), (256, 256, 135168)


def gen_k4():
    e = E()
    kn = "k4_comb_kernel"
    e.raw(f".globl {kn}\n.p2align 8\n.type {kn},@function")
    e.label(kn)
    e("s_cmp_ge_u32 s2, 512")
    e("s_cbranch_scc1 K4_END")
    e("s_load_dwordx2 s[64:65], s[0:1], 64")
    e("s_load_dwordx2 s[72:73], s[0:1], 80")
    e("v_lshrrev_b32 v1, 6, v0")
    e("v_and_b32 v2, 63, v0")
    e("v_readfirstlane_b32 s35, v1")
    e("s_waitcnt lgkmcnt(0)")
    srd(e, 28, 72, 73, 0x10000000)
    srd(e, 4, 64, 65, 2048 * 2048)
    e("s_lshl_b32 s3, s2, 2")
    e("s_add_u32 s3, s3, s35")
    e("s_lshl_b32 s3, s3, 12")
    e(f"s_add_u32 s3, s3, {P_OFF}")
    e(f"s_add_u32 s36, s3, {1<<23}")
    e("v_lshlrev_b32 v3, 4, v2")
    for rg in range(4):
        e(f"buffer_load_dwordx4 v[{16+4*rg}:{19+4*rg}], v3, s[28:31], s3 offen offset:{rg*1024}")
        e(f"buffer_load_dwordx4 v[{32+4*rg}:{35+4*rg}], v3, s[28:31], s36 offen offset:{rg*1024}")
    e("s_lshr_b32 s37, s2, 5")
    e("s_bfe_u32 s38, s2, 0x30002")
    e("s_bfe_u32 s39, s2, 0x10001")
    e("s_and_b32 s40, s2, 1")
    e("s_lshl_b32 s37, s37, 7")
    e("s_lshl_b32 s39, s39, 6")
    e("s_add_u32 s37, s37, s39")
    e("s_and_b32 s41, s35, 1")
    e("s_lshl_b32 s41, s41, 5")
    e("s_add_u32 s37, s37, s41")
    e("s_lshl_b32 s37, s37, 11")
    e("s_lshl_b32 s38, s38, 8")
    e("s_lshl_b32 s40, s40, 7")
    e("s_add_u32 s38, s38, s40")
    e("s_lshr_b32 s41, s35, 1")
    e("s_lshl_b32 s41, s41, 6")
    e("s_add_u32 s38, s38, s41")
    e("s_add_u32 s37, s37, s38")
    e("v_and_b32 v4, 31, v2")
    e("v_lshlrev_b32 v4, 11, v4")
    e("v_lshrrev_b32 v5, 5, v2")
    e("v_lshl_add_u32 v4, v5, 4, v4")
    e("s_waitcnt vmcnt(0)")
    for r in range(16):
        e(f"v_add_f32 v{16+r}, v{16+r}, v{32+r}")
    P = 48
    for i in range(8):
        e(f"v_cvt_pk_bf16_f32 v{P+i}, v{16+2*i}, v{16+2*i+1}")
    e("s_nop 1")
    e(f"v_permlane32_swap_b32 v{P+0}, v{P+2}")
    e(f"v_permlane32_swap_b32 v{P+1}, v{P+3}")
    e(f"v_permlane32_swap_b32 v{P+4}, v{P+6}")
    e(f"v_permlane32_swap_b32 v{P+5}, v{P+7}")
    e(f"buffer_store_dwordx4 v[{P}:{P+3}], v4, s[4:7], s37 offen")
    e(f"buffer_store_dwordx4 v[{P+4}:{P+7}], v4, s[4:7], s37 offen offset:32")
    e.label("K4_END")
    e("s_endpgm")
    return kn, e.text(), kernel_desc(kn, 64, 64), (512, 256, 0)


def main():
    kernels = [gen_k1(), gen_k3()]
    which = sys.argv[2] if len(sys.argv) > 2 else None
    out = []
    for kn, _, _, (g, b, lds) in kernels:
        out.append(f"; @launch kernel={kn} grid=({g},1,1) block=({b},1,1) lds={lds}")
    out.append('.amdgcn_target "amdgcn-amd-amdhsa--gfx950"')
    out.append(".text")
    for kn, body, desc, _ in kernels:
        out.append(body)
        out.append(desc)
    open(sys.argv[1], "w").write("\n".join(out))


if __name__ == "__main__":
    main()
```

```python
import sys, os
EXP = os.environ.get("EXP", "")
MODE = int(os.environ.get("MODE", "1"))

NAME = "gated_mix__linear_attn_block__glu_gated_bilinear__prompt"

PQ_OFF = 0
A2_OFF = 4 << 20
KVP_OFF = 24 << 20
G_OFF = 27 << 20
P_OFF = 28 << 20
FLG_OFF = (27 << 20) + 65536
A2_LD = 4608 * 2

LOG2E = 0x3fb8aa3b
EPS6 = 0x358637bd


class E:
    def __init__(self):
        self.lines = []
        self.vmlog = []
        self.tag = None

    def __call__(self, s):
        self.lines.append("    " + s)
        if s.startswith("buffer_"):
            self.vmlog.append(self.tag)

    def vm_needed(self, tags):
        last = -1
        for i, t in enumerate(self.vmlog):
            if t in tags:
                last = i
        return len(self.vmlog) - 1 - last

    def capture(self, fn):
        saved, savedlog = self.lines, self.vmlog
        self.lines, self.vmlog = [], []
        fn()
        out, self.lines, self.vmlog = self.lines, saved, savedlog
        groups, cur = [], None
        for l in out:
            l = l.strip()
            if l == "{":
                cur = []
            elif l == "}":
                groups.append(cur)
                cur = None
            elif cur is not None:
                cur.append(l)
            else:
                groups.append([l])
        return groups

    def label(self, s):
        self.lines.append(s + ":")

    def raw(self, s):
        self.lines.append(s)

    def text(self):
        return "\n".join(self.lines) + "\n"


def srd(e, d, base_lo, base_hi, nbytes):
    e(f"s_mov_b32 s{d}, s{base_lo}")
    e(f"s_and_b32 s{d+1}, s{base_hi}, 0xffff")
    e(f"s_mov_b32 s{d+2}, {nbytes:#x}")
    e(f"s_mov_b32 s{d+3}, 0x00020000")


def kernel_desc(name, vgpr, accum, sgpr=102):
    return f""".section .rodata,"a"
.p2align 6
.amdhsa_kernel {name}
  .amdhsa_next_free_vgpr {vgpr}
  .amdhsa_next_free_sgpr {sgpr}
  .amdhsa_accum_offset {accum}
  .amdhsa_group_segment_fixed_size 0
  .amdhsa_kernarg_size 88
  .amdhsa_user_sgpr_count 2
  .amdhsa_user_sgpr_kernarg_segment_ptr 1
  .amdhsa_system_sgpr_workgroup_id_x 1
.end_amdhsa_kernel
.text
"""


def interleave(e, mfmas, fillers, per_gap=None, start=0):
    n = len(mfmas)
    fi = 0
    nf = len(fillers)
    for i, m in enumerate(mfmas):
        e(m)
        if i < start:
            continue
        if per_gap is None:
            tgt = nf * (i + 1 - start) // max(1, (n - start))
        else:
            tgt = min(nf, per_gap * (i + 1 - start))
        while fi < tgt:
            for s in fillers[fi]:
                e(s)
            fi += 1
    while fi < nf:
        for s in fillers[fi]:
            e(s)
        fi += 1


def stamp_end(e, srd_ws, wave_sgpr, lane_v):
    e("s_waitcnt vmcnt(0)")
    e("s_memtime s[86:87]")
    e("s_memrealtime s[90:91]")
    e("s_waitcnt lgkmcnt(0)")
    for i in range(12):
        e(f"v_mov_b32 v{32+i}, s{80+i}")
    e("s_lshl_b32 s3, s2, 8")
    e(f"s_lshl_b32 s92, s{wave_sgpr}, 6")
    e("s_add_u32 s3, s3, s92")
    e(f"s_add_u32 s3, s3, {200<<20}")
    e("v_mov_b32 v3, 0")
    e(f"v_cmp_eq_u32 vcc, 0, v{lane_v}")
    e("s_and_saveexec_b64 s[92:93], vcc")
    for i in range(3):
        e(f"buffer_store_dwordx4 v[{32+4*i}:{35+4*i}], v3, s[{srd_ws}:{srd_ws+3}], s3 offen offset:{16*i}")


def gen_k1():
    e = E()
    kn = "k1_gemm1_kernel"
    STG = 36864
    BOFF = 16384
    NS = 4
    e.raw(f".globl {kn}\n.p2align 8\n.type {kn},@function")
    e.label(kn)
    e("s_cmp_ge_u32 s2, 256")
    e("s_cbranch_scc1 K1_END")
    if "stamp" in EXP:
        e("s_memtime s[80:81]")
        e("s_memrealtime s[88:89]")
    e("s_load_dwordx4 s[64:67], s[0:1], 0")
    e("s_load_dwordx4 s[68:71], s[0:1], 32")
    e("s_load_dwordx2 s[72:73], s[0:1], 80")
    e("s_load_dwordx2 s[96:97], s[0:1], 16")
    e("s_load_dwordx2 s[98:99], s[0:1], 48")
    e("s_and_b32 s3, s2, 7")
    e("s_lshr_b32 s32, s2, 3")
    e("s_and_b32 s33, s32, 7")
    e("s_lshr_b32 s32, s32, 3")
    e("s_lshl_b32 s3, s3, 2")
    e("s_add_u32 s34, s3, s32")
    e("v_lshrrev_b32 v1, 6, v0")
    e("v_and_b32 v2, 63, v0")
    e("v_readfirstlane_b32 s35, v1")
    e("s_and_b32 s37, s34, 1")
    e("s_lshr_b32 s38, s34, 1")
    e("s_mul_i32 s39, s38, 7")
    e("s_lshl_b32 s40, s37, 2")
    e("s_add_u32 s40, s39, s40")
    e("s_add_u32 s41, s39, 3")
    e("s_lshl_b32 s42, s34, 6")
    e("s_add_u32 s48, s42, 2048")
    e("s_add_u32 s49, s42, 4096")
    e("s_lshl_b32 s43, s38, 7")
    e("s_add_u32 s47, s43, 64")
    e("s_lshl_b32 s44, s41, 6")
    e("s_cmp_eq_u32 s37, 0")
    e("s_cselect_b32 s50, s43, s44")
    e("s_cselect_b32 s51, s47, s44")
    e(f"s_mov_b32 s58, {32*7168}")
    e(f"s_cselect_b32 s58, {32*6144}, s58")
    e("s_lshl_b32 s44, s40, 6")
    for j in range(3):
        e(f"s_add_u32 s{52+2*j}, s44, {64*j}")
        e(f"s_add_u32 s{53+2*j}, s44, {64*j}")
    e("s_lshr_b32 s36, s35, 1")
    e("s_cmp_eq_u32 s36, 0")
    for i in range(5):
        e(f"s_cselect_b32 s{74+i}, s{48+2*i}, s{49+2*i}")
    e("s_waitcnt lgkmcnt(0)")
    e("s_lshl_b32 s3, s33, 19")
    e("s_add_u32 s64, s64, s3")
    e("s_addc_u32 s65, s65, 0")
    srd(e, 4, 64, 65, 256 * 2048)
    srd(e, 8, 66, 67, 1024 * 6144)
    srd(e, 12, 68, 69, 1024 * 7168)
    srd(e, 16, 70, 71, 1024 * 7168)
    srd(e, 28, 72, 73, 0x10000000)
    e("s_cmp_eq_u32 s36, 0")
    for i in range(4):
        e(f"s_cselect_b32 s{20+i}, s{12+i}, s{16+i}")
    e("s_cmp_eq_u32 s37, 0")
    for i in range(4):
        e(f"s_cselect_b32 s{24+i}, s{8+i}, s{20+i}")
    if "nostag" in EXP:
        e("s_mov_b32 s79, 0")
    else:
        e("s_lshl_b32 s79, s33, 2")
        e("s_and_b32 s3, s34, 3")
        e("s_add_u32 s79, s79, s3")
    e("s_lshl_b32 s59, s79, 6")
    e(f"s_mul_i32 s60, s79, {32*6144}")
    e(f"s_mul_i32 s61, s79, {32*7168}")
    e("s_mul_i32 s62, s79, s58")
    e("s_lshl_b32 s45, s35, 12")
    e("s_lshl_b32 s46, s35, 10")
    e(f"s_add_u32 s46, s46, {BOFF}")
    e("v_lshrrev_b32 v3, 2, v2")
    e("v_lshlrev_b32 v4, 6, v1")
    e("v_add_u32 v4, v3, v4")
    e("v_lshlrev_b32 v4, 11, v4")
    e("v_lshrrev_b32 v5, 4, v2")
    e("v_lshlrev_b32 v7, 1, v5")
    e("v_and_b32 v7, 3, v7")
    e("v_lshrrev_b32 v5, 1, v5")
    e("v_mul_u32_u24 v5, 3, v5")
    e("v_xor_b32 v5, v5, v7")
    e("v_and_b32 v6, 3, v2")
    e("v_xor_b32 v7, v6, v5")
    e("v_lshl_add_u32 v10, v7, 4, v4")
    e("v_and_b32 v4, 1, v1")
    e("v_lshlrev_b32 v4, 4, v4")
    e("v_add_u32 v3, v3, v4")
    e("v_lshrrev_b32 v4, 5, v2")
    e("v_lshlrev_b32 v4, 1, v4")
    e("v_xor_b32 v4, v4, v6")
    e("v_lshlrev_b32 v4, 4, v4")
    e("s_movk_i32 s3, 6144")
    e("v_mul_lo_u32 v11, v3, s3")
    e("v_add_u32 v11, v11, v4")
    e("s_movk_i32 s3, 7168")
    e("v_mul_lo_u32 v12, v3, s3")
    e("v_add_u32 v12, v12, v4")
    e("s_cmp_eq_u32 s37, 0")
    e("s_cselect_b64 vcc, -1, 0")
    e("s_nop 1")
    e("v_cndmask_b32 v13, v12, v11, vcc")

    dsrd = [8, 24, 20, 20, 20]
    dvoff = [11, 13, 12, 12, 12]
    dkrun = [60, 62, 61, 61, 61]

    def dma_groups(stage):
        g = []
        for i in range(4):
            g.append([f"s_add_u32 m0, s45, {stage*STG + i*1024}",
                      f"s_add_u32 s3, s59, {i*32768}",
                      f"buffer_load_dwordx4 v10, s[4:7], s3 offen lds"])
        for i in range(5):
            g.append([f"s_add_u32 m0, s46, {stage*STG + i*4096}",
                      f"s_add_u32 s3, s{dkrun[i]}, s{74+i}",
                      f"buffer_load_dwordx4 v{dvoff[i]}, s[{dsrd[i]}:{dsrd[i]+3}], s3 offen lds"])
        g[-1] = g[-1] + ["s_add_u32 s79, s79, 1",
                         "s_and_b32 s79, s79, 31",
                         "s_lshl_b32 s59, s79, 6",
                         f"s_mul_i32 s60, s79, {32*6144}",
                         f"s_mul_i32 s61, s79, {32*7168}",
                         "s_mul_i32 s62, s79, s58"]
        order = [0, 4, 1, 5, 2, 6, 3, 7, 8]
        return [g[i] for i in order]

    if "dopf" in EXP:
        e("v_lshlrev_b32 v3, 4, v0")
        e("s_lshl_b32 s3, s34, 14")
        n = 0
        for (sr, per, base) in ((4, 4, "s3"), (8, 6, None), (12, 7, None), (16, 7, None)):
            if base is None:
                e(f"s_mul_i32 s3, s2, {per*4096}")
            for i in range(per):
                e(f"buffer_load_dwordx4 a[{96+4*n}:{99+4*n}], v3, s[{sr}:{sr+3}], s3 offen")
                if i + 1 < per:
                    e("s_add_u32 s3, s3, 4096")
                n += 1
    for st in range(NS):
        for g in dma_groups(st):
            for s in g:
                e(s)

    e("v_and_b32 v3, 15, v2")
    e("v_lshlrev_b32 v4, 6, v1")
    e("v_add_u32 v4, v4, v3")
    e("v_lshlrev_b32 v4, 6, v4")
    e("v_lshrrev_b32 v5, 2, v3")
    e("v_lshlrev_b32 v7, 1, v5")
    e("v_and_b32 v7, 3, v7")
    e("v_lshrrev_b32 v5, 1, v5")
    e("v_mul_u32_u24 v5, 3, v5")
    e("v_xor_b32 v5, v5, v7")
    e("v_lshrrev_b32 v6, 4, v2")
    e("v_xor_b32 v7, v6, v5")
    e("v_lshl_add_u32 v14, v7, 4, v4")
    for q in range(1, NS):
        e(f"v_add_u32 v{14+q}, {q*STG}, v14")
    e("v_lshrrev_b32 v3, 5, v2")
    e("v_lshlrev_b32 v3, 10, v3")
    e("v_bfe_u32 v4, v2, 4, 1")
    e("v_lshl_add_u32 v3, v4, 9, v3")
    e("v_bfe_u32 v5, v2, 2, 2")
    e("v_lshl_add_u32 v3, v5, 6, v3")
    e("v_lshl_add_u32 v3, v4, 5, v3")
    e("v_and_b32 v5, 3, v2")
    e("v_lshl_add_u32 v3, v5, 3, v3")
    e("v_xor_b32 v4, 32, v3")
    for q in range(NS):
        e(f"v_add_u32 v{18+2*q}, {BOFF+q*STG}, v3")
        e(f"v_add_u32 v{19+2*q}, {BOFF+q*STG}, v4")

    AF = 96
    BF = 128

    def base(b):
        return ("a", 32 * b) if b < 3 else ("v", 32 + 32 * (b - 3))

    def tile(rb, cb):
        k, o = base(cb >> 1)
        o += rb * 8 + (cb & 1) * 4
        return f"{k}[{o}:{o+3}]"

    for r in range(96):
        e(f"v_accvgpr_write_b32 a{r}, 0")
    for r in range(32, 256):
        e(f"v_mov_b32 v{r}, 0")

    def a_reads(stage, abuf):
        return [[f"ds_read_b128 a[{AF+abuf*16+rb*4}:{AF+abuf*16+rb*4+3}], v{14+stage} offset:{rb*1024}"] for rb in range(4)]

    def b_reads(stage, half):
        g = []
        for i in range(10):
            cb = half * 10 + i
            d = BF + half * 40 + i * 4
            vb = 18 + 2 * stage + (cb & 1)
            o = (cb >> 1) * 2048
            g.append([f"ds_read_b64_tr_b16 a[{d}:{d+1}], v{vb} offset:{o}"])
            g.append([f"ds_read_b64_tr_b16 a[{d+2}:{d+3}], v{vb} offset:{o+256}"])
        return g

    def mfmas(half, abuf):
        m = []
        for i in range(10):
            cb = half * 10 + i
            for rb in range(4):
                a = AF + abuf * 16 + rb * 4
                bb = BF + half * 40 + i * 4
                t = tile(rb, cb)
                if cb < 4:
                    m.append(f"v_mfma_f32_16x16x32_bf16 {t}, a[{a}:{a+3}], a[{bb}:{bb+3}], {t}")
                else:
                    m.append(f"v_mfma_f32_16x16x32_bf16 {t}, a[{bb}:{bb+3}], a[{a}:{a+3}], {t}")
        return m

    def merge(reads, dmas, nm):
        slots = [[] for _ in range(nm)]
        flat = [x for g in dmas for x in g]
        nr = len(reads)
        if MODE == 0:
            for i, g in enumerate(reads):
                slots[i].append(g)
            free = nm - nr
            for j, x in enumerate(flat):
                slots[min(nm - 1, nr + (j * free) // max(1, len(flat)))].append([x])
        else:
            for i, g in enumerate(reads):
                slots[min(nm - 1, (i * 3) // 2)].append(g)
            used = [len(x) for x in slots]
            pos = [i for i in range(nm) if used[i] == 0]
            for j, x in enumerate(flat):
                slots[pos[min(len(pos) - 1, (j * len(pos)) // max(1, len(flat)))]].append([x])
        return slots

    def emit_sub(mf, slots):
        for m, sl in zip(mf, slots):
            e(m)
            for g in sl:
                for s in g:
                    e(s)

    def k32step(q, dma_first, dma_second, wait_n, last):
        nodma = "nodma" in EXP
        ab = q & 1
        d0 = dma_groups((q - 1) % NS)[5:] if (dma_first and not nodma) else []
        e("s_waitcnt lgkmcnt(0)")
        emit_sub(mfmas(0, ab), merge(b_reads(q, 1), d0, 40))
        if not last:
            e(f"s_waitcnt vmcnt({wait_n}) lgkmcnt(0)")
            e("s_barrier")
        else:
            e("s_waitcnt lgkmcnt(0)")
        d1 = dma_groups(q)[:5] if (dma_second and not nodma) else []
        rd = (a_reads((q + 1) % NS, ab ^ 1) + b_reads((q + 1) % NS, 0)) if not last else []
        emit_sub(mfmas(1, ab), merge(rd, d1, 40))

    e("s_waitcnt vmcnt(27)")
    e("s_barrier")
    for g in a_reads(0, 0) + b_reads(0, 0):
        for s in g:
            e(s)
    e("s_mov_b32 s63, 0")
    if "stamp" in EXP:
        e("s_memtime s[82:83]")
    k32step(0, False, True, 18, False)
    e.label("K1_LOOP")
    for j in range(4):
        k32step((1 + j) % NS, True, True, 18, False)
    e("s_add_u32 s63, s63, 1")
    e("s_cmp_lt_u32 s63, 6")
    e("s_cbranch_scc1 K1_LOOP")
    k32step(1, True, True, 18, False)
    k32step(2, True, True, 18, False)
    k32step(3, True, True, 18, False)
    k32step(0, True, False, 18, False)
    k32step(1, False, False, 9, False)
    k32step(2, False, False, 0, False)
    k32step(3, False, False, 0, True)
    e("s_nop 15")

    if "stamp" in EXP:
        e("s_memtime s[84:85]")
    e("v_mov_b32 v3, 0")
    e("v_lshlrev_b32 v4, 2, v0")
    e("s_lshl_b32 s3, s2, 7")
    e(f"s_add_u32 s3, s3, {FLG_OFF}")
    e("v_cmp_gt_u32 vcc, 32, v0")
    e("s_and_saveexec_b64 s[92:93], vcc")
    e("buffer_store_dword v3, v4, s[28:31], s3 offen")
    e("s_mov_b64 exec, s[92:93]")
    if "nopf3" not in EXP:
        srd(e, 8, 96, 97, 1024 * 2048)
        srd(e, 12, 98, 99, 3584 * 2048)
        e("v_lshlrev_b32 v3, 4, v0")
        e("s_lshl_b32 s3, s2, 13")
        for i in range(2):
            e(f"buffer_load_dwordx4 a[{96+4*i}:{99+4*i}], v3, s[8:11], s3 offen")
            e("s_add_u32 s3, s3, 4096")
        e("s_mul_i32 s3, s2, 28672")
        for i in range(7):
            e(f"buffer_load_dwordx4 a[{104+4*i}:{107+4*i}], v3, s[12:15], s3 offen")
            e("s_add_u32 s3, s3, 4096")
    e("v_and_b32 v3, 15, v2")
    e("v_lshlrev_b32 v4, 6, v1")
    e("v_add_u32 v3, v3, v4")
    e("v_bfe_u32 v5, v2, 4, 1")
    e("v_lshlrev_b32 v5, 5, v5")
    e("v_lshrrev_b32 v4, 5, v2")
    e("v_lshl_add_u32 v5, v4, 4, v5")
    e(f"s_movk_i32 s3, {A2_LD}")
    e("v_mul_lo_u32 v26, v3, s3")
    e("v_add_u32 v26, v26, v5")
    e("v_lshlrev_b32 v27, 11, v3")
    e("v_add_u32 v27, v27, v5")
    e(f"s_mul_i32 s64, s33, {256*A2_LD}")
    e(f"s_add_u32 s64, s64, {A2_OFF + 2048}")
    e("s_lshl_b32 s65, s33, 19")
    e(f"s_add_u32 s65, s65, {PQ_OFF}")

    def pack_store(src, dst, vaddr, sbase, scol, ld):
        for rb in range(4):
            for i in range(4):
                e(f"v_cvt_pk_bf16_f32 v{dst+4*rb+i}, v{src+8*rb+2*i}, v{src+8*rb+2*i+1}")
        e("s_nop 0")
        for rb in range(4):
            e(f"v_permlane16_swap_b32 v{dst+4*rb}, v{dst+4*rb+2}")
            e(f"v_permlane16_swap_b32 v{dst+4*rb+1}, v{dst+4*rb+3}")
        e(f"s_add_u32 s3, {sbase}, {scol}")
        for rb in range(4):
            e(f"buffer_store_dwordx4 v[{dst+4*rb}:{dst+4*rb+3}], v{vaddr}, s[28:31], s3 offen")
            if rb < 3:
                e(f"s_add_u32 s3, s3, {16*ld}")

    def glu_v(bg, scol):
        _, G = base(bg)
        _, U = base(bg + 1)
        for i in range(16):
            e(f"v_pk_mul_f32 v[{G+2*i}:{G+2*i+1}], v[{G+2*i}:{G+2*i+1}], v[{U+2*i}:{U+2*i+1}]")
        pack_store(G, U, 26, "s64", scol, A2_LD)

    glu_v(8, "s56")
    glu_v(6, "s54")
    T = 192
    T2 = 128
    PK = 240
    PV = 176
    ONES = 28
    for i in range(4):
        e(f"v_mov_b32 v{ONES+i}, 0x3f803f80")
    for r in range(32):
        e(f"v_accvgpr_read_b32 v{T+r}, a{r}")
    for r in range(32):
        e(f"v_mul_f32 v{T2+r}, {LOG2E:#x}, v{T+r}")
    for r in range(32):
        e(f"v_min_f32 v{T2+r}, 0, v{T2+r}")
    for r in range(32):
        e(f"v_exp_f32 v{T2+r}, v{T2+r}")
    for r in range(32):
        e(f"v_max_f32 v{T+r}, 0, v{T+r}")
    for r in range(32):
        e(f"v_add_f32 v{T+r}, {EPS6:#x}, v{T+r}")
    for r in range(32):
        e(f"v_add_f32 v{T+r}, v{T+r}, v{T2+r}")

    def kvpack(dst):
        for m in range(2):
            for h in range(2):
                for rr in range(2):
                    o = T + (2 * m + rr) * 8 + h * 4
                    d = dst + (m * 2 + h) * 4 + rr * 2
                    e(f"v_cvt_pk_bf16_f32 v{d}, v{o}, v{o+1}")
                    e(f"v_cvt_pk_bf16_f32 v{d+1}, v{o+2}, v{o+3}")
    kvpack(PK)
    for r in range(32):
        e(f"v_accvgpr_read_b32 v{T+r}, a{32+r}")
    kvpack(PV)
    e("s_nop 1")
    KVA = T2
    for m in range(2):
        for dh in range(2):
            pa = PK + (m * 2 + dh) * 4
            for eh in range(2):
                pb = PV + (m * 2 + eh) * 4
                t = KVA + (dh * 2 + eh) * 4
                c = "0" if m == 0 else f"v[{t}:{t+3}]"
                e(f"v_mfma_f32_16x16x32_bf16 v[{t}:{t+3}], v[{pa}:{pa+3}], v[{pb}:{pb+3}], {c}")
            t = KVA + 16 + dh * 4
            c = "0" if m == 0 else f"v[{t}:{t+3}]"
            e(f"v_mfma_f32_16x16x32_bf16 v[{t}:{t+3}], v[{pa}:{pa+3}], v[{ONES}:{ONES+3}], {c}")
    e("s_barrier")
    e("v_lshlrev_b32 v3, 4, v2")
    e("v_lshlrev_b32 v4, 13, v1")
    e("v_add_u32 v3, v3, v4")
    e("s_nop 7")
    for t in range(4):
        e(f"ds_write_b128 v3, v[{KVA+4*t}:{KVA+4*t+3}] offset:{t*1024}")
    for t in range(4):
        z = KVA + 16 + (t >> 1) * 4
        e(f"ds_write_b128 v3, v[{z}:{z+3}] offset:{4096+t*1024}")
    glu_v(4, "s52")
    for r in range(32):
        e(f"v_accvgpr_read_b32 v{T+r}, a{64+r}")
    e("s_cmp_eq_u32 s37, 0")
    e("s_cbranch_scc0 K1_SLOT1_GLU")
    pack_store(T, 64, 27, "s65", "s50", 2048)
    pack_store(32, 80, 27, "s65", "s51", 2048)
    e("s_branch K1_SLOT1_DONE")
    e.label("K1_SLOT1_GLU")
    for i in range(16):
        e(f"v_pk_mul_f32 v[{T+2*i}:{T+2*i+1}], v[{T+2*i}:{T+2*i+1}], v[{32+2*i}:{32+2*i+1}]")
    pack_store(T, 64, 26, "s64", "s50", A2_LD)
    e.label("K1_SLOT1_DONE")

    e("s_waitcnt lgkmcnt(0)")
    e("s_barrier")
    e("v_lshlrev_b32 v3, 4, v0")
    R = 160
    for w in range(4):
        e(f"ds_read_b128 v[{R+4*w}:{R+4*w+3}], v3 offset:{w*8192}")
        e(f"ds_read_b128 v[{R+16+4*w}:{R+16+4*w+3}], v3 offset:{w*8192+4096}")
    e("s_waitcnt lgkmcnt(0)")
    for half in range(2):
        b = R + 16 * half
        for i in range(4):
            e(f"v_add_f32 v{b+i}, v{b+i}, v{b+4+i}")
            e(f"v_add_f32 v{b+8+i}, v{b+8+i}, v{b+12+i}")
        for i in range(4):
            e(f"v_add_f32 v{b+i}, v{b+i}, v{b+8+i}")
    e("s_lshl_b32 s3, s34, 3")
    e("s_add_u32 s3, s3, s33")
    e("s_lshl_b32 s3, s3, 13")
    e(f"s_add_u32 s3, s3, {KVP_OFF}")
    e(f"buffer_store_dwordx4 v[{R}:{R+3}], v3, s[28:31], s3 offen")
    e("s_add_u32 s3, s3, 4096")
    e(f"buffer_store_dwordx4 v[{R+16}:{R+19}], v3, s[28:31], s3 offen")
    if "stamp" in EXP:
        stamp_end(e, 28, 35, 2)
    e.label("K1_END")
    e("s_endpgm")
    return kn, e.text(), kernel_desc(kn, 464, 256), (256, 256, 147456)


def gen_k2():
    e = E()
    kn = "k2_attn_kernel"
    e.raw(f".globl {kn}\n.p2align 8\n.type {kn},@function")
    e.label(kn)
    e("s_cmp_ge_u32 s2, 512")
    e("s_cbranch_scc1 K2_END")
    e("s_cmp_ge_u32 s2, 256")
    e("s_cbranch_scc0 K2_MAIN")
    e("s_load_dwordx2 s[64:65], s[0:1], 16")
    e("s_load_dwordx2 s[66:67], s[0:1], 48")
    e("s_sub_u32 s3, s2, 256")
    e("v_lshlrev_b32 v1, 4, v0")
    e("s_waitcnt lgkmcnt(0)")
    srd(e, 4, 64, 65, 1024 * 2048)
    srd(e, 8, 66, 67, 3584 * 2048)
    e("s_lshl_b32 s32, s3, 13")
    e("s_mul_i32 s33, s3, 28672")
    for i in range(2):
        e(f"buffer_load_dwordx4 v[{4+4*i}:{7+4*i}], v1, s[4:7], s32 offen")
        e("s_add_u32 s32, s32, 4096")
    for i in range(7):
        e(f"buffer_load_dwordx4 v[{12+4*i}:{15+4*i}], v1, s[8:11], s33 offen")
        e("s_add_u32 s33, s33, 4096")
    e("s_waitcnt vmcnt(0)")
    e("s_branch K2_END")
    e.label("K2_MAIN")
    e("s_load_dwordx2 s[64:65], s[0:1], 0")
    e("s_load_dwordx2 s[66:67], s[0:1], 56")
    e("s_load_dwordx2 s[72:73], s[0:1], 80")
    e("s_and_b32 s33, s2, 31")
    e("s_lshr_b32 s34, s2, 5")
    e("v_lshrrev_b32 v1, 6, v0")
    e("v_and_b32 v2, 63, v0")
    e("v_readfirstlane_b32 s35, v1")
    e("s_waitcnt lgkmcnt(0)")
    srd(e, 4, 64, 65, 2048 * 2048)
    srd(e, 8, 66, 67, 2048)
    srd(e, 28, 72, 73, 0x10000000)
    e("v_and_b32 v3, 31, v2")
    e("v_lshlrev_b32 v4, 6, v1")
    e("v_add_u32 v3, v3, v4")
    e("v_lshrrev_b32 v5, 5, v2")
    e("v_lshlrev_b32 v5, 4, v5")
    e("v_lshlrev_b32 v6, 11, v3")
    e("v_add_u32 v6, v6, v5")
    e("s_lshl_b32 s36, s34, 19")
    e("s_lshl_b32 s37, s33, 6")
    e("s_add_u32 s36, s36, s37")
    e(f"s_add_u32 s36, s36, {PQ_OFF}")
    e(f"s_add_u32 s38, s36, {32*2048}")
    Q = 32
    e(f"buffer_load_dwordx4 v[{Q}:{Q+3}], v6, s[28:31], s36 offen")
    e(f"buffer_load_dwordx4 v[{Q+4}:{Q+7}], v6, s[28:31], s36 offen offset:32")
    e(f"buffer_load_dwordx4 v[{Q+8}:{Q+11}], v6, s[28:31], s38 offen")
    e(f"buffer_load_dwordx4 v[{Q+12}:{Q+15}], v6, s[28:31], s38 offen offset:32")
    e("v_lshlrev_b32 v7, 4, v0")
    e("s_lshl_b32 s39, s33, 16")
    e(f"s_add_u32 s39, s39, {KVP_OFF}")
    PL = 64
    for rt in range(8):
        e(f"s_add_u32 s3, s39, {rt*8192}")
        e(f"buffer_load_dwordx4 v[{PL+8*rt}:{PL+8*rt+3}], v7, s[28:31], s3 offen")
        e(f"s_add_u32 s3, s39, {rt*8192+4096}")
        e(f"buffer_load_dwordx4 v[{PL+8*rt+4}:{PL+8*rt+7}], v7, s[28:31], s3 offen")
    e("v_lshlrev_b32 v8, 5, v2")
    e("s_lshl_b32 s40, s2, 3")
    e("s_lshl_b32 s41, s35, 1")
    e("s_add_u32 s40, s40, s41")
    e("s_lshl_b32 s41, s40, 11")
    e("s_add_u32 s42, s41, 2048")
    GX = 128
    e(f"buffer_load_dwordx4 v[{GX}:{GX+3}], v8, s[4:7], s41 offen")
    e(f"buffer_load_dwordx4 v[{GX+4}:{GX+7}], v8, s[4:7], s41 offen offset:16")
    e(f"buffer_load_dwordx4 v[{GX+8}:{GX+11}], v8, s[4:7], s42 offen")
    e(f"buffer_load_dwordx4 v[{GX+12}:{GX+15}], v8, s[4:7], s42 offen offset:16")
    e(f"buffer_load_dwordx4 v[{GX+16}:{GX+19}], v8, s[8:11], 0 offen")
    e(f"buffer_load_dwordx4 v[{GX+20}:{GX+23}], v8, s[8:11], 0 offen offset:16")
    e("s_waitcnt vmcnt(22)")
    PQ = 48
    T = 160
    for blk in range(2):
        for i in range(8):
            src = Q + 8 * blk + i
            e(f"v_lshlrev_b32 v{T+2*i}, 16, v{src}")
            e(f"v_and_b32 v{T+2*i+1}, 0xffff0000, v{src}")
        for r in range(16):
            e(f"v_mul_f32 v{T+16+r}, {LOG2E:#x}, v{T+r}")
        for r in range(16):
            e(f"v_min_f32 v{T+16+r}, 0, v{T+16+r}")
        for r in range(16):
            e(f"v_exp_f32 v{T+16+r}, v{T+16+r}")
        for r in range(16):
            e(f"v_max_f32 v{T+r}, 0, v{T+r}")
        for r in range(16):
            e(f"v_add_f32 v{T+r}, {EPS6:#x}, v{T+r}")
        for r in range(16):
            e(f"v_add_f32 v{T+r}, v{T+r}, v{T+16+r}")
        for i in range(8):
            e(f"v_cvt_pk_bf16_f32 v{PQ+8*blk+i}, v{T+2*i}, v{T+2*i+1}")
    e("s_waitcnt vmcnt(6)")
    for rt in range(1, 8):
        for i in range(8):
            e(f"v_add_f32 v{PL+i}, v{PL+i}, v{PL+8*rt+i}")
    for i in range(4):
        e(f"v_cvt_pk_bf16_f32 v{T+i}, v{PL+2*i}, v{PL+2*i+1}")
    e("v_and_b32 v9, 31, v2")
    e("v_lshlrev_b32 v9, 6, v9")
    e("v_lshlrev_b32 v10, 4, v1")
    e("v_add_u32 v9, v9, v10")
    e("v_lshrrev_b32 v10, 5, v2")
    e("v_lshlrev_b32 v10, 3, v10")
    e("v_add_u32 v9, v9, v10")
    e(f"ds_write_b64 v9, v[{T}:{T+1}]")
    e(f"ds_write_b64 v9, v[{T+2}:{T+3}] offset:2048")
    e("s_waitcnt vmcnt(0)")
    e("v_mov_b32 v12, 0")
    e("v_mov_b32 v13, 0")
    for i in range(8):
        e(f"v_dot2_f32_bf16 v12, v{GX+i}, v{GX+16+i}, v12")
        e(f"v_dot2_f32_bf16 v13, v{GX+8+i}, v{GX+16+i}, v13")
    e("s_waitcnt lgkmcnt(0)")
    e("s_barrier")
    e("v_and_b32 v9, 31, v2")
    e("v_lshlrev_b32 v9, 6, v9")
    e("v_add_u32 v9, v9, v5")
    KA = 64
    e(f"ds_read_b128 v[{KA}:{KA+3}], v9")
    e(f"ds_read_b128 v[{KA+4}:{KA+7}], v9 offset:32")
    e(f"ds_read_b128 v[{KA+8}:{KA+11}], v9 offset:2048")
    e(f"ds_read_b128 v[{KA+12}:{KA+15}], v9 offset:2080")
    for off in (0x041F, 0x081F, 0x101F, 0x201F, 0x401F):
        e(f"ds_swizzle_b32 v14, v12 offset:{off:#x}")
        e(f"ds_swizzle_b32 v15, v13 offset:{off:#x}")
        e("s_waitcnt lgkmcnt(0)")
        e("v_add_f32 v12, v12, v14")
        e("v_add_f32 v13, v13, v15")
    e("s_nop 0")
    e("v_readlane_b32 s44, v12, 32")
    e("v_readlane_b32 s45, v13, 32")
    e("s_nop 1")
    e("v_add_f32 v12, s44, v12")
    e("v_add_f32 v13, s45, v13")
    e(f"v_mul_f32 v12, {LOG2E | 0x80000000:#x}, v12")
    e(f"v_mul_f32 v13, {LOG2E | 0x80000000:#x}, v13")
    e("v_exp_f32 v12, v12")
    e("v_exp_f32 v13, v13")
    e("s_nop 0")
    e("v_add_f32 v12, 1.0, v12")
    e("v_add_f32 v13, 1.0, v13")
    e("v_rcp_f32 v12, v12")
    e("v_rcp_f32 v13, v13")
    e("s_lshl_b32 s3, s40, 2")
    e(f"s_add_u32 s3, s3, {G_OFF}")
    e("v_mov_b32 v14, 0")
    e("v_cmp_eq_u32 vcc, 0, v2")
    e("s_and_saveexec_b64 s[46:47], vcc")
    e("buffer_store_dwordx2 v[12:13], v14, s[28:31], s3 offen")
    e("s_mov_b64 exec, s[46:47]")
    NUM = 96
    for rb in range(2):
        for m in range(2):
            b = PQ + 8 * rb + 4 * m
            n = NUM + 16 * rb
            d = NUM + 32 + 16 * rb
            c1 = "0" if m == 0 else f"v[{n}:{n+15}]"
            c2 = "0" if m == 0 else f"v[{d}:{d+15}]"
            e(f"v_mfma_f32_32x32x16_bf16 v[{n}:{n+15}], v[{KA+4*m}:{KA+4*m+3}], v[{b}:{b+3}], {c1}")
            e(f"v_mfma_f32_32x32x16_bf16 v[{d}:{d+15}], v[{KA+8+4*m}:{KA+8+4*m+3}], v[{b}:{b+3}], {c2}")
    e(f"s_movk_i32 s3, {A2_LD}")
    e("v_mul_lo_u32 v16, v3, s3")
    e("v_add_u32 v16, v16, v5")
    e(f"s_mul_i32 s48, s34, {256*A2_LD}")
    e("s_add_u32 s48, s48, s37")
    e(f"s_add_u32 s48, s48, {A2_OFF}")
    e(f"s_add_u32 s49, s48, {32*A2_LD}")
    e("s_nop 15")
    for rb in range(2):
        n = NUM + 16 * rb
        d = NUM + 32 + 16 * rb
        e(f"v_add_f32 v17, {EPS6:#x}, v{d}")
        e("v_rcp_f32 v17, v17")
        e("s_nop 0")
        for r in range(16):
            e(f"v_mul_f32 v{n+r}, v{n+r}, v17")
        P = T + 8 * rb
        for i in range(8):
            e(f"v_cvt_pk_bf16_f32 v{P+i}, v{n+2*i}, v{n+2*i+1}")
        e("s_nop 1")
        e(f"v_permlane32_swap_b32 v{P+0}, v{P+2}")
        e(f"v_permlane32_swap_b32 v{P+1}, v{P+3}")
        e(f"v_permlane32_swap_b32 v{P+4}, v{P+6}")
        e(f"v_permlane32_swap_b32 v{P+5}, v{P+7}")
        e(f"buffer_store_dwordx4 v[{P}:{P+3}], v16, s[28:31], s{48+rb} offen")
        e(f"buffer_store_dwordx4 v[{P+4}:{P+7}], v16, s[28:31], s{48+rb} offen offset:32")
    e.label("K2_END")
    e("s_endpgm")
    return kn, e.text(), kernel_desc(kn, 192, 192), (512, 256, 4096)


X_OFF = 28 << 20
O_OFF = 40 << 20


def gen_k3():
    e = E()
    kn = "k3_gemm2_kernel"
    STP = [64, 66, 40, 42, 76, 92, 94, 8]
    stn = [0]

    def stamp():
        if "fine" in EXP:
            e(f"s_memtime s[{STP[stn[0]]}:{STP[stn[0]]+1}]")
            stn[0] += 1
    STG = 32768
    BOFF = 16384
    NS = 4
    SCR = 131072
    e.raw(f".globl {kn}\n.p2align 8\n.type {kn},@function")
    e.label(kn)
    e("s_cmp_ge_u32 s2, 256")
    e("s_cbranch_scc1 K3_END")
    if "stamp3" in EXP:
        e("s_memtime s[80:81]")
        e("s_memrealtime s[88:89]")
    e("s_load_dwordx2 s[64:65], s[0:1], 16")
    e("s_load_dwordx2 s[66:67], s[0:1], 48")
    e("s_load_dwordx4 s[72:75], s[0:1], 72")
    e("s_load_dwordx2 s[76:77], s[0:1], 0")
    e("s_load_dwordx4 s[96:99], s[0:1], 56")
    e("s_and_b32 s36, s2, 1")
    e("s_bfe_u32 s3, s2, 0x20001")
    e("s_lshr_b32 s32, s2, 3")
    e("s_and_b32 s33, s32, 3")
    e("s_lshl_b32 s3, s3, 2")
    e("s_add_u32 s33, s33, s3")
    e("s_lshr_b32 s34, s32, 2")
    e("v_lshrrev_b32 v1, 6, v0")
    e("v_and_b32 v2, 63, v0")
    e("v_readfirstlane_b32 s35, v1")
    e("s_waitcnt lgkmcnt(0)")
    srd(e, 28, 74, 75, 0x10000000)
    srd(e, 16, 72, 73, 256)
    e(f"s_mul_i32 s3, s33, {128*A2_LD}")
    e(f"s_add_u32 s3, s3, {A2_OFF}")
    e("s_add_u32 s68, s74, s3")
    e("s_addc_u32 s69, s75, 0")
    srd(e, 4, 68, 69, 128 * A2_LD)
    srd(e, 8, 64, 65, 1024 * 2048)
    srd(e, 12, 66, 67, 3584 * 2048)
    for i in range(4):
        e(f"s_mov_b32 s{20+i}, s{12+i}")
    e("s_cmp_eq_u32 s36, 0")
    for i in range(3):
        e(f"s_cselect_b32 s{24+i}, s{8+i}, s{12+i}")
    e(f"s_mul_i32 s60, s36, {1280*2048}")
    e(f"s_mul_i32 s61, s36, {2560*2048}")
    e("s_lshl_b32 s3, s34, 8")
    e("s_add_u32 s60, s60, s3")
    e("s_add_u32 s61, s61, s3")
    e(f"s_mul_i32 s59, s36, {1280*2}")
    e("s_add_u32 s59, s59, 2048")
    e(f"s_mul_i32 s57, s36, {3584*2}")
    e("s_mov_b32 s62, 0")
    e("s_mov_b32 s38, s98")
    e("s_mov_b32 s39, s99")
    e("s_mov_b32 s100, s59")
    e("s_mov_b32 s101, s60")
    if "stag3" not in EXP:
        e("s_mov_b32 s99, 0")
    else:
        e("s_and_b32 s3, s33, 3")
        e("s_mul_i32 s99, s3, 5")
        e("s_lshl_b32 s3, s34, 1")
        e("s_add_u32 s99, s99, s3")
        e("s_sub_u32 s3, s99, 20")
        e("s_cmp_ge_u32 s99, 20")
        e("s_cselect_b32 s99, s3, s99")
    e("s_lshl_b32 s3, s99, 7")
    e("s_add_u32 s59, s59, s3")
    e("s_lshl_b32 s3, s99, 17")
    e("s_add_u32 s60, s60, s3")
    srd(e, 68, 38, 39, 2048 * 2048)
    e("s_lshl_b32 s45, s35, 12")
    e("s_lshl_b32 s46, s35, 12")
    e(f"s_add_u32 s46, s46, {BOFF}")
    e("v_lshrrev_b32 v3, 3, v2")
    e("v_lshlrev_b32 v4, 5, v1")
    e("v_add_u32 v3, v3, v4")
    e(f"s_movk_i32 s3, {A2_LD}")
    e("v_mul_lo_u32 v3, v3, s3")
    e("v_lshrrev_b32 v5, 4, v2")
    e("v_and_b32 v6, 7, v2")
    e("v_xor_b32 v7, v6, v5")
    e("v_lshl_add_u32 v10, v7, 4, v3")
    e("v_xor_b32 v7, 4, v7")
    e("v_lshl_add_u32 v11, v7, 4, v3")
    e("v_lshrrev_b32 v3, 4, v2")
    e("v_lshlrev_b32 v4, 4, v1")
    e("v_add_u32 v4, v3, v4")
    e("v_lshlrev_b32 v4, 11, v4")
    e("v_bfe_u32 v5, v2, 2, 2")
    e("v_xor_b32 v5, v5, v3")
    e("v_lshl_add_u32 v4, v5, 6, v4")
    e("v_and_b32 v5, 3, v2")
    e("v_lshl_add_u32 v12, v5, 4, v4")

    def dma_groups(stage, ph2=False):
        g = []
        for i in range(4):
            g.append([f"s_add_u32 m0, s45, {stage*STG + i*1024}",
                      (f"s_add_u32 s3, s59, s{52+i}" if ph2 else f"s_add_u32 s3, s59, {i*8*A2_LD}"),
                      f"buffer_load_dwordx4 v{10+(i&1)}, s[4:7], s3 offen lds"])
            g.append([f"s_add_u32 m0, s46, {stage*STG + i*1024}",
                      f"s_add_u32 s3, s60, {i*4*2048}",
                      f"buffer_load_dwordx4 v12, s[20:23], s3 offen lds"])
        if ph2:
            g[-1] = g[-1] + ["s_add_u32 s59, s59, s27",
                             f"s_add_u32 s60, s60, {64*2048}"]
        else:
            g[-1] = g[-1] + ["s_add_u32 s59, s59, 128",
                             f"s_add_u32 s60, s60, {64*2048}",
                             "s_add_u32 s99, s99, 1",
                             "s_cmp_eq_u32 s99, 20",
                             "s_cselect_b32 s59, s100, s59",
                             "s_cselect_b32 s60, s101, s60",
                             "s_add_u32 s62, s62, 1",
                             "s_cmp_eq_u32 s62, 20",
                             "s_cselect_b32 s60, s61, s60",
                             "s_cselect_b32 s59, s57, s59",
                             "s_cselect_b32 s20, s24, s20",
                             "s_cselect_b32 s21, s25, s21",
                             "s_cselect_b32 s22, s26, s22"]
        return g

    for st in range(NS - 1):
        e.tag = ("D", st)
        for g in dma_groups(st):
            for s in g:
                e(s)

    e("s_and_b32 s50, s2, 31")
    e("s_lshr_b32 s51, s2, 5")
    srd(e, 40, 76, 77, 2048 * 2048)
    srd(e, 52, 96, 97, 2048)
    R3, R5, R9 = 192, 193, 194
    G0, G1, G2, G3 = 195, 196, 197, 198
    PQ = 200
    T = 216
    PS = 248
    Q, PL, GX = 0, 16, 80
    def att_loads():
        e(f"v_and_b32 v{R3}, 31, v2")
        e("v_lshlrev_b32 v4, 6, v1")
        e(f"v_add_u32 v{R3}, v{R3}, v4")
        e(f"v_lshrrev_b32 v{R5}, 5, v2")
        e(f"v_lshlrev_b32 v{R5}, 4, v{R5}")
        e(f"v_lshlrev_b32 v6, 11, v{R3}")
        e(f"v_add_u32 v6, v6, v{R5}")
        e("s_lshl_b32 s38, s51, 19")
        e("s_lshl_b32 s37, s50, 6")
        e("s_add_u32 s38, s38, s37")
        e(f"s_add_u32 s38, s38, {PQ_OFF}")
        e(f"s_add_u32 s39, s38, {32*2048}")
        e(f"buffer_load_dwordx4 a[{Q}:{Q+3}], v6, s[28:31], s38 offen")
        e(f"buffer_load_dwordx4 a[{Q+4}:{Q+7}], v6, s[28:31], s38 offen offset:32")
        e(f"buffer_load_dwordx4 a[{Q+8}:{Q+11}], v6, s[28:31], s39 offen")
        e(f"buffer_load_dwordx4 a[{Q+12}:{Q+15}], v6, s[28:31], s39 offen offset:32")
        e("v_lshlrev_b32 v7, 4, v0")
        e("s_lshl_b32 s39, s50, 16")
        e(f"s_add_u32 s39, s39, {KVP_OFF}")
        for rt in range(8):
            e(f"s_add_u32 s27, s39, {rt*8192}")
            e(f"buffer_load_dwordx4 a[{PL+8*rt}:{PL+8*rt+3}], v7, s[28:31], s27 offen")
            e(f"s_add_u32 s27, s39, {rt*8192+4096}")
            e(f"buffer_load_dwordx4 a[{PL+8*rt+4}:{PL+8*rt+7}], v7, s[28:31], s27 offen")
        e("v_lshlrev_b32 v8, 5, v2")
        e("s_lshl_b32 s48, s51, 8")
        e("s_lshl_b32 s27, s50, 3")
        e("s_add_u32 s48, s48, s27")
        e("s_lshl_b32 s27, s35, 1")
        e("s_add_u32 s48, s48, s27")
        e("s_lshl_b32 s47, s48, 11")
        e("s_add_u32 s49, s47, 2048")
        e(f"buffer_load_dwordx4 a[{GX}:{GX+3}], v8, s[40:43], s47 offen")
        e(f"buffer_load_dwordx4 a[{GX+4}:{GX+7}], v8, s[40:43], s47 offen offset:16")
        e(f"buffer_load_dwordx4 a[{GX+8}:{GX+11}], v8, s[40:43], s49 offen")
        e(f"buffer_load_dwordx4 a[{GX+12}:{GX+15}], v8, s[40:43], s49 offen offset:16")
        e(f"buffer_load_dwordx4 a[{GX+16}:{GX+19}], v8, s[52:55], 0 offen")
        e(f"buffer_load_dwordx4 a[{GX+20}:{GX+23}], v8, s[52:55], 0 offen offset:16")

    def att_a():
        for blk in range(2):
            for i in range(8):
                e(f"v_accvgpr_read_b32 v{T+2*i+1}, a{Q+8*blk+i}")
            for i in range(8):
                e(f"v_lshlrev_b32 v{T+2*i}, 16, v{T+2*i+1}")
                e(f"v_and_b32 v{T+2*i+1}, 0xffff0000, v{T+2*i+1}")
            for r in range(16):
                e(f"v_mul_f32 v{T+16+r}, {LOG2E:#x}, v{T+r}")
            for r in range(16):
                e(f"v_min_f32 v{T+16+r}, 0, v{T+16+r}")
            for r in range(16):
                e(f"v_exp_f32 v{T+16+r}, v{T+16+r}")
            for r in range(16):
                e(f"v_max_f32 v{T+r}, 0, v{T+r}")
            for r in range(16):
                e(f"v_add_f32 v{T+r}, {EPS6:#x}, v{T+r}")
            for r in range(16):
                e(f"v_add_f32 v{T+r}, v{T+r}, v{T+16+r}")
            for i in range(8):
                e(f"v_cvt_pk_bf16_f32 v{PQ+8*blk+i}, v{T+2*i}, v{T+2*i+1}")
        for i in range(8):
            e(f"v_accvgpr_read_b32 v{PS+i}, a{PL+i}")
        for half in range(2):
            n = 32 if half == 0 else 24
            for i in range(n):
                e(f"v_accvgpr_read_b32 v{T+i}, a{PL+8+32*half+i}")
            for i in range(n):
                e(f"v_add_f32 v{PS+(i&7)}, v{PS+(i&7)}, v{T+i}")
        for i in range(4):
            e(f"v_cvt_pk_bf16_f32 v{T+24+i}, v{PS+2*i}, v{PS+2*i+1}")
        e(f"v_and_b32 v{R9}, 15, v2")
        e(f"v_lshlrev_b32 v{R9}, 6, v{R9}")
        e(f"v_and_b32 v{G2}, 1, v1")
        e(f"v_lshl_add_u32 v{R9}, v{G2}, 10, v{R9}")
        e(f"v_lshrrev_b32 v{G2}, 1, v1")
        e(f"v_lshl_add_u32 v{R9}, v{G2}, 5, v{R9}")
        e(f"v_lshrrev_b32 v{G2}, 4, v2")
        e(f"v_lshl_add_u32 v{R9}, v{G2}, 3, v{R9}")
        e(f"v_add_u32 v{R9}, {SCR}, v{R9}")
        e(f"ds_write_b64 v{R9}, v[{T+24}:{T+25}]")
        e(f"ds_write_b64 v{R9}, v[{T+26}:{T+27}] offset:2048")
        for i in range(24):
            e(f"v_accvgpr_read_b32 v{T+i}, a{GX+i}")
        e(f"v_mov_b32 v{G0}, 0")
        e(f"v_mov_b32 v{G1}, 0")
        for i in range(8):
            e(f"v_dot2_f32_bf16 v{G0}, v{T+i}, v{T+16+i}, v{G0}")
            e(f"v_dot2_f32_bf16 v{G1}, v{T+8+i}, v{T+16+i}, v{G1}")

    def att_b():
        KA = T
        e(f"v_and_b32 v{R9}, 31, v2")
        e(f"v_lshlrev_b32 v{R9}, 6, v{R9}")
        e(f"v_add_u32 v{R9}, v{R9}, v{R5}")
        e(f"v_add_u32 v{R9}, {SCR}, v{R9}")
        e(f"ds_read_b128 v[{KA}:{KA+3}], v{R9}")
        e(f"ds_read_b128 v[{KA+4}:{KA+7}], v{R9} offset:32")
        e(f"ds_read_b128 v[{KA+8}:{KA+11}], v{R9} offset:2048")
        e(f"ds_read_b128 v[{KA+12}:{KA+15}], v{R9} offset:2080")
        for off in (0x041F, 0x081F, 0x101F, 0x201F, 0x401F):
            e(f"ds_swizzle_b32 v{G2}, v{G0} offset:{off:#x}")
            e(f"ds_swizzle_b32 v{G3}, v{G1} offset:{off:#x}")
            e("s_waitcnt lgkmcnt(0)")
            e(f"v_add_f32 v{G0}, v{G0}, v{G2}")
            e(f"v_add_f32 v{G1}, v{G1}, v{G3}")
        for rb in range(2):
            for m in range(2):
                b = PQ + 8 * rb + 4 * m
                n = 16 * rb
                d = 32 + 16 * rb
                c1 = "0" if m == 0 else f"a[{n}:{n+15}]"
                c2 = "0" if m == 0 else f"a[{d}:{d+15}]"
                e(f"v_mfma_f32_32x32x16_bf16 a[{n}:{n+15}], v[{KA+4*m}:{KA+4*m+3}], v[{b}:{b+3}], {c1}")
                e(f"v_mfma_f32_32x32x16_bf16 a[{d}:{d+15}], v[{KA+8+4*m}:{KA+8+4*m+3}], v[{b}:{b+3}], {c2}")
        e(f"v_readlane_b32 s56, v{G0}, 32")
        e(f"v_readlane_b32 s58, v{G1}, 32")
        e("s_nop 1")
        e(f"v_add_f32 v{G0}, s56, v{G0}")
        e(f"v_add_f32 v{G1}, s58, v{G1}")
        e(f"v_mul_f32 v{G0}, {LOG2E | 0x80000000:#x}, v{G0}")
        e(f"v_mul_f32 v{G1}, {LOG2E | 0x80000000:#x}, v{G1}")
        e(f"v_exp_f32 v{G0}, v{G0}")
        e(f"v_exp_f32 v{G1}, v{G1}")
        e("s_nop 0")
        e(f"v_add_f32 v{G0}, 1.0, v{G0}")
        e(f"v_add_f32 v{G1}, 1.0, v{G1}")
        e(f"v_rcp_f32 v{PS}, v{G0}")
        e(f"v_rcp_f32 v{PS+1}, v{G1}")
        e("s_lshl_b32 s27, s48, 2")
        e(f"s_add_u32 s27, s27, {G_OFF}")
        e(f"v_mov_b32 v{G0}, 0")
        e.raw("{")
        e("v_cmp_eq_u32 vcc, 0, v2")
        e("s_and_saveexec_b64 s[78:79], vcc")
        e(f"buffer_store_dwordx2 v[{PS}:{PS+1}], v{G0}, s[28:31], s27 offen sc1")
        e("s_mov_b64 exec, s[78:79]")
        e.raw("}")
        e(f"v_and_b32 v{R9}, 31, v2")
        e(f"v_lshlrev_b32 v{R9}, 5, v{R9}")
        e(f"v_add_u32 v{R9}, v{R9}, v{R5}")
        e("s_lshl_b32 s48, s51, 3")
        e("s_lshl_b32 s27, s35, 1")
        e("s_add_u32 s48, s48, s27")
        e("s_lshl_b32 s48, s48, 5")
        e("s_add_u32 s48, s48, s50")
        e("s_lshl_b32 s48, s48, 11")
        e(f"s_add_u32 s48, s48, {O_OFF}")
        e("s_add_u32 s49, s48, 65536")
        e("s_nop 7")
        for rb in range(2):
            n = 16 * rb
            d = 32 + 16 * rb
            e(f"v_accvgpr_read_b32 v{G1}, a{d}")
            for r in range(16):
                e(f"v_accvgpr_read_b32 v{T+r}, a{n+r}")
            e(f"v_add_f32 v{G1}, {EPS6:#x}, v{G1}")
            e(f"v_rcp_f32 v{G1}, v{G1}")
            e("s_nop 0")
            for r in range(16):
                e(f"v_mul_f32 v{T+r}, v{T+r}, v{G1}")
            P = T + 16 + 8 * rb
            for i in range(8):
                e(f"v_cvt_pk_bf16_f32 v{P+i}, v{T+2*i}, v{T+2*i+1}")
            e("s_nop 1")
            e(f"v_permlane32_swap_b32 v{P+0}, v{P+2}")
            e(f"v_permlane32_swap_b32 v{P+1}, v{P+3}")
            e(f"v_permlane32_swap_b32 v{P+4}, v{P+6}")
            e(f"v_permlane32_swap_b32 v{P+5}, v{P+7}")
            e(f"buffer_store_dwordx4 v[{P}:{P+3}], v{R9}, s[28:31], s{48+rb} offen sc1")
            e(f"buffer_store_dwordx4 v[{P+4}:{P+7}], v{R9}, s[28:31], s{48+rb} offen offset:1024 sc1")

    e("v_and_b32 v3, 31, v2")
    e("v_lshrrev_b32 v4, 1, v1")
    e("v_lshlrev_b32 v4, 6, v4")
    e("v_add_u32 v4, v4, v3")
    e("v_lshlrev_b32 v4, 7, v4")
    e("v_bfe_u32 v5, v3, 1, 3")
    e("v_lshrrev_b32 v6, 5, v2")
    for s in range(4):
        e(f"v_add_u32 v7, {2*s}, v6")
        e("v_xor_b32 v7, v7, v5")
        e(f"v_lshl_add_u32 v{14+s}, v7, 4, v4")
        e(f"v_add_u32 v{18+s}, {2*STG}, v{14+s}")
    e("v_lshrrev_b32 v3, 5, v2")
    e("v_lshlrev_b32 v3, 11, v3")
    e("v_bfe_u32 v4, v2, 2, 2")
    e("v_lshl_add_u32 v3, v4, 8, v3")
    e("v_bfe_u32 v5, v2, 4, 1")
    e("v_lshl_add_u32 v3, v5, 5, v3")
    e("v_and_b32 v5, 3, v2")
    e("v_lshl_add_u32 v3, v5, 3, v3")
    e("v_and_b32 v5, 1, v1")
    e("v_lshlrev_b32 v5, 1, v5")
    for j in range(2):
        e(f"v_add_u32 v6, {j}, v5")
        e("v_xor_b32 v6, v6, v4")
        e("v_lshl_add_u32 v6, v6, 6, v3")
        e(f"v_add_u32 v{22+j}, {BOFF}, v6")
        e(f"v_add_u32 v{28+j}, {BOFF+2*STG}, v6")

    AF = 32
    BF = 48
    ACC = 64
    for r in range(128):
        e(f"v_mov_b32 v{ACC+r}, 0")

    def read_groups(stage, s, buf):
        g = []
        va = 14 + 4 * (stage >> 1) + s
        so = (stage & 1) * STG
        for rb in range(2):
            d = AF + buf * 8 + rb * 4
            g.append([f"ds_read_b128 v[{d}:{d+3}], v{va} offset:{so + rb*4096}"])
        for b in range(2):
            vb = (22 if stage < 2 else 28) + b
            d = BF + buf * 8 + b * 4
            g.append([f"ds_read_b64_tr_b16 v[{d}:{d+1}], v{vb} offset:{so + 4*s*1024}"])
            g.append([f"ds_read_b64_tr_b16 v[{d+2}:{d+3}], v{vb} offset:{so + 4*s*1024+1024}"])
        return g

    def mfmas(buf, aset):
        m = []
        for b in range(2):
            for rb in range(2):
                a = AF + buf * 8 + rb * 4
                bb = BF + buf * 8 + b * 4
                c = ACC + aset * 64 + (b * 2 + rb) * 16
                m.append(f"v_mfma_f32_32x32x16_bf16 v[{c}:{c+15}], v[{bb}:{bb+3}], v[{a}:{a+3}], v[{c}:{c+15}]")
        return m

    def kstep(q, aset, dma, wait_n, last, after_barrier=None, ph2=False, t=None, extra=None, need=()):
        dg = dma_groups((q + 3) % NS, ph2) if (dma and "n3dma" not in EXP) else []
        extra = list(extra or [])
        per = (len(extra) + 15) // 16

        def ex():
            for _ in range(per):
                if extra:
                    tg, e.tag = e.tag, "att"
                    for x in extra.pop(0):
                        e(x)
                    e.tag = tg
        for s in range(4):
            cur = s & 1
            if s < 3:
                rd = read_groups(q, s + 1, cur ^ 1)
            elif not last:
                rd = read_groups((q + 1) % NS, 0, cur ^ 1)
            else:
                rd = []
            e("s_waitcnt lgkmcnt(0)")
            mf = mfmas(cur, aset)
            dd = dg[2 * s:2 * s + 2]
            e.tag = ("D", None if t is None else t + 3)
            e(mf[0])
            for g in rd[0:3]:
                for x in g:
                    e(x)
            ex()
            e(mf[1])
            for g in rd[3:6]:
                for x in g:
                    e(x)
            ex()
            e(mf[2])
            for g in dd[0:1]:
                for x in g:
                    e(x)
            ex()
            e(mf[3])
            for g in dd[1:2]:
                for x in g:
                    e(x)
            ex()
            if s == 2 and not last:
                if wait_n is None:
                    wn = e.vm_needed([("D", t + 1)] + list(need))
                else:
                    wn = wait_n
                e(f"s_waitcnt vmcnt({wn}) lgkmcnt(0)")
                e("s_barrier")
                if after_barrier:
                    after_barrier()

    def signal():
        e("s_cmp_eq_u32 s35, 0")
        e("s_cbranch_scc0 K3_NOSIG")
        e("v_mov_b32 v30, 1")
        e("v_mov_b32 v31, 0")
        e("s_lshl_b32 s3, s51, 2")
        e("v_cmp_eq_u32 vcc, 0, v2")
        e("s_and_saveexec_b64 s[78:79], vcc")
        e("buffer_atomic_add v30, v31, s[16:19], s3 offen sc1")
        e("s_mov_b64 exec, s[78:79]")
        e.label("K3_NOSIG")

    e("s_waitcnt vmcnt(16)")
    e("s_barrier")
    for g in read_groups(0, 0, 0):
        for s in g:
            e(s)
    if "stamp3" in EXP:
        e("s_memtime s[82:83]")
    e("s_lshr_b32 s44, s33, 1")
    e("s_lshl_b32 s44, s44, 2")
    L = e.capture(att_loads)
    A = e.capture(att_a)
    B = e.capture(att_b)

    def split(lst, n):
        k = (len(lst) + n - 1) // n
        return [lst[i * k:(i + 1) * k] for i in range(n)]
    A0, A1 = split(A, 2)
    B0, B1 = split(B, 2)
    kstep(0, 1, True, None, False, t=0, extra=L)
    kstep(1, 1, True, None, False, t=1)
    kstep(2, 1, True, None, False, t=2, need=["att"])
    stamp()
    kstep(3, 1, True, None, False, t=3, extra=A0)
    kstep(0, 1, True, None, False, t=4, extra=A1)
    stamp()
    kstep(1, 1, True, None, False, t=5)
    stamp()
    kstep(2, 1, True, None, False, t=6, extra=B0)
    kstep(3, 1, True, None, False, t=7, extra=B1)
    stamp()
    kstep(0, 1, True, None, False, t=8)
    kstep(1, 1, True, None, False, t=9, need=["att"], after_barrier=signal)
    kstep(2, 1, True, None, False, t=10)
    kstep(3, 1, True, None, False, t=11)
    stamp()
    stamp()
    for q in range(3):
        kstep(q, 1, True, 14, False)
    e("v_mov_b32 v31, 0")
    e("buffer_load_dword v30, v31, s[16:19], s44 offen sc1")
    kstep(3, 1, True, 14, False)
    kstep(0, 1, True, 14, False)
    e("v_readfirstlane_b32 s3, v30")
    e("s_cmp_ge_u32 s3, 32")
    e("s_cbranch_scc1 K3_READY")
    e("s_mov_b32 s47, 0")
    e.label("K3_SPIN")
    e("s_sleep 8")
    e("buffer_load_dword v30, v31, s[16:19], s44 offen sc1")
    e("s_waitcnt vmcnt(0)")
    e("v_readfirstlane_b32 s3, v30")
    e("s_add_u32 s47, s47, 1")
    e("s_cmp_ge_u32 s47, 0x20000")
    e("s_cbranch_scc1 K3_READY")
    e("s_cmp_ge_u32 s3, 32")
    e("s_cbranch_scc0 K3_SPIN")
    e.label("K3_READY")
    for i in range(4):
        e(f"s_mov_b32 s{52+i}, {i*8*A2_LD}")
    e("s_movk_i32 s27, 128")
    e("s_cmp_eq_u32 s36, 0")
    e("s_cbranch_scc0 K3_NOSW")
    for i in range(4):
        e(f"s_movk_i32 s{52+i}, {i*256}")
    e("s_movk_i32 s27, 4096")
    e("s_lshl_b32 s3, s33, 18")
    e(f"s_add_u32 s3, s3, {O_OFF}")
    e("s_add_u32 s4, s74, s3")
    e("s_addc_u32 s5, s75, 0")
    e("s_and_b32 s5, s5, 0xffff")
    e("s_mov_b32 s6, 0x40000")
    e("v_lshrrev_b32 v3, 3, v2")
    e("v_lshlrev_b32 v3, 5, v3")
    e("v_lshlrev_b32 v4, 16, v1")
    e("v_add_u32 v3, v3, v4")
    e("v_lshrrev_b32 v5, 4, v2")
    e("v_and_b32 v6, 7, v2")
    e("v_xor_b32 v7, v6, v5")
    for par in range(2):
        if par:
            e("v_xor_b32 v7, 4, v7")
        e("v_lshrrev_b32 v8, 1, v7")
        e("v_lshl_add_u32 v8, v8, 10, v3")
        e("v_and_b32 v9, 1, v7")
        e(f"v_lshl_add_u32 v{10+par}, v9, 4, v8")
    e.label("K3_NOSW")
    e("v_and_b32 v3, 31, v2")
    e("v_lshrrev_b32 v4, 1, v1")
    e("v_lshlrev_b32 v4, 6, v4")
    e("v_add_u32 v3, v3, v4")
    e("v_lshlrev_b32 v4, 2, v3")
    e("s_lshl_b32 s3, s33, 9")
    e(f"s_add_u32 s3, s3, {G_OFF}")
    e("buffer_load_dword v24, v4, s[28:31], s3 offen sc1")
    e("buffer_load_dword v25, v4, s[28:31], s3 offen offset:128 sc1")
    kstep(1, 1, True, 14, False, ph2=True)
    kstep(2, 1, True, 14, False, ph2=True)
    kstep(3, 1, True, 14, False, ph2=True)
    stamp()
    e("s_mov_b32 s63, 0")
    e.label("K3_LOOP2")
    for q in range(4):
        kstep(q, 0, True, 14, False, ph2=True)
    e("s_add_u32 s63, s63, 1")
    e("s_cmp_lt_u32 s63, 3")
    e("s_cbranch_scc1 K3_LOOP2")
    kstep(0, 0, True, 14, False, ph2=True)
    kstep(1, 0, False, 8, False)
    kstep(2, 0, False, 0, False)
    kstep(3, 0, False, 0, True)
    if "stamp3" in EXP:
        e("s_memtime s[84:85]")
    e("v_and_b32 v3, 31, v2")
    e("v_lshrrev_b32 v4, 1, v1")
    e("v_lshlrev_b32 v4, 6, v4")
    e("v_add_u32 v3, v3, v4")
    e("v_sub_f32 v26, 1.0, v24")
    e("v_sub_f32 v27, 1.0, v25")
    e("s_cmp_eq_u32 s36, 0")
    e("s_cselect_b64 vcc, -1, 0")
    e("s_nop 1")
    e("v_cndmask_b32 v24, v26, v24, vcc")
    e("v_cndmask_b32 v25, v27, v25, vcc")
    e("s_nop 3")
    for t in range(4):
        rb = t & 1
        c1 = ACC + t * 16
        c2 = ACC + 64 + t * 16
        for r in range(16):
            e(f"v_mul_f32 v{c1+r}, v{c1+r}, v{24+rb}")
        for r in range(16):
            e(f"v_fmac_f32 v{c1+r}, v{c2+r}, v{26+rb}")
    e("s_lshl_b32 s3, s33, 3")
    e("s_add_u32 s3, s3, s34")
    e("s_lshl_b32 s3, s3, 1")
    e("s_add_u32 s38, s3, s36")
    e("s_xor_b32 s39, s38, 1")
    for r_ in (38, 39):
        e(f"s_lshl_b32 s{r_}, s{r_}, 2")
        e(f"s_add_u32 s{r_}, s{r_}, s35")
        e(f"s_lshl_b32 s{r_}, s{r_}, 13")
        e(f"s_add_u32 s{r_}, s{r_}, {X_OFF}")
    e("v_lshlrev_b32 v5, 4, v2")
    e("v_lshlrev_b32 v6, 11, v3")
    e("v_lshrrev_b32 v7, 5, v2")
    e("v_lshl_add_u32 v6, v7, 4, v6")
    e("s_lshl_b32 s47, s33, 18")
    e("s_lshl_b32 s3, s36, 16")
    e("s_add_u32 s47, s47, s3")
    e("s_lshl_b32 s3, s34, 8")
    e("s_add_u32 s47, s47, s3")
    e("s_and_b32 s3, s35, 1")
    e("s_lshl_b32 s3, s3, 7")
    e("s_add_u32 s47, s47, s3")
    e("s_cmp_eq_u32 s36, 0")
    e("s_cbranch_scc0 K3_S1")
    for sp in range(2):
        if sp == 1:
            e.label("K3_S1")
        keep = sp
        send = sp ^ 1
        for j in range(2):
            c = ACC + (j * 2 + send) * 16
            for rg in range(4):
                e(f"buffer_store_dwordx4 v[{c+4*rg}:{c+4*rg+3}], v5, s[28:31], s39 offen offset:{rg*1024} sc1")
            if j == 0:
                e("s_add_u32 s39, s39, 4096")
        e("s_waitcnt vmcnt(0)")
        e("s_barrier")
        e("s_cmp_eq_u32 s35, 0")
        e(f"s_cbranch_scc0 K3_NOFLAG{sp}")
        e("v_mov_b32 v30, 1")
        e("v_mov_b32 v31, 0")
        e("s_lshl_b32 s3, s2, 7")
        e(f"s_add_u32 s3, s3, {FLG_OFF}")
        e("v_cmp_eq_u32 vcc, 0, v2")
        e("s_and_saveexec_b64 s[78:79], vcc")
        e("buffer_store_dword v30, v31, s[28:31], s3 offen sc1")
        e("s_mov_b64 exec, s[78:79]")
        e.label(f"K3_NOFLAG{sp}")
        e("s_xor_b32 s49, s2, 1")
        e("s_lshl_b32 s49, s49, 7")
        e(f"s_add_u32 s49, s49, {FLG_OFF}")
        e("v_mov_b32 v31, 0")
        e("s_mov_b32 s56, 0")
        e.label(f"K3_XSPIN{sp}")
        e("buffer_load_dword v30, v31, s[28:31], s49 offen sc1")
        e("s_waitcnt vmcnt(0)")
        e("v_readfirstlane_b32 s3, v30")
        e("s_add_u32 s56, s56, 1")
        e("s_cmp_ge_u32 s56, 0x20000")
        e(f"s_cbranch_scc1 K3_XGO{sp}")
        e("s_cmp_eq_u32 s3, 1")
        e(f"s_cbranch_scc1 K3_XGO{sp}")
        e("s_sleep 2")
        e(f"s_branch K3_XSPIN{sp}")
        e.label(f"K3_XGO{sp}")
        RX = 128
        for j in range(2):
            for rg in range(4):
                e(f"buffer_load_dwordx4 v[{RX+16*j+4*rg}:{RX+16*j+4*rg+3}], v5, s[28:31], s38 offen offset:{rg*1024} sc1")
            if j == 0:
                e("s_add_u32 s38, s38, 4096")
        for j in range(2):
            e(f"s_waitcnt vmcnt({4*(1-j)})")
            c = ACC + (j * 2 + keep) * 16
            for r in range(16):
                e(f"v_add_f32 v{c+r}, v{c+r}, v{RX+16*j+r}")
            P = 32 + 8 * j
            for i in range(8):
                e(f"v_cvt_pk_bf16_f32 v{P+i}, v{c+2*i}, v{c+2*i+1}")
            e("s_nop 1")
            e(f"v_permlane32_swap_b32 v{P+0}, v{P+2}")
            e(f"v_permlane32_swap_b32 v{P+1}, v{P+3}")
            e(f"v_permlane32_swap_b32 v{P+4}, v{P+6}")
            e(f"v_permlane32_swap_b32 v{P+5}, v{P+7}")
            e(f"buffer_store_dwordx4 v[{P}:{P+3}], v6, s[68:71], s47 offen offset:{64*j}")
            e(f"buffer_store_dwordx4 v[{P+4}:{P+7}], v6, s[68:71], s47 offen offset:{64*j+32}")
        if sp == 0:
            e("s_branch K3_FIN")
    e.label("K3_FIN")
    if "fine" in EXP:
        e("s_waitcnt lgkmcnt(0)")
        for i in range(7):
            e(f"v_mov_b32 v{48+2*i}, s{STP[i]}")
            e(f"v_mov_b32 v{49+2*i}, s{STP[i]+1}")
        e("s_lshl_b32 s3, s2, 8")
        e("s_lshl_b32 s64, s35, 6")
        e("s_add_u32 s3, s3, s64")
        e(f"s_add_u32 s3, s3, {201<<20}")
        e("v_mov_b32 v3, 0")
        e("v_cmp_eq_u32 vcc, 0, v2")
        e("s_and_saveexec_b64 s[64:65], vcc")
        for i in range(4):
            e(f"buffer_store_dwordx4 v[{48+4*i}:{51+4*i}], v3, s[28:31], s3 offen offset:{16*i}")
        e("s_mov_b64 exec, s[64:65]")
    if "stamp3" in EXP:
        stamp_end(e, 28, 35, 2)
    e.label("K3_END")
    e("s_endpgm")
    return kn, e.text(), kernel_desc(kn, 360, 256), (256, 256, 135168)


def gen_k4():
    e = E()
    kn = "k4_comb_kernel"
    e.raw(f".globl {kn}\n.p2align 8\n.type {kn},@function")
    e.label(kn)
    e("s_cmp_ge_u32 s2, 512")
    e("s_cbranch_scc1 K4_END")
    e("s_load_dwordx2 s[64:65], s[0:1], 64")
    e("s_load_dwordx2 s[72:73], s[0:1], 80")
    e("v_lshrrev_b32 v1, 6, v0")
    e("v_and_b32 v2, 63, v0")
    e("v_readfirstlane_b32 s35, v1")
    e("s_waitcnt lgkmcnt(0)")
    srd(e, 28, 72, 73, 0x10000000)
    srd(e, 4, 64, 65, 2048 * 2048)
    e("s_lshl_b32 s3, s2, 2")
    e("s_add_u32 s3, s3, s35")
    e("s_lshl_b32 s3, s3, 12")
    e(f"s_add_u32 s3, s3, {P_OFF}")
    e(f"s_add_u32 s36, s3, {1<<23}")
    e("v_lshlrev_b32 v3, 4, v2")
    for rg in range(4):
        e(f"buffer_load_dwordx4 v[{16+4*rg}:{19+4*rg}], v3, s[28:31], s3 offen offset:{rg*1024}")
        e(f"buffer_load_dwordx4 v[{32+4*rg}:{35+4*rg}], v3, s[28:31], s36 offen offset:{rg*1024}")
    e("s_lshr_b32 s37, s2, 5")
    e("s_bfe_u32 s38, s2, 0x30002")
    e("s_bfe_u32 s39, s2, 0x10001")
    e("s_and_b32 s40, s2, 1")
    e("s_lshl_b32 s37, s37, 7")
    e("s_lshl_b32 s39, s39, 6")
    e("s_add_u32 s37, s37, s39")
    e("s_and_b32 s41, s35, 1")
    e("s_lshl_b32 s41, s41, 5")
    e("s_add_u32 s37, s37, s41")
    e("s_lshl_b32 s37, s37, 11")
    e("s_lshl_b32 s38, s38, 8")
    e("s_lshl_b32 s40, s40, 7")
    e("s_add_u32 s38, s38, s40")
    e("s_lshr_b32 s41, s35, 1")
    e("s_lshl_b32 s41, s41, 6")
    e("s_add_u32 s38, s38, s41")
    e("s_add_u32 s37, s37, s38")
    e("v_and_b32 v4, 31, v2")
    e("v_lshlrev_b32 v4, 11, v4")
    e("v_lshrrev_b32 v5, 5, v2")
    e("v_lshl_add_u32 v4, v5, 4, v4")
    e("s_waitcnt vmcnt(0)")
    for r in range(16):
        e(f"v_add_f32 v{16+r}, v{16+r}, v{32+r}")
    P = 48
    for i in range(8):
        e(f"v_cvt_pk_bf16_f32 v{P+i}, v{16+2*i}, v{16+2*i+1}")
    e("s_nop 1")
    e(f"v_permlane32_swap_b32 v{P+0}, v{P+2}")
    e(f"v_permlane32_swap_b32 v{P+1}, v{P+3}")
    e(f"v_permlane32_swap_b32 v{P+4}, v{P+6}")
    e(f"v_permlane32_swap_b32 v{P+5}, v{P+7}")
    e(f"buffer_store_dwordx4 v[{P}:{P+3}], v4, s[4:7], s37 offen")
    e(f"buffer_store_dwordx4 v[{P+4}:{P+7}], v4, s[4:7], s37 offen offset:32")
    e.label("K4_END")
    e("s_endpgm")
    return kn, e.text(), kernel_desc(kn, 64, 64), (512, 256, 0)


def main():
    kernels = [gen_k1(), gen_k3()]
    which = sys.argv[2] if len(sys.argv) > 2 else None
    out = []
    for kn, _, _, (g, b, lds) in kernels:
        out.append(f"; @launch kernel={kn} grid=({g},1,1) block=({b},1,1) lds={lds}")
    out.append('.amdgcn_target "amdgcn-amd-amdhsa--gfx950"')
    out.append(".text")
    for kn, body, desc, _ in kernels:
        out.append(body)
        out.append(desc)
    open(sys.argv[1], "w").write("\n".join(out))


if __name__ == "__main__":
    main()
```

```python
import sys, os
EXP = os.environ.get("EXP", "")
MODE = int(os.environ.get("MODE", "1"))

NAME = "gated_mix__linear_attn_block__glu_gated_bilinear__prompt"

PQ_OFF = 0
A2_OFF = 4 << 20
KVP_OFF = 24 << 20
G_OFF = 27 << 20
P_OFF = 28 << 20
FLG_OFF = (27 << 20) + 65536
A2_LD = 4608 * 2

LOG2E = 0x3fb8aa3b
EPS6 = 0x358637bd


class E:
    def __init__(self):
        self.lines = []
        self.vmlog = []
        self.tag = None

    def __call__(self, s):
        self.lines.append("    " + s)
        if s.startswith("buffer_"):
            self.vmlog.append(self.tag)

    def vm_needed(self, tags):
        last = -1
        for i, t in enumerate(self.vmlog):
            if t in tags:
                last = i
        return len(self.vmlog) - 1 - last

    def capture(self, fn):
        saved, savedlog = self.lines, self.vmlog
        self.lines, self.vmlog = [], []
        fn()
        out, self.lines, self.vmlog = self.lines, saved, savedlog
        groups, cur = [], None
        for l in out:
            l = l.strip()
            if l == "{":
                cur = []
            elif l == "}":
                groups.append(cur)
                cur = None
            elif cur is not None:
                cur.append(l)
            else:
                groups.append([l])
        return groups

    def label(self, s):
        self.lines.append(s + ":")

    def raw(self, s):
        self.lines.append(s)

    def text(self):
        return "\n".join(self.lines) + "\n"


def srd(e, d, base_lo, base_hi, nbytes):
    e(f"s_mov_b32 s{d}, s{base_lo}")
    e(f"s_and_b32 s{d+1}, s{base_hi}, 0xffff")
    e(f"s_mov_b32 s{d+2}, {nbytes:#x}")
    e(f"s_mov_b32 s{d+3}, 0x00020000")


def kernel_desc(name, vgpr, accum, sgpr=102):
    return f""".section .rodata,"a"
.p2align 6
.amdhsa_kernel {name}
  .amdhsa_next_free_vgpr {vgpr}
  .amdhsa_next_free_sgpr {sgpr}
  .amdhsa_accum_offset {accum}
  .amdhsa_group_segment_fixed_size 0
  .amdhsa_kernarg_size 88
  .amdhsa_user_sgpr_count 2
  .amdhsa_user_sgpr_kernarg_segment_ptr 1
  .amdhsa_system_sgpr_workgroup_id_x 1
.end_amdhsa_kernel
.text
"""


def interleave(e, mfmas, fillers, per_gap=None, start=0):
    n = len(mfmas)
    fi = 0
    nf = len(fillers)
    for i, m in enumerate(mfmas):
        e(m)
        if i < start:
            continue
        if per_gap is None:
            tgt = nf * (i + 1 - start) // max(1, (n - start))
        else:
            tgt = min(nf, per_gap * (i + 1 - start))
        while fi < tgt:
            for s in fillers[fi]:
                e(s)
            fi += 1
    while fi < nf:
        for s in fillers[fi]:
            e(s)
        fi += 1


def stamp_end(e, srd_ws, wave_sgpr, lane_v):
    e("s_waitcnt vmcnt(0)")
    e("s_memtime s[86:87]")
    e("s_memrealtime s[90:91]")
    e("s_waitcnt lgkmcnt(0)")
    for i in range(12):
        e(f"v_mov_b32 v{32+i}, s{80+i}")
    e("s_lshl_b32 s3, s2, 8")
    e(f"s_lshl_b32 s92, s{wave_sgpr}, 6")
    e("s_add_u32 s3, s3, s92")
    e(f"s_add_u32 s3, s3, {200<<20}")
    e("v_mov_b32 v3, 0")
    e(f"v_cmp_eq_u32 vcc, 0, v{lane_v}")
    e("s_and_saveexec_b64 s[92:93], vcc")
    for i in range(3):
        e(f"buffer_store_dwordx4 v[{32+4*i}:{35+4*i}], v3, s[{srd_ws}:{srd_ws+3}], s3 offen offset:{16*i}")


def gen_k1():
    e = E()
    kn = "k1_gemm1_kernel"
    STG = 36864
    BOFF = 16384
    NS = 4
    e.raw(f".globl {kn}\n.p2align 8\n.type {kn},@function")
    e.label(kn)
    e("s_cmp_ge_u32 s2, 256")
    e("s_cbranch_scc1 K1_END")
    if "stamp" in EXP:
        e("s_memtime s[80:81]")
        e("s_memrealtime s[88:89]")
    e("s_load_dwordx4 s[64:67], s[0:1], 0")
    e("s_load_dwordx4 s[68:71], s[0:1], 32")
    e("s_load_dwordx2 s[72:73], s[0:1], 80")
    e("s_load_dwordx2 s[96:97], s[0:1], 16")
    e("s_load_dwordx2 s[98:99], s[0:1], 48")
    e("s_and_b32 s3, s2, 7")
    e("s_lshr_b32 s32, s2, 3")
    e("s_and_b32 s33, s32, 7")
    e("s_lshr_b32 s32, s32, 3")
    e("s_lshl_b32 s3, s3, 2")
    e("s_add_u32 s34, s3, s32")
    e("v_lshrrev_b32 v1, 6, v0")
    e("v_and_b32 v2, 63, v0")
    e("v_readfirstlane_b32 s35, v1")
    e("s_and_b32 s37, s34, 1")
    e("s_lshr_b32 s38, s34, 1")
    e("s_mul_i32 s39, s38, 7")
    e("s_lshl_b32 s40, s37, 2")
    e("s_add_u32 s40, s39, s40")
    e("s_add_u32 s41, s39, 3")
    e("s_lshl_b32 s42, s34, 6")
    e("s_add_u32 s48, s42, 2048")
    e("s_add_u32 s49, s42, 4096")
    e("s_lshl_b32 s43, s38, 7")
    e("s_add_u32 s47, s43, 64")
    e("s_lshl_b32 s44, s41, 6")
    e("s_cmp_eq_u32 s37, 0")
    e("s_cselect_b32 s50, s43, s44")
    e("s_cselect_b32 s51, s47, s44")
    e(f"s_mov_b32 s58, {32*7168}")
    e(f"s_cselect_b32 s58, {32*6144}, s58")
    e("s_lshl_b32 s44, s40, 6")
    for j in range(3):
        e(f"s_add_u32 s{52+2*j}, s44, {64*j}")
        e(f"s_add_u32 s{53+2*j}, s44, {64*j}")
    e("s_lshr_b32 s36, s35, 1")
    e("s_cmp_eq_u32 s36, 0")
    for i in range(5):
        e(f"s_cselect_b32 s{74+i}, s{48+2*i}, s{49+2*i}")
    e("s_waitcnt lgkmcnt(0)")
    e("s_lshl_b32 s3, s33, 19")
    e("s_add_u32 s64, s64, s3")
    e("s_addc_u32 s65, s65, 0")
    srd(e, 4, 64, 65, 256 * 2048)
    srd(e, 8, 66, 67, 1024 * 6144)
    srd(e, 12, 68, 69, 1024 * 7168)
    srd(e, 16, 70, 71, 1024 * 7168)
    srd(e, 28, 72, 73, 0x10000000)
    e("s_cmp_eq_u32 s36, 0")
    for i in range(4):
        e(f"s_cselect_b32 s{20+i}, s{12+i}, s{16+i}")
    e("s_cmp_eq_u32 s37, 0")
    for i in range(4):
        e(f"s_cselect_b32 s{24+i}, s{8+i}, s{20+i}")
    if "nostag" in EXP:
        e("s_mov_b32 s79, 0")
    else:
        e("s_lshl_b32 s79, s33, 2")
        e("s_and_b32 s3, s34, 3")
        e("s_add_u32 s79, s79, s3")
    e("s_lshl_b32 s59, s79, 6")
    e(f"s_mul_i32 s60, s79, {32*6144}")
    e(f"s_mul_i32 s61, s79, {32*7168}")
    e("s_mul_i32 s62, s79, s58")
    e("s_lshl_b32 s45, s35, 12")
    e("s_lshl_b32 s46, s35, 10")
    e(f"s_add_u32 s46, s46, {BOFF}")
    e("v_lshrrev_b32 v3, 2, v2")
    e("v_lshlrev_b32 v4, 6, v1")
    e("v_add_u32 v4, v3, v4")
    e("v_lshlrev_b32 v4, 11, v4")
    e("v_lshrrev_b32 v5, 4, v2")
    e("v_lshlrev_b32 v7, 1, v5")
    e("v_and_b32 v7, 3, v7")
    e("v_lshrrev_b32 v5, 1, v5")
    e("v_mul_u32_u24 v5, 3, v5")
    e("v_xor_b32 v5, v5, v7")
    e("v_and_b32 v6, 3, v2")
    e("v_xor_b32 v7, v6, v5")
    e("v_lshl_add_u32 v10, v7, 4, v4")
    e("v_and_b32 v4, 1, v1")
    e("v_lshlrev_b32 v4, 4, v4")
    e("v_add_u32 v3, v3, v4")
    e("v_lshrrev_b32 v4, 5, v2")
    e("v_lshlrev_b32 v4, 1, v4")
    e("v_xor_b32 v4, v4, v6")
    e("v_lshlrev_b32 v4, 4, v4")
    e("s_movk_i32 s3, 6144")
    e("v_mul_lo_u32 v11, v3, s3")
    e("v_add_u32 v11, v11, v4")
    e("s_movk_i32 s3, 7168")
    e("v_mul_lo_u32 v12, v3, s3")
    e("v_add_u32 v12, v12, v4")
    e("s_cmp_eq_u32 s37, 0")
    e("s_cselect_b64 vcc, -1, 0")
    e("s_nop 1")
    e("v_cndmask_b32 v13, v12, v11, vcc")

    dsrd = [8, 24, 20, 20, 20]
    dvoff = [11, 13, 12, 12, 12]
    dkrun = [60, 62, 61, 61, 61]

    def dma_groups(stage):
        g = []
        for i in range(4):
            g.append([f"s_add_u32 m0, s45, {stage*STG + i*1024}",
                      f"s_add_u32 s3, s59, {i*32768}",
                      f"buffer_load_dwordx4 v10, s[4:7], s3 offen lds"])
        for i in range(5):
            g.append([f"s_add_u32 m0, s46, {stage*STG + i*4096}",
                      f"s_add_u32 s3, s{dkrun[i]}, s{74+i}",
                      f"buffer_load_dwordx4 v{dvoff[i]}, s[{dsrd[i]}:{dsrd[i]+3}], s3 offen lds"])
        g[-1] = g[-1] + ["s_add_u32 s79, s79, 1",
                         "s_and_b32 s79, s79, 31",
                         "s_lshl_b32 s59, s79, 6",
                         f"s_mul_i32 s60, s79, {32*6144}",
                         f"s_mul_i32 s61, s79, {32*7168}",
                         "s_mul_i32 s62, s79, s58"]
        order = [0, 4, 1, 5, 2, 6, 3, 7, 8]
        return [g[i] for i in order]

    if "dopf" in EXP:
        e("v_lshlrev_b32 v3, 4, v0")
        e("s_lshl_b32 s3, s34, 14")
        n = 0
        for (sr, per, base) in ((4, 4, "s3"), (8, 6, None), (12, 7, None), (16, 7, None)):
            if base is None:
                e(f"s_mul_i32 s3, s2, {per*4096}")
            for i in range(per):
                e(f"buffer_load_dwordx4 a[{96+4*n}:{99+4*n}], v3, s[{sr}:{sr+3}], s3 offen")
                if i + 1 < per:
                    e("s_add_u32 s3, s3, 4096")
                n += 1
    for st in range(NS):
        for g in dma_groups(st):
            for s in g:
                e(s)

    e("v_and_b32 v3, 15, v2")
    e("v_lshlrev_b32 v4, 6, v1")
    e("v_add_u32 v4, v4, v3")
    e("v_lshlrev_b32 v4, 6, v4")
    e("v_lshrrev_b32 v5, 2, v3")
    e("v_lshlrev_b32 v7, 1, v5")
    e("v_and_b32 v7, 3, v7")
    e("v_lshrrev_b32 v5, 1, v5")
    e("v_mul_u32_u24 v5, 3, v5")
    e("v_xor_b32 v5, v5, v7")
    e("v_lshrrev_b32 v6, 4, v2")
    e("v_xor_b32 v7, v6, v5")
    e("v_lshl_add_u32 v14, v7, 4, v4")
    for q in range(1, NS):
        e(f"v_add_u32 v{14+q}, {q*STG}, v14")
    e("v_lshrrev_b32 v3, 5, v2")
    e("v_lshlrev_b32 v3, 10, v3")
    e("v_bfe_u32 v4, v2, 4, 1")
    e("v_lshl_add_u32 v3, v4, 9, v3")
    e("v_bfe_u32 v5, v2, 2, 2")
    e("v_lshl_add_u32 v3, v5, 6, v3")
    e("v_lshl_add_u32 v3, v4, 5, v3")
    e("v_and_b32 v5, 3, v2")
    e("v_lshl_add_u32 v3, v5, 3, v3")
    e("v_xor_b32 v4, 32, v3")
    for q in range(NS):
        e(f"v_add_u32 v{18+2*q}, {BOFF+q*STG}, v3")
        e(f"v_add_u32 v{19+2*q}, {BOFF+q*STG}, v4")

    AF = 96
    BF = 128

    def base(b):
        return ("a", 32 * b) if b < 3 else ("v", 32 + 32 * (b - 3))

    def tile(rb, cb):
        k, o = base(cb >> 1)
        o += rb * 8 + (cb & 1) * 4
        return f"{k}[{o}:{o+3}]"

    for r in range(96):
        e(f"v_accvgpr_write_b32 a{r}, 0")
    for r in range(32, 256):
        e(f"v_mov_b32 v{r}, 0")

    def a_reads(stage, abuf):
        return [[f"ds_read_b128 a[{AF+abuf*16+rb*4}:{AF+abuf*16+rb*4+3}], v{14+stage} offset:{rb*1024}"] for rb in range(4)]

    def b_reads(stage, half):
        g = []
        for i in range(10):
            cb = half * 10 + i
            d = BF + half * 40 + i * 4
            vb = 18 + 2 * stage + (cb & 1)
            o = (cb >> 1) * 2048
            g.append([f"ds_read_b64_tr_b16 a[{d}:{d+1}], v{vb} offset:{o}"])
            g.append([f"ds_read_b64_tr_b16 a[{d+2}:{d+3}], v{vb} offset:{o+256}"])
        return g

    def mfmas(half, abuf):
        m = []
        for i in range(10):
            cb = half * 10 + i
            for rb in range(4):
                a = AF + abuf * 16 + rb * 4
                bb = BF + half * 40 + i * 4
                t = tile(rb, cb)
                if cb < 4:
                    m.append(f"v_mfma_f32_16x16x32_bf16 {t}, a[{a}:{a+3}], a[{bb}:{bb+3}], {t}")
                else:
                    m.append(f"v_mfma_f32_16x16x32_bf16 {t}, a[{bb}:{bb+3}], a[{a}:{a+3}], {t}")
        return m

    def merge(reads, dmas, nm):
        slots = [[] for _ in range(nm)]
        flat = [x for g in dmas for x in g]
        nr = len(reads)
        if MODE == 0:
            for i, g in enumerate(reads):
                slots[i].append(g)
            free = nm - nr
            for j, x in enumerate(flat):
                slots[min(nm - 1, nr + (j * free) // max(1, len(flat)))].append([x])
        else:
            for i, g in enumerate(reads):
                slots[min(nm - 1, (i * 3) // 2)].append(g)
            used = [len(x) for x in slots]
            pos = [i for i in range(nm) if used[i] == 0]
            for j, x in enumerate(flat):
                slots[pos[min(len(pos) - 1, (j * len(pos)) // max(1, len(flat)))]].append([x])
        return slots

    def emit_sub(mf, slots):
        for m, sl in zip(mf, slots):
            e(m)
            for g in sl:
                for s in g:
                    e(s)

    def k32step(q, dma_first, dma_second, wait_n, last):
        nodma = "nodma" in EXP
        ab = q & 1
        d0 = dma_groups((q - 1) % NS)[5:] if (dma_first and not nodma) else []
        e("s_waitcnt lgkmcnt(0)")
        emit_sub(mfmas(0, ab), merge(b_reads(q, 1), d0, 40))
        if not last:
            e(f"s_waitcnt vmcnt({wait_n}) lgkmcnt(0)")
            e("s_barrier")
        else:
            e("s_waitcnt lgkmcnt(0)")
        d1 = dma_groups(q)[:5] if (dma_second and not nodma) else []
        rd = (a_reads((q + 1) % NS, ab ^ 1) + b_reads((q + 1) % NS, 0)) if not last else []
        emit_sub(mfmas(1, ab), merge(rd, d1, 40))

    e("s_waitcnt vmcnt(27)")
    e("s_barrier")
    for g in a_reads(0, 0) + b_reads(0, 0):
        for s in g:
            e(s)
    e("s_mov_b32 s63, 0")
    if "stamp" in EXP:
        e("s_memtime s[82:83]")
    k32step(0, False, True, 18, False)
    e.label("K1_LOOP")
    for j in range(4):
        k32step((1 + j) % NS, True, True, 18, False)
    e("s_add_u32 s63, s63, 1")
    e("s_cmp_lt_u32 s63, 6")
    e("s_cbranch_scc1 K1_LOOP")
    k32step(1, True, True, 18, False)
    k32step(2, True, True, 18, False)
    k32step(3, True, True, 18, False)
    k32step(0, True, False, 18, False)
    k32step(1, False, False, 9, False)
    k32step(2, False, False, 0, False)
    k32step(3, False, False, 0, True)
    e("s_nop 15")

    if "stamp" in EXP:
        e("s_memtime s[84:85]")
    e("v_mov_b32 v3, 0")
    e("v_lshlrev_b32 v4, 2, v0")
    e("s_lshl_b32 s3, s2, 7")
    e(f"s_add_u32 s3, s3, {FLG_OFF}")
    e("v_cmp_gt_u32 vcc, 32, v0")
    e("s_and_saveexec_b64 s[92:93], vcc")
    e("buffer_store_dword v3, v4, s[28:31], s3 offen")
    e("s_mov_b64 exec, s[92:93]")
    if "nopf3" not in EXP:
        srd(e, 8, 96, 97, 1024 * 2048)
        srd(e, 12, 98, 99, 3584 * 2048)
        e("v_lshlrev_b32 v3, 4, v0")
        e("s_lshl_b32 s3, s2, 13")
        for i in range(2):
            e(f"buffer_load_dwordx4 a[{96+4*i}:{99+4*i}], v3, s[8:11], s3 offen")
            e("s_add_u32 s3, s3, 4096")
        e("s_mul_i32 s3, s2, 28672")
        for i in range(7):
            e(f"buffer_load_dwordx4 a[{104+4*i}:{107+4*i}], v3, s[12:15], s3 offen")
            e("s_add_u32 s3, s3, 4096")
    e("v_and_b32 v3, 15, v2")
    e("v_lshlrev_b32 v4, 6, v1")
    e("v_add_u32 v3, v3, v4")
    e("v_bfe_u32 v5, v2, 4, 1")
    e("v_lshlrev_b32 v5, 5, v5")
    e("v_lshrrev_b32 v4, 5, v2")
    e("v_lshl_add_u32 v5, v4, 4, v5")
    e(f"s_movk_i32 s3, {A2_LD}")
    e("v_mul_lo_u32 v26, v3, s3")
    e("v_add_u32 v26, v26, v5")
    e("v_lshlrev_b32 v27, 11, v3")
    e("v_add_u32 v27, v27, v5")
    e(f"s_mul_i32 s64, s33, {256*A2_LD}")
    e(f"s_add_u32 s64, s64, {A2_OFF + 2048}")
    e("s_lshl_b32 s65, s33, 19")
    e(f"s_add_u32 s65, s65, {PQ_OFF}")

    def pack_store(src, dst, vaddr, sbase, scol, ld):
        for rb in range(4):
            for i in range(4):
                e(f"v_cvt_pk_bf16_f32 v{dst+4*rb+i}, v{src+8*rb+2*i}, v{src+8*rb+2*i+1}")
        e("s_nop 0")
        for rb in range(4):
            e(f"v_permlane16_swap_b32 v{dst+4*rb}, v{dst+4*rb+2}")
            e(f"v_permlane16_swap_b32 v{dst+4*rb+1}, v{dst+4*rb+3}")
        e(f"s_add_u32 s3, {sbase}, {scol}")
        for rb in range(4):
            e(f"buffer_store_dwordx4 v[{dst+4*rb}:{dst+4*rb+3}], v{vaddr}, s[28:31], s3 offen")
            if rb < 3:
                e(f"s_add_u32 s3, s3, {16*ld}")

    def glu_v(bg, scol):
        _, G = base(bg)
        _, U = base(bg + 1)
        for i in range(16):
            e(f"v_pk_mul_f32 v[{G+2*i}:{G+2*i+1}], v[{G+2*i}:{G+2*i+1}], v[{U+2*i}:{U+2*i+1}]")
        pack_store(G, U, 26, "s64", scol, A2_LD)

    glu_v(8, "s56")
    glu_v(6, "s54")
    T = 192
    T2 = 128
    PK = 240
    PV = 176
    ONES = 28
    for i in range(4):
        e(f"v_mov_b32 v{ONES+i}, 0x3f803f80")
    for r in range(32):
        e(f"v_accvgpr_read_b32 v{T+r}, a{r}")
    for r in range(32):
        e(f"v_mul_f32 v{T2+r}, {LOG2E:#x}, v{T+r}")
    for r in range(32):
        e(f"v_min_f32 v{T2+r}, 0, v{T2+r}")
    for r in range(32):
        e(f"v_exp_f32 v{T2+r}, v{T2+r}")
    for r in range(32):
        e(f"v_max_f32 v{T+r}, 0, v{T+r}")
    for r in range(32):
        e(f"v_add_f32 v{T+r}, {EPS6:#x}, v{T+r}")
    for r in range(32):
        e(f"v_add_f32 v{T+r}, v{T+r}, v{T2+r}")

    def kvpack(dst):
        for m in range(2):
            for h in range(2):
                for rr in range(2):
                    o = T + (2 * m + rr) * 8 + h * 4
                    d = dst + (m * 2 + h) * 4 + rr * 2
                    e(f"v_cvt_pk_bf16_f32 v{d}, v{o}, v{o+1}")
                    e(f"v_cvt_pk_bf16_f32 v{d+1}, v{o+2}, v{o+3}")
    kvpack(PK)
    for r in range(32):
        e(f"v_accvgpr_read_b32 v{T+r}, a{32+r}")
    kvpack(PV)
    e("s_nop 1")
    KVA = T2
    for m in range(2):
        for dh in range(2):
            pa = PK + (m * 2 + dh) * 4
            for eh in range(2):
                pb = PV + (m * 2 + eh) * 4
                t = KVA + (dh * 2 + eh) * 4
                c = "0" if m == 0 else f"v[{t}:{t+3}]"
                e(f"v_mfma_f32_16x16x32_bf16 v[{t}:{t+3}], v[{pa}:{pa+3}], v[{pb}:{pb+3}], {c}")
            t = KVA + 16 + dh * 4
            c = "0" if m == 0 else f"v[{t}:{t+3}]"
            e(f"v_mfma_f32_16x16x32_bf16 v[{t}:{t+3}], v[{pa}:{pa+3}], v[{ONES}:{ONES+3}], {c}")
    e("s_barrier")
    e("v_lshlrev_b32 v3, 4, v2")
    e("v_lshlrev_b32 v4, 13, v1")
    e("v_add_u32 v3, v3, v4")
    e("s_nop 7")
    for t in range(4):
        e(f"ds_write_b128 v3, v[{KVA+4*t}:{KVA+4*t+3}] offset:{t*1024}")
    for t in range(4):
        z = KVA + 16 + (t >> 1) * 4
        e(f"ds_write_b128 v3, v[{z}:{z+3}] offset:{4096+t*1024}")
    glu_v(4, "s52")
    for r in range(32):
        e(f"v_accvgpr_read_b32 v{T+r}, a{64+r}")
    e("s_cmp_eq_u32 s37, 0")
    e("s_cbranch_scc0 K1_SLOT1_GLU")
    pack_store(T, 64, 27, "s65", "s50", 2048)
    pack_store(32, 80, 27, "s65", "s51", 2048)
    e("s_branch K1_SLOT1_DONE")
    e.label("K1_SLOT1_GLU")
    for i in range(16):
        e(f"v_pk_mul_f32 v[{T+2*i}:{T+2*i+1}], v[{T+2*i}:{T+2*i+1}], v[{32+2*i}:{32+2*i+1}]")
    pack_store(T, 64, 26, "s64", "s50", A2_LD)
    e.label("K1_SLOT1_DONE")

    e("s_waitcnt lgkmcnt(0)")
    e("s_barrier")
    e("v_lshlrev_b32 v3, 4, v0")
    R = 160
    for w in range(4):
        e(f"ds_read_b128 v[{R+4*w}:{R+4*w+3}], v3 offset:{w*8192}")
        e(f"ds_read_b128 v[{R+16+4*w}:{R+16+4*w+3}], v3 offset:{w*8192+4096}")
    e("s_waitcnt lgkmcnt(0)")
    for half in range(2):
        b = R + 16 * half
        for i in range(4):
            e(f"v_add_f32 v{b+i}, v{b+i}, v{b+4+i}")
            e(f"v_add_f32 v{b+8+i}, v{b+8+i}, v{b+12+i}")
        for i in range(4):
            e(f"v_add_f32 v{b+i}, v{b+i}, v{b+8+i}")
    e("s_lshl_b32 s3, s34, 3")
    e("s_add_u32 s3, s3, s33")
    e("s_lshl_b32 s3, s3, 13")
    e(f"s_add_u32 s3, s3, {KVP_OFF}")
    e(f"buffer_store_dwordx4 v[{R}:{R+3}], v3, s[28:31], s3 offen")
    e("s_add_u32 s3, s3, 4096")
    e(f"buffer_store_dwordx4 v[{R+16}:{R+19}], v3, s[28:31], s3 offen")
    if "stamp" in EXP:
        stamp_end(e, 28, 35, 2)
    e.label("K1_END")
    e("s_endpgm")
    return kn, e.text(), kernel_desc(kn, 464, 256), (256, 256, 147456)


def gen_k2():
    e = E()
    kn = "k2_attn_kernel"
    e.raw(f".globl {kn}\n.p2align 8\n.type {kn},@function")
    e.label(kn)
    e("s_cmp_ge_u32 s2, 512")
    e("s_cbranch_scc1 K2_END")
    e("s_cmp_ge_u32 s2, 256")
    e("s_cbranch_scc0 K2_MAIN")
    e("s_load_dwordx2 s[64:65], s[0:1], 16")
    e("s_load_dwordx2 s[66:67], s[0:1], 48")
    e("s_sub_u32 s3, s2, 256")
    e("v_lshlrev_b32 v1, 4, v0")
    e("s_waitcnt lgkmcnt(0)")
    srd(e, 4, 64, 65, 1024 * 2048)
    srd(e, 8, 66, 67, 3584 * 2048)
    e("s_lshl_b32 s32, s3, 13")
    e("s_mul_i32 s33, s3, 28672")
    for i in range(2):
        e(f"buffer_load_dwordx4 v[{4+4*i}:{7+4*i}], v1, s[4:7], s32 offen")
        e("s_add_u32 s32, s32, 4096")
    for i in range(7):
        e(f"buffer_load_dwordx4 v[{12+4*i}:{15+4*i}], v1, s[8:11], s33 offen")
        e("s_add_u32 s33, s33, 4096")
    e("s_waitcnt vmcnt(0)")
    e("s_branch K2_END")
    e.label("K2_MAIN")
    e("s_load_dwordx2 s[64:65], s[0:1], 0")
    e("s_load_dwordx2 s[66:67], s[0:1], 56")
    e("s_load_dwordx2 s[72:73], s[0:1], 80")
    e("s_and_b32 s33, s2, 31")
    e("s_lshr_b32 s34, s2, 5")
    e("v_lshrrev_b32 v1, 6, v0")
    e("v_and_b32 v2, 63, v0")
    e("v_readfirstlane_b32 s35, v1")
    e("s_waitcnt lgkmcnt(0)")
    srd(e, 4, 64, 65, 2048 * 2048)
    srd(e, 8, 66, 67, 2048)
    srd(e, 28, 72, 73, 0x10000000)
    e("v_and_b32 v3, 31, v2")
    e("v_lshlrev_b32 v4, 6, v1")
    e("v_add_u32 v3, v3, v4")
    e("v_lshrrev_b32 v5, 5, v2")
    e("v_lshlrev_b32 v5, 4, v5")
    e("v_lshlrev_b32 v6, 11, v3")
    e("v_add_u32 v6, v6, v5")
    e("s_lshl_b32 s36, s34, 19")
    e("s_lshl_b32 s37, s33, 6")
    e("s_add_u32 s36, s36, s37")
    e(f"s_add_u32 s36, s36, {PQ_OFF}")
    e(f"s_add_u32 s38, s36, {32*2048}")
    Q = 32
    e(f"buffer_load_dwordx4 v[{Q}:{Q+3}], v6, s[28:31], s36 offen")
    e(f"buffer_load_dwordx4 v[{Q+4}:{Q+7}], v6, s[28:31], s36 offen offset:32")
    e(f"buffer_load_dwordx4 v[{Q+8}:{Q+11}], v6, s[28:31], s38 offen")
    e(f"buffer_load_dwordx4 v[{Q+12}:{Q+15}], v6, s[28:31], s38 offen offset:32")
    e("v_lshlrev_b32 v7, 4, v0")
    e("s_lshl_b32 s39, s33, 16")
    e(f"s_add_u32 s39, s39, {KVP_OFF}")
    PL = 64
    for rt in range(8):
        e(f"s_add_u32 s3, s39, {rt*8192}")
        e(f"buffer_load_dwordx4 v[{PL+8*rt}:{PL+8*rt+3}], v7, s[28:31], s3 offen")
        e(f"s_add_u32 s3, s39, {rt*8192+4096}")
        e(f"buffer_load_dwordx4 v[{PL+8*rt+4}:{PL+8*rt+7}], v7, s[28:31], s3 offen")
    e("v_lshlrev_b32 v8, 5, v2")
    e("s_lshl_b32 s40, s2, 3")
    e("s_lshl_b32 s41, s35, 1")
    e("s_add_u32 s40, s40, s41")
    e("s_lshl_b32 s41, s40, 11")
    e("s_add_u32 s42, s41, 2048")
    GX = 128
    e(f"buffer_load_dwordx4 v[{GX}:{GX+3}], v8, s[4:7], s41 offen")
    e(f"buffer_load_dwordx4 v[{GX+4}:{GX+7}], v8, s[4:7], s41 offen offset:16")
    e(f"buffer_load_dwordx4 v[{GX+8}:{GX+11}], v8, s[4:7], s42 offen")
    e(f"buffer_load_dwordx4 v[{GX+12}:{GX+15}], v8, s[4:7], s42 offen offset:16")
    e(f"buffer_load_dwordx4 v[{GX+16}:{GX+19}], v8, s[8:11], 0 offen")
    e(f"buffer_load_dwordx4 v[{GX+20}:{GX+23}], v8, s[8:11], 0 offen offset:16")
    e("s_waitcnt vmcnt(22)")
    PQ = 48
    T = 160
    for blk in range(2):
        for i in range(8):
            src = Q + 8 * blk + i
            e(f"v_lshlrev_b32 v{T+2*i}, 16, v{src}")
            e(f"v_and_b32 v{T+2*i+1}, 0xffff0000, v{src}")
        for r in range(16):
            e(f"v_mul_f32 v{T+16+r}, {LOG2E:#x}, v{T+r}")
        for r in range(16):
            e(f"v_min_f32 v{T+16+r}, 0, v{T+16+r}")
        for r in range(16):
            e(f"v_exp_f32 v{T+16+r}, v{T+16+r}")
        for r in range(16):
            e(f"v_max_f32 v{T+r}, 0, v{T+r}")
        for r in range(16):
            e(f"v_add_f32 v{T+r}, {EPS6:#x}, v{T+r}")
        for r in range(16):
            e(f"v_add_f32 v{T+r}, v{T+r}, v{T+16+r}")
        for i in range(8):
            e(f"v_cvt_pk_bf16_f32 v{PQ+8*blk+i}, v{T+2*i}, v{T+2*i+1}")
    e("s_waitcnt vmcnt(6)")
    for rt in range(1, 8):
        for i in range(8):
            e(f"v_add_f32 v{PL+i}, v{PL+i}, v{PL+8*rt+i}")
    for i in range(4):
        e(f"v_cvt_pk_bf16_f32 v{T+i}, v{PL+2*i}, v{PL+2*i+1}")
    e("v_and_b32 v9, 31, v2")
    e("v_lshlrev_b32 v9, 6, v9")
    e("v_lshlrev_b32 v10, 4, v1")
    e("v_add_u32 v9, v9, v10")
    e("v_lshrrev_b32 v10, 5, v2")
    e("v_lshlrev_b32 v10, 3, v10")
    e("v_add_u32 v9, v9, v10")
    e(f"ds_write_b64 v9, v[{T}:{T+1}]")
    e(f"ds_write_b64 v9, v[{T+2}:{T+3}] offset:2048")
    e("s_waitcnt vmcnt(0)")
    e("v_mov_b32 v12, 0")
    e("v_mov_b32 v13, 0")
    for i in range(8):
        e(f"v_dot2_f32_bf16 v12, v{GX+i}, v{GX+16+i}, v12")
        e(f"v_dot2_f32_bf16 v13, v{GX+8+i}, v{GX+16+i}, v13")
    e("s_waitcnt lgkmcnt(0)")
    e("s_barrier")
    e("v_and_b32 v9, 31, v2")
    e("v_lshlrev_b32 v9, 6, v9")
    e("v_add_u32 v9, v9, v5")
    KA = 64
    e(f"ds_read_b128 v[{KA}:{KA+3}], v9")
    e(f"ds_read_b128 v[{KA+4}:{KA+7}], v9 offset:32")
    e(f"ds_read_b128 v[{KA+8}:{KA+11}], v9 offset:2048")
    e(f"ds_read_b128 v[{KA+12}:{KA+15}], v9 offset:2080")
    for off in (0x041F, 0x081F, 0x101F, 0x201F, 0x401F):
        e(f"ds_swizzle_b32 v14, v12 offset:{off:#x}")
        e(f"ds_swizzle_b32 v15, v13 offset:{off:#x}")
        e("s_waitcnt lgkmcnt(0)")
        e("v_add_f32 v12, v12, v14")
        e("v_add_f32 v13, v13, v15")
    e("s_nop 0")
    e("v_readlane_b32 s44, v12, 32")
    e("v_readlane_b32 s45, v13, 32")
    e("s_nop 1")
    e("v_add_f32 v12, s44, v12")
    e("v_add_f32 v13, s45, v13")
    e(f"v_mul_f32 v12, {LOG2E | 0x80000000:#x}, v12")
    e(f"v_mul_f32 v13, {LOG2E | 0x80000000:#x}, v13")
    e("v_exp_f32 v12, v12")
    e("v_exp_f32 v13, v13")
    e("s_nop 0")
    e("v_add_f32 v12, 1.0, v12")
    e("v_add_f32 v13, 1.0, v13")
    e("v_rcp_f32 v12, v12")
    e("v_rcp_f32 v13, v13")
    e("s_lshl_b32 s3, s40, 2")
    e(f"s_add_u32 s3, s3, {G_OFF}")
    e("v_mov_b32 v14, 0")
    e("v_cmp_eq_u32 vcc, 0, v2")
    e("s_and_saveexec_b64 s[46:47], vcc")
    e("buffer_store_dwordx2 v[12:13], v14, s[28:31], s3 offen")
    e("s_mov_b64 exec, s[46:47]")
    NUM = 96
    for rb in range(2):
        for m in range(2):
            b = PQ + 8 * rb + 4 * m
            n = NUM + 16 * rb
            d = NUM + 32 + 16 * rb
            c1 = "0" if m == 0 else f"v[{n}:{n+15}]"
            c2 = "0" if m == 0 else f"v[{d}:{d+15}]"
            e(f"v_mfma_f32_32x32x16_bf16 v[{n}:{n+15}], v[{KA+4*m}:{KA+4*m+3}], v[{b}:{b+3}], {c1}")
            e(f"v_mfma_f32_32x32x16_bf16 v[{d}:{d+15}], v[{KA+8+4*m}:{KA+8+4*m+3}], v[{b}:{b+3}], {c2}")
    e(f"s_movk_i32 s3, {A2_LD}")
    e("v_mul_lo_u32 v16, v3, s3")
    e("v_add_u32 v16, v16, v5")
    e(f"s_mul_i32 s48, s34, {256*A2_LD}")
    e("s_add_u32 s48, s48, s37")
    e(f"s_add_u32 s48, s48, {A2_OFF}")
    e(f"s_add_u32 s49, s48, {32*A2_LD}")
    e("s_nop 15")
    for rb in range(2):
        n = NUM + 16 * rb
        d = NUM + 32 + 16 * rb
        e(f"v_add_f32 v17, {EPS6:#x}, v{d}")
        e("v_rcp_f32 v17, v17")
        e("s_nop 0")
        for r in range(16):
            e(f"v_mul_f32 v{n+r}, v{n+r}, v17")
        P = T + 8 * rb
        for i in range(8):
            e(f"v_cvt_pk_bf16_f32 v{P+i}, v{n+2*i}, v{n+2*i+1}")
        e("s_nop 1")
        e(f"v_permlane32_swap_b32 v{P+0}, v{P+2}")
        e(f"v_permlane32_swap_b32 v{P+1}, v{P+3}")
        e(f"v_permlane32_swap_b32 v{P+4}, v{P+6}")
        e(f"v_permlane32_swap_b32 v{P+5}, v{P+7}")
        e(f"buffer_store_dwordx4 v[{P}:{P+3}], v16, s[28:31], s{48+rb} offen")
        e(f"buffer_store_dwordx4 v[{P+4}:{P+7}], v16, s[28:31], s{48+rb} offen offset:32")
    e.label("K2_END")
    e("s_endpgm")
    return kn, e.text(), kernel_desc(kn, 192, 192), (512, 256, 4096)


X_OFF = 28 << 20
O_OFF = 40 << 20


def gen_k3():
    e = E()
    kn = "k3_gemm2_kernel"
    STP = [64, 66, 40, 42, 76, 92, 94, 8]
    stn = [0]

    def stamp():
        if "fine" in EXP:
            e(f"s_memtime s[{STP[stn[0]]}:{STP[stn[0]]+1}]")
            stn[0] += 1
    STG = 32768
    BOFF = 16384
    NS = 4
    SCR = 131072
    e.raw(f".globl {kn}\n.p2align 8\n.type {kn},@function")
    e.label(kn)
    e("s_cmp_ge_u32 s2, 256")
    e("s_cbranch_scc1 K3_END")
    if "stamp3" in EXP:
        e("s_memtime s[80:81]")
        e("s_memrealtime s[88:89]")
    e("s_load_dwordx2 s[64:65], s[0:1], 16")
    e("s_load_dwordx2 s[66:67], s[0:1], 48")
    e("s_load_dwordx4 s[72:75], s[0:1], 72")
    e("s_load_dwordx2 s[76:77], s[0:1], 0")
    e("s_load_dwordx4 s[96:99], s[0:1], 56")
    e("s_and_b32 s36, s2, 1")
    e("s_bfe_u32 s3, s2, 0x20001")
    e("s_lshr_b32 s32, s2, 3")
    e("s_and_b32 s33, s32, 3")
    e("s_lshl_b32 s3, s3, 2")
    e("s_add_u32 s33, s33, s3")
    e("s_lshr_b32 s34, s32, 2")
    e("v_lshrrev_b32 v1, 6, v0")
    e("v_and_b32 v2, 63, v0")
    e("v_readfirstlane_b32 s35, v1")
    e("s_waitcnt lgkmcnt(0)")
    srd(e, 28, 74, 75, 0x10000000)
    srd(e, 16, 72, 73, 256)
    e(f"s_mul_i32 s3, s33, {128*A2_LD}")
    e(f"s_add_u32 s3, s3, {A2_OFF}")
    e("s_add_u32 s68, s74, s3")
    e("s_addc_u32 s69, s75, 0")
    srd(e, 4, 68, 69, 128 * A2_LD)
    srd(e, 8, 64, 65, 1024 * 2048)
    srd(e, 12, 66, 67, 3584 * 2048)
    for i in range(4):
        e(f"s_mov_b32 s{20+i}, s{12+i}")
    e("s_cmp_eq_u32 s36, 0")
    for i in range(3):
        e(f"s_cselect_b32 s{24+i}, s{8+i}, s{12+i}")
    e(f"s_mul_i32 s60, s36, {1280*2048}")
    e(f"s_mul_i32 s61, s36, {2560*2048}")
    e("s_lshl_b32 s3, s34, 8")
    e("s_add_u32 s60, s60, s3")
    e("s_add_u32 s61, s61, s3")
    e(f"s_mul_i32 s59, s36, {1280*2}")
    e("s_add_u32 s59, s59, 2048")
    e(f"s_mul_i32 s57, s36, {3584*2}")
    e("s_mov_b32 s62, 0")
    e("s_mov_b32 s38, s98")
    e("s_mov_b32 s39, s99")
    e("s_mov_b32 s100, s59")
    e("s_mov_b32 s101, s60")
    if "stag3" not in EXP:
        e("s_mov_b32 s99, 0")
    else:
        e("s_and_b32 s3, s33, 3")
        e("s_mul_i32 s99, s3, 5")
        e("s_lshl_b32 s3, s34, 1")
        e("s_add_u32 s99, s99, s3")
        e("s_sub_u32 s3, s99, 20")
        e("s_cmp_ge_u32 s99, 20")
        e("s_cselect_b32 s99, s3, s99")
    e("s_lshl_b32 s3, s99, 7")
    e("s_add_u32 s59, s59, s3")
    e("s_lshl_b32 s3, s99, 17")
    e("s_add_u32 s60, s60, s3")
    srd(e, 68, 38, 39, 2048 * 2048)
    e("s_lshl_b32 s45, s35, 12")
    e("s_lshl_b32 s46, s35, 12")
    e(f"s_add_u32 s46, s46, {BOFF}")
    e("v_lshrrev_b32 v3, 3, v2")
    e("v_lshlrev_b32 v4, 5, v1")
    e("v_add_u32 v3, v3, v4")
    e(f"s_movk_i32 s3, {A2_LD}")
    e("v_mul_lo_u32 v3, v3, s3")
    e("v_lshrrev_b32 v5, 4, v2")
    e("v_and_b32 v6, 7, v2")
    e("v_xor_b32 v7, v6, v5")
    e("v_lshl_add_u32 v10, v7, 4, v3")
    e("v_xor_b32 v7, 4, v7")
    e("v_lshl_add_u32 v11, v7, 4, v3")
    e("v_lshrrev_b32 v3, 4, v2")
    e("v_lshlrev_b32 v4, 4, v1")
    e("v_add_u32 v4, v3, v4")
    e("v_lshlrev_b32 v4, 11, v4")
    e("v_bfe_u32 v5, v2, 2, 2")
    e("v_xor_b32 v5, v5, v3")
    e("v_lshl_add_u32 v4, v5, 6, v4")
    e("v_and_b32 v5, 3, v2")
    e("v_lshl_add_u32 v12, v5, 4, v4")

    def dma_groups(stage, ph2=False):
        g = []
        for i in range(4):
            g.append([f"s_add_u32 m0, s45, {stage*STG + i*1024}",
                      (f"s_add_u32 s3, s59, s{52+i}" if ph2 else f"s_add_u32 s3, s59, {i*8*A2_LD}"),
                      f"buffer_load_dwordx4 v{10+(i&1)}, s[4:7], s3 offen lds"])
            g.append([f"s_add_u32 m0, s46, {stage*STG + i*1024}",
                      f"s_add_u32 s3, s60, {i*4*2048}",
                      f"buffer_load_dwordx4 v12, s[20:23], s3 offen lds"])
        if ph2:
            g[-1] = g[-1] + ["s_add_u32 s59, s59, s27",
                             f"s_add_u32 s60, s60, {64*2048}"]
        else:
            g[-1] = g[-1] + ["s_add_u32 s59, s59, 128",
                             f"s_add_u32 s60, s60, {64*2048}",
                             "s_add_u32 s99, s99, 1",
                             "s_cmp_eq_u32 s99, 20",
                             "s_cselect_b32 s59, s100, s59",
                             "s_cselect_b32 s60, s101, s60",
                             "s_add_u32 s62, s62, 1",
                             "s_cmp_eq_u32 s62, 20",
                             "s_cselect_b32 s60, s61, s60",
                             "s_cselect_b32 s59, s57, s59",
                             "s_cselect_b32 s20, s24, s20",
                             "s_cselect_b32 s21, s25, s21",
                             "s_cselect_b32 s22, s26, s22"]
        return g

    for st in range(NS - 1):
        e.tag = ("D", st)
        for g in dma_groups(st):
            for s in g:
                e(s)

    e("s_and_b32 s50, s2, 31")
    e("s_lshr_b32 s51, s2, 5")
    srd(e, 40, 76, 77, 2048 * 2048)
    srd(e, 52, 96, 97, 2048)
    R3, R5, R9 = 192, 193, 194
    G0, G1, G2, G3 = 195, 196, 197, 198
    PQ = 200
    T = 216
    PS = 248
    Q, PL, GX = 0, 16, 80
    def att_loads():
        e(f"v_and_b32 v{R3}, 31, v2")
        e("v_lshlrev_b32 v4, 6, v1")
        e(f"v_add_u32 v{R3}, v{R3}, v4")
        e(f"v_lshrrev_b32 v{R5}, 5, v2")
        e(f"v_lshlrev_b32 v{R5}, 4, v{R5}")
        e(f"v_lshlrev_b32 v6, 11, v{R3}")
        e(f"v_add_u32 v6, v6, v{R5}")
        e("s_lshl_b32 s38, s51, 19")
        e("s_lshl_b32 s37, s50, 6")
        e("s_add_u32 s38, s38, s37")
        e(f"s_add_u32 s38, s38, {PQ_OFF}")
        e(f"s_add_u32 s39, s38, {32*2048}")
        e(f"buffer_load_dwordx4 a[{Q}:{Q+3}], v6, s[28:31], s38 offen")
        e(f"buffer_load_dwordx4 a[{Q+4}:{Q+7}], v6, s[28:31], s38 offen offset:32")
        e(f"buffer_load_dwordx4 a[{Q+8}:{Q+11}], v6, s[28:31], s39 offen")
        e(f"buffer_load_dwordx4 a[{Q+12}:{Q+15}], v6, s[28:31], s39 offen offset:32")
        e("v_lshlrev_b32 v7, 4, v0")
        e("s_lshl_b32 s39, s50, 16")
        e(f"s_add_u32 s39, s39, {KVP_OFF}")
        for rt in range(8):
            e(f"s_add_u32 s27, s39, {rt*8192}")
            e(f"buffer_load_dwordx4 a[{PL+8*rt}:{PL+8*rt+3}], v7, s[28:31], s27 offen")
            e(f"s_add_u32 s27, s39, {rt*8192+4096}")
            e(f"buffer_load_dwordx4 a[{PL+8*rt+4}:{PL+8*rt+7}], v7, s[28:31], s27 offen")
        e("v_lshlrev_b32 v8, 5, v2")
        e("s_lshl_b32 s48, s51, 8")
        e("s_lshl_b32 s27, s50, 3")
        e("s_add_u32 s48, s48, s27")
        e("s_lshl_b32 s27, s35, 1")
        e("s_add_u32 s48, s48, s27")
        e("s_lshl_b32 s47, s48, 11")
        e("s_add_u32 s49, s47, 2048")
        e(f"buffer_load_dwordx4 a[{GX}:{GX+3}], v8, s[40:43], s47 offen")
        e(f"buffer_load_dwordx4 a[{GX+4}:{GX+7}], v8, s[40:43], s47 offen offset:16")
        e(f"buffer_load_dwordx4 a[{GX+8}:{GX+11}], v8, s[40:43], s49 offen")
        e(f"buffer_load_dwordx4 a[{GX+12}:{GX+15}], v8, s[40:43], s49 offen offset:16")
        e(f"buffer_load_dwordx4 a[{GX+16}:{GX+19}], v8, s[52:55], 0 offen")
        e(f"buffer_load_dwordx4 a[{GX+20}:{GX+23}], v8, s[52:55], 0 offen offset:16")

    def att_a():
        for blk in range(2):
            for i in range(8):
                e(f"v_accvgpr_read_b32 v{T+2*i+1}, a{Q+8*blk+i}")
            for i in range(8):
                e(f"v_lshlrev_b32 v{T+2*i}, 16, v{T+2*i+1}")
                e(f"v_and_b32 v{T+2*i+1}, 0xffff0000, v{T+2*i+1}")
            for r in range(16):
                e(f"v_mul_f32 v{T+16+r}, {LOG2E:#x}, v{T+r}")
            for r in range(16):
                e(f"v_min_f32 v{T+16+r}, 0, v{T+16+r}")
            for r in range(16):
                e(f"v_exp_f32 v{T+16+r}, v{T+16+r}")
            for r in range(16):
                e(f"v_max_f32 v{T+r}, 0, v{T+r}")
            for r in range(16):
                e(f"v_add_f32 v{T+r}, {EPS6:#x}, v{T+r}")
            for r in range(16):
                e(f"v_add_f32 v{T+r}, v{T+r}, v{T+16+r}")
            for i in range(8):
                e(f"v_cvt_pk_bf16_f32 v{PQ+8*blk+i}, v{T+2*i}, v{T+2*i+1}")
        for i in range(8):
            e(f"v_accvgpr_read_b32 v{PS+i}, a{PL+i}")
        for half in range(2):
            n = 32 if half == 0 else 24
            for i in range(n):
                e(f"v_accvgpr_read_b32 v{T+i}, a{PL+8+32*half+i}")
            for i in range(n):
                e(f"v_add_f32 v{PS+(i&7)}, v{PS+(i&7)}, v{T+i}")
        for i in range(4):
            e(f"v_cvt_pk_bf16_f32 v{T+24+i}, v{PS+2*i}, v{PS+2*i+1}")
        e(f"v_and_b32 v{R9}, 15, v2")
        e(f"v_lshlrev_b32 v{R9}, 6, v{R9}")
        e(f"v_and_b32 v{G2}, 1, v1")
        e(f"v_lshl_add_u32 v{R9}, v{G2}, 10, v{R9}")
        e(f"v_lshrrev_b32 v{G2}, 1, v1")
        e(f"v_lshl_add_u32 v{R9}, v{G2}, 5, v{R9}")
        e(f"v_lshrrev_b32 v{G2}, 4, v2")
        e(f"v_lshl_add_u32 v{R9}, v{G2}, 3, v{R9}")
        e(f"v_add_u32 v{R9}, {SCR}, v{R9}")
        e(f"ds_write_b64 v{R9}, v[{T+24}:{T+25}]")
        e(f"ds_write_b64 v{R9}, v[{T+26}:{T+27}] offset:2048")
        for i in range(24):
            e(f"v_accvgpr_read_b32 v{T+i}, a{GX+i}")
        e(f"v_mov_b32 v{G0}, 0")
        e(f"v_mov_b32 v{G1}, 0")
        for i in range(8):
            e(f"v_dot2_f32_bf16 v{G0}, v{T+i}, v{T+16+i}, v{G0}")
            e(f"v_dot2_f32_bf16 v{G1}, v{T+8+i}, v{T+16+i}, v{G1}")

    def att_b():
        KA = T
        e(f"v_and_b32 v{R9}, 31, v2")
        e(f"v_lshlrev_b32 v{R9}, 6, v{R9}")
        e(f"v_add_u32 v{R9}, v{R9}, v{R5}")
        e(f"v_add_u32 v{R9}, {SCR}, v{R9}")
        e(f"ds_read_b128 v[{KA}:{KA+3}], v{R9}")
        e(f"ds_read_b128 v[{KA+4}:{KA+7}], v{R9} offset:32")
        e(f"ds_read_b128 v[{KA+8}:{KA+11}], v{R9} offset:2048")
        e(f"ds_read_b128 v[{KA+12}:{KA+15}], v{R9} offset:2080")
        for off in (0x041F, 0x081F, 0x101F, 0x201F, 0x401F):
            e(f"ds_swizzle_b32 v{G2}, v{G0} offset:{off:#x}")
            e(f"ds_swizzle_b32 v{G3}, v{G1} offset:{off:#x}")
            e("s_waitcnt lgkmcnt(0)")
            e(f"v_add_f32 v{G0}, v{G0}, v{G2}")
            e(f"v_add_f32 v{G1}, v{G1}, v{G3}")
        for rb in range(2):
            for m in range(2):
                b = PQ + 8 * rb + 4 * m
                n = 16 * rb
                d = 32 + 16 * rb
                c1 = "0" if m == 0 else f"a[{n}:{n+15}]"
                c2 = "0" if m == 0 else f"a[{d}:{d+15}]"
                e(f"v_mfma_f32_32x32x16_bf16 a[{n}:{n+15}], v[{KA+4*m}:{KA+4*m+3}], v[{b}:{b+3}], {c1}")
                e(f"v_mfma_f32_32x32x16_bf16 a[{d}:{d+15}], v[{KA+8+4*m}:{KA+8+4*m+3}], v[{b}:{b+3}], {c2}")
        e(f"v_readlane_b32 s56, v{G0}, 32")
        e(f"v_readlane_b32 s58, v{G1}, 32")
        e("s_nop 1")
        e(f"v_add_f32 v{G0}, s56, v{G0}")
        e(f"v_add_f32 v{G1}, s58, v{G1}")
        e(f"v_mul_f32 v{G0}, {LOG2E | 0x80000000:#x}, v{G0}")
        e(f"v_mul_f32 v{G1}, {LOG2E | 0x80000000:#x}, v{G1}")
        e(f"v_exp_f32 v{G0}, v{G0}")
        e(f"v_exp_f32 v{G1}, v{G1}")
        e("s_nop 0")
        e(f"v_add_f32 v{G0}, 1.0, v{G0}")
        e(f"v_add_f32 v{G1}, 1.0, v{G1}")
        e(f"v_rcp_f32 v{PS}, v{G0}")
        e(f"v_rcp_f32 v{PS+1}, v{G1}")
        e("s_lshl_b32 s27, s48, 2")
        e(f"s_add_u32 s27, s27, {G_OFF}")
        e(f"v_mov_b32 v{G0}, 0")
        e.raw("{")
        e("v_cmp_eq_u32 vcc, 0, v2")
        e("s_and_saveexec_b64 s[78:79], vcc")
        e(f"buffer_store_dwordx2 v[{PS}:{PS+1}], v{G0}, s[28:31], s27 offen sc1")
        e("s_mov_b64 exec, s[78:79]")
        e.raw("}")
        e(f"v_and_b32 v{R9}, 31, v2")
        e(f"v_lshlrev_b32 v{R9}, 5, v{R9}")
        e(f"v_add_u32 v{R9}, v{R9}, v{R5}")
        e("s_lshl_b32 s48, s51, 3")
        e("s_lshl_b32 s27, s35, 1")
        e("s_add_u32 s48, s48, s27")
        e("s_lshl_b32 s48, s48, 5")
        e("s_add_u32 s48, s48, s50")
        e("s_lshl_b32 s48, s48, 11")
        e(f"s_add_u32 s48, s48, {O_OFF}")
        e("s_add_u32 s49, s48, 65536")
        e("s_nop 7")
        for rb in range(2):
            n = 16 * rb
            d = 32 + 16 * rb
            e(f"v_accvgpr_read_b32 v{G1}, a{d}")
            for r in range(16):
                e(f"v_accvgpr_read_b32 v{T+r}, a{n+r}")
            e(f"v_add_f32 v{G1}, {EPS6:#x}, v{G1}")
            e(f"v_rcp_f32 v{G1}, v{G1}")
            e("s_nop 0")
            for r in range(16):
                e(f"v_mul_f32 v{T+r}, v{T+r}, v{G1}")
            P = T + 16 + 8 * rb
            for i in range(8):
                e(f"v_cvt_pk_bf16_f32 v{P+i}, v{T+2*i}, v{T+2*i+1}")
            e("s_nop 1")
            e(f"v_permlane32_swap_b32 v{P+0}, v{P+2}")
            e(f"v_permlane32_swap_b32 v{P+1}, v{P+3}")
            e(f"v_permlane32_swap_b32 v{P+4}, v{P+6}")
            e(f"v_permlane32_swap_b32 v{P+5}, v{P+7}")
            e(f"buffer_store_dwordx4 v[{P}:{P+3}], v{R9}, s[28:31], s{48+rb} offen sc1")
            e(f"buffer_store_dwordx4 v[{P+4}:{P+7}], v{R9}, s[28:31], s{48+rb} offen offset:1024 sc1")

    e("v_and_b32 v3, 31, v2")
    e("v_lshrrev_b32 v4, 1, v1")
    e("v_lshlrev_b32 v4, 6, v4")
    e("v_add_u32 v4, v4, v3")
    e("v_lshlrev_b32 v4, 7, v4")
    e("v_bfe_u32 v5, v3, 1, 3")
    e("v_lshrrev_b32 v6, 5, v2")
    for s in range(4):
        e(f"v_add_u32 v7, {2*s}, v6")
        e("v_xor_b32 v7, v7, v5")
        e(f"v_lshl_add_u32 v{14+s}, v7, 4, v4")
        e(f"v_add_u32 v{18+s}, {2*STG}, v{14+s}")
    e("v_lshrrev_b32 v3, 5, v2")
    e("v_lshlrev_b32 v3, 11, v3")
    e("v_bfe_u32 v4, v2, 2, 2")
    e("v_lshl_add_u32 v3, v4, 8, v3")
    e("v_bfe_u32 v5, v2, 4, 1")
    e("v_lshl_add_u32 v3, v5, 5, v3")
    e("v_and_b32 v5, 3, v2")
    e("v_lshl_add_u32 v3, v5, 3, v3")
    e("v_and_b32 v5, 1, v1")
    e("v_lshlrev_b32 v5, 1, v5")
    for j in range(2):
        e(f"v_add_u32 v6, {j}, v5")
        e("v_xor_b32 v6, v6, v4")
        e("v_lshl_add_u32 v6, v6, 6, v3")
        e(f"v_add_u32 v{22+j}, {BOFF}, v6")
        e(f"v_add_u32 v{28+j}, {BOFF+2*STG}, v6")

    AF = 32
    BF = 48
    ACC = 64
    for r in range(128):
        e(f"v_mov_b32 v{ACC+r}, 0")

    def read_groups(stage, s, buf):
        g = []
        va = 14 + 4 * (stage >> 1) + s
        so = (stage & 1) * STG
        for rb in range(2):
            d = AF + buf * 8 + rb * 4
            g.append([f"ds_read_b128 v[{d}:{d+3}], v{va} offset:{so + rb*4096}"])
        for b in range(2):
            vb = (22 if stage < 2 else 28) + b
            d = BF + buf * 8 + b * 4
            g.append([f"ds_read_b64_tr_b16 v[{d}:{d+1}], v{vb} offset:{so + 4*s*1024}"])
            g.append([f"ds_read_b64_tr_b16 v[{d+2}:{d+3}], v{vb} offset:{so + 4*s*1024+1024}"])
        return g

    def mfmas(buf, aset):
        m = []
        for b in range(2):
            for rb in range(2):
                a = AF + buf * 8 + rb * 4
                bb = BF + buf * 8 + b * 4
                c = ACC + aset * 64 + (b * 2 + rb) * 16
                m.append(f"v_mfma_f32_32x32x16_bf16 v[{c}:{c+15}], v[{bb}:{bb+3}], v[{a}:{a+3}], v[{c}:{c+15}]")
        return m

    def kstep(q, aset, dma, wait_n, last, after_barrier=None, ph2=False, t=None, extra=None, need=()):
        dg = dma_groups((q + 3) % NS, ph2) if (dma and "n3dma" not in EXP) else []
        extra = list(extra or [])
        per = (len(extra) + 15) // 16

        def ex():
            for _ in range(per):
                if extra:
                    tg, e.tag = e.tag, "att"
                    for x in extra.pop(0):
                        e(x)
                    e.tag = tg
        for s in range(4):
            cur = s & 1
            if s < 3:
                rd = read_groups(q, s + 1, cur ^ 1)
            elif not last:
                rd = read_groups((q + 1) % NS, 0, cur ^ 1)
            else:
                rd = []
            e("s_waitcnt lgkmcnt(0)")
            mf = mfmas(cur, aset)
            dd = dg[2 * s:2 * s + 2]
            e.tag = ("D", None if t is None else t + 3)
            e(mf[0])
            for g in rd[0:3]:
                for x in g:
                    e(x)
            ex()
            e(mf[1])
            for g in rd[3:6]:
                for x in g:
                    e(x)
            ex()
            e(mf[2])
            for g in dd[0:1]:
                for x in g:
                    e(x)
            ex()
            e(mf[3])
            for g in dd[1:2]:
                for x in g:
                    e(x)
            ex()
            if s == 2 and not last:
                if wait_n is None:
                    wn = e.vm_needed([("D", t + 1)] + list(need))
                else:
                    wn = wait_n
                e(f"s_waitcnt vmcnt({wn}) lgkmcnt(0)")
                e("s_barrier")
                if after_barrier:
                    after_barrier()

    def signal():
        e("s_cmp_eq_u32 s35, 0")
        e("s_cbranch_scc0 K3_NOSIG")
        e("v_mov_b32 v30, 1")
        e("v_mov_b32 v31, 0")
        e("s_lshl_b32 s3, s51, 2")
        e("v_cmp_eq_u32 vcc, 0, v2")
        e("s_and_saveexec_b64 s[78:79], vcc")
        e("buffer_atomic_add v30, v31, s[16:19], s3 offen sc1")
        e("s_mov_b64 exec, s[78:79]")
        e.label("K3_NOSIG")

    e("s_waitcnt vmcnt(16)")
    e("s_barrier")
    for g in read_groups(0, 0, 0):
        for s in g:
            e(s)
    if "stamp3" in EXP:
        e("s_memtime s[82:83]")
    e("s_lshr_b32 s44, s33, 1")
    e("s_lshl_b32 s44, s44, 2")
    L = e.capture(att_loads)
    A = e.capture(att_a)
    B = e.capture(att_b)

    def split(lst, n):
        k = (len(lst) + n - 1) // n
        return [lst[i * k:(i + 1) * k] for i in range(n)]
    A0, A1 = split(A, 2)
    B0, B1 = split(B, 2)
    kstep(0, 1, True, None, False, t=0, extra=L)
    kstep(1, 1, True, None, False, t=1)
    kstep(2, 1, True, None, False, t=2, need=["att"])
    stamp()
    kstep(3, 1, True, None, False, t=3, extra=A0)
    kstep(0, 1, True, None, False, t=4, extra=A1)
    stamp()
    kstep(1, 1, True, None, False, t=5)
    stamp()
    kstep(2, 1, True, None, False, t=6, extra=B0)
    kstep(3, 1, True, None, False, t=7, extra=B1)
    stamp()
    kstep(0, 1, True, None, False, t=8)
    kstep(1, 1, True, None, False, t=9, need=["att"], after_barrier=signal)
    kstep(2, 1, True, None, False, t=10)
    kstep(3, 1, True, None, False, t=11)
    stamp()
    stamp()
    for q in range(3):
        kstep(q, 1, True, 14, False)
    e("v_mov_b32 v31, 0")
    e("buffer_load_dword v30, v31, s[16:19], s44 offen sc1")
    kstep(3, 1, True, 14, False)
    kstep(0, 1, True, 14, False)
    e("v_readfirstlane_b32 s3, v30")
    e("s_cmp_ge_u32 s3, 32")
    e("s_cbranch_scc1 K3_READY")
    e("s_mov_b32 s47, 0")
    e.label("K3_SPIN")
    e("s_sleep 8")
    e("buffer_load_dword v30, v31, s[16:19], s44 offen sc1")
    e("s_waitcnt vmcnt(0)")
    e("v_readfirstlane_b32 s3, v30")
    e("s_add_u32 s47, s47, 1")
    e("s_cmp_ge_u32 s47, 0x20000")
    e("s_cbranch_scc1 K3_READY")
    e("s_cmp_ge_u32 s3, 32")
    e("s_cbranch_scc0 K3_SPIN")
    e.label("K3_READY")
    for i in range(4):
        e(f"s_mov_b32 s{52+i}, {i*8*A2_LD}")
    e("s_movk_i32 s27, 128")
    e("s_cmp_eq_u32 s36, 0")
    e("s_cbranch_scc0 K3_NOSW")
    for i in range(4):
        e(f"s_movk_i32 s{52+i}, {i*256}")
    e("s_movk_i32 s27, 4096")
    e("s_lshl_b32 s3, s33, 18")
    e(f"s_add_u32 s3, s3, {O_OFF}")
    e("s_add_u32 s4, s74, s3")
    e("s_addc_u32 s5, s75, 0")
    e("s_and_b32 s5, s5, 0xffff")
    e("s_mov_b32 s6, 0x40000")
    e("v_lshrrev_b32 v3, 3, v2")
    e("v_lshlrev_b32 v3, 5, v3")
    e("v_lshlrev_b32 v4, 16, v1")
    e("v_add_u32 v3, v3, v4")
    e("v_lshrrev_b32 v5, 4, v2")
    e("v_and_b32 v6, 7, v2")
    e("v_xor_b32 v7, v6, v5")
    for par in range(2):
        if par:
            e("v_xor_b32 v7, 4, v7")
        e("v_lshrrev_b32 v8, 1, v7")
        e("v_lshl_add_u32 v8, v8, 10, v3")
        e("v_and_b32 v9, 1, v7")
        e(f"v_lshl_add_u32 v{10+par}, v9, 4, v8")
    e.label("K3_NOSW")
    e("v_and_b32 v3, 31, v2")
    e("v_lshrrev_b32 v4, 1, v1")
    e("v_lshlrev_b32 v4, 6, v4")
    e("v_add_u32 v3, v3, v4")
    e("v_lshlrev_b32 v4, 2, v3")
    e("s_lshl_b32 s3, s33, 9")
    e(f"s_add_u32 s3, s3, {G_OFF}")
    e("buffer_load_dword v24, v4, s[28:31], s3 offen sc1")
    e("buffer_load_dword v25, v4, s[28:31], s3 offen offset:128 sc1")
    kstep(1, 1, True, 14, False, ph2=True)
    kstep(2, 1, True, 14, False, ph2=True)
    kstep(3, 1, True, 14, False, ph2=True)
    stamp()
    e("s_mov_b32 s63, 0")
    e.label("K3_LOOP2")
    for q in range(4):
        kstep(q, 0, True, 14, False, ph2=True)
    e("s_add_u32 s63, s63, 1")
    e("s_cmp_lt_u32 s63, 3")
    e("s_cbranch_scc1 K3_LOOP2")
    kstep(0, 0, True, 14, False, ph2=True)
    kstep(1, 0, False, 8, False)
    kstep(2, 0, False, 0, False)
    kstep(3, 0, False, 0, True)
    if "stamp3" in EXP:
        e("s_memtime s[84:85]")
    e("v_and_b32 v3, 31, v2")
    e("v_lshrrev_b32 v4, 1, v1")
    e("v_lshlrev_b32 v4, 6, v4")
    e("v_add_u32 v3, v3, v4")
    e("v_sub_f32 v26, 1.0, v24")
    e("v_sub_f32 v27, 1.0, v25")
    e("s_cmp_eq_u32 s36, 0")
    e("s_cselect_b64 vcc, -1, 0")
    e("s_nop 1")
    e("v_cndmask_b32 v24, v26, v24, vcc")
    e("v_cndmask_b32 v25, v27, v25, vcc")
    e("s_nop 3")

    def scale(t):
        rb = t & 1
        c1 = ACC + t * 16
        c2 = ACC + 64 + t * 16
        for r in range(16):
            e(f"v_mul_f32 v{c1+r}, v{c1+r}, v{24+rb}")
        for r in range(16):
            e(f"v_fmac_f32 v{c1+r}, v{c2+r}, v{26+rb}")
    e("s_lshl_b32 s3, s33, 3")
    e("s_add_u32 s3, s3, s34")
    e("s_lshl_b32 s3, s3, 1")
    e("s_add_u32 s38, s3, s36")
    e("s_xor_b32 s39, s38, 1")
    for r_ in (38, 39):
        e(f"s_lshl_b32 s{r_}, s{r_}, 2")
        e(f"s_add_u32 s{r_}, s{r_}, s35")
        e(f"s_lshl_b32 s{r_}, s{r_}, 13")
        e(f"s_add_u32 s{r_}, s{r_}, {X_OFF}")
    e("v_lshlrev_b32 v5, 4, v2")
    e("v_lshlrev_b32 v6, 11, v3")
    e("v_lshrrev_b32 v7, 5, v2")
    e("v_lshl_add_u32 v6, v7, 4, v6")
    e("s_lshl_b32 s47, s33, 18")
    e("s_lshl_b32 s3, s36, 16")
    e("s_add_u32 s47, s47, s3")
    e("s_lshl_b32 s3, s34, 8")
    e("s_add_u32 s47, s47, s3")
    e("s_and_b32 s3, s35, 1")
    e("s_lshl_b32 s3, s3, 7")
    e("s_add_u32 s47, s47, s3")
    e("s_cmp_eq_u32 s36, 0")
    e("s_cbranch_scc0 K3_S1")
    for sp in range(2):
        if sp == 1:
            e.label("K3_S1")
        keep = sp
        send = sp ^ 1
        for j in range(2):
            scale(j * 2 + send)
            c = ACC + (j * 2 + send) * 16
            for rg in range(4):
                e(f"buffer_store_dwordx4 v[{c+4*rg}:{c+4*rg+3}], v5, s[28:31], s39 offen offset:{rg*1024} sc1")
            if j == 0:
                e("s_add_u32 s39, s39, 4096")
        for j in range(2):
            scale(j * 2 + keep)
        e("v_mov_b32 v30, 1")
        e("v_mov_b32 v31, 0")
        e("s_lshl_b32 s3, s2, 7")
        e("s_lshl_b32 s49, s35, 2")
        e("s_add_u32 s3, s3, s49")
        e(f"s_add_u32 s3, s3, {FLG_OFF}")
        e("s_xor_b32 s49, s3, 128")
        e("v_cmp_eq_u32 vcc, 0, v2")
        e("s_waitcnt vmcnt(0)")
        e("s_and_saveexec_b64 s[78:79], vcc")
        e("buffer_store_dword v30, v31, s[28:31], s3 offen sc1")
        e("s_mov_b64 exec, s[78:79]")
        e("v_mov_b32 v31, 0")
        e("s_mov_b32 s56, 0")
        e.label(f"K3_XSPIN{sp}")
        e("buffer_load_dword v30, v31, s[28:31], s49 offen sc1")
        e("s_waitcnt vmcnt(0)")
        e("v_readfirstlane_b32 s3, v30")
        e("s_add_u32 s56, s56, 1")
        e("s_cmp_ge_u32 s56, 0x20000")
        e(f"s_cbranch_scc1 K3_XGO{sp}")
        e("s_cmp_eq_u32 s3, 1")
        e(f"s_cbranch_scc1 K3_XGO{sp}")
        e("s_sleep 1")
        e(f"s_branch K3_XSPIN{sp}")
        e.label(f"K3_XGO{sp}")
        RX = 128
        for j in range(2):
            for rg in range(4):
                e(f"buffer_load_dwordx4 v[{RX+16*j+4*rg}:{RX+16*j+4*rg+3}], v5, s[28:31], s38 offen offset:{rg*1024} sc1")
            if j == 0:
                e("s_add_u32 s38, s38, 4096")
        for j in range(2):
            e(f"s_waitcnt vmcnt({4*(1-j)})")
            c = ACC + (j * 2 + keep) * 16
            for r in range(16):
                e(f"v_add_f32 v{c+r}, v{c+r}, v{RX+16*j+r}")
            P = 32 + 8 * j
            for i in range(8):
                e(f"v_cvt_pk_bf16_f32 v{P+i}, v{c+2*i}, v{c+2*i+1}")
            e("s_nop 1")
            e(f"v_permlane32_swap_b32 v{P+0}, v{P+2}")
            e(f"v_permlane32_swap_b32 v{P+1}, v{P+3}")
            e(f"v_permlane32_swap_b32 v{P+4}, v{P+6}")
            e(f"v_permlane32_swap_b32 v{P+5}, v{P+7}")
            e(f"buffer_store_dwordx4 v[{P}:{P+3}], v6, s[68:71], s47 offen offset:{64*j}")
            e(f"buffer_store_dwordx4 v[{P+4}:{P+7}], v6, s[68:71], s47 offen offset:{64*j+32}")
        if sp == 0:
            e("s_branch K3_FIN")
    e.label("K3_FIN")
    if "fine" in EXP:
        e("s_waitcnt lgkmcnt(0)")
        for i in range(7):
            e(f"v_mov_b32 v{48+2*i}, s{STP[i]}")
            e(f"v_mov_b32 v{49+2*i}, s{STP[i]+1}")
        e("s_lshl_b32 s3, s2, 8")
        e("s_lshl_b32 s64, s35, 6")
        e("s_add_u32 s3, s3, s64")
        e(f"s_add_u32 s3, s3, {201<<20}")
        e("v_mov_b32 v3, 0")
        e("v_cmp_eq_u32 vcc, 0, v2")
        e("s_and_saveexec_b64 s[64:65], vcc")
        for i in range(4):
            e(f"buffer_store_dwordx4 v[{48+4*i}:{51+4*i}], v3, s[28:31], s3 offen offset:{16*i}")
        e("s_mov_b64 exec, s[64:65]")
    if "stamp3" in EXP:
        stamp_end(e, 28, 35, 2)
    e.label("K3_END")
    e("s_endpgm")
    return kn, e.text(), kernel_desc(kn, 360, 256), (256, 256, 135168)


def gen_k4():
    e = E()
    kn = "k4_comb_kernel"
    e.raw(f".globl {kn}\n.p2align 8\n.type {kn},@function")
    e.label(kn)
    e("s_cmp_ge_u32 s2, 512")
    e("s_cbranch_scc1 K4_END")
    e("s_load_dwordx2 s[64:65], s[0:1], 64")
    e("s_load_dwordx2 s[72:73], s[0:1], 80")
    e("v_lshrrev_b32 v1, 6, v0")
    e("v_and_b32 v2, 63, v0")
    e("v_readfirstlane_b32 s35, v1")
    e("s_waitcnt lgkmcnt(0)")
    srd(e, 28, 72, 73, 0x10000000)
    srd(e, 4, 64, 65, 2048 * 2048)
    e("s_lshl_b32 s3, s2, 2")
    e("s_add_u32 s3, s3, s35")
    e("s_lshl_b32 s3, s3, 12")
    e(f"s_add_u32 s3, s3, {P_OFF}")
    e(f"s_add_u32 s36, s3, {1<<23}")
    e("v_lshlrev_b32 v3, 4, v2")
    for rg in range(4):
        e(f"buffer_load_dwordx4 v[{16+4*rg}:{19+4*rg}], v3, s[28:31], s3 offen offset:{rg*1024}")
        e(f"buffer_load_dwordx4 v[{32+4*rg}:{35+4*rg}], v3, s[28:31], s36 offen offset:{rg*1024}")
    e("s_lshr_b32 s37, s2, 5")
    e("s_bfe_u32 s38, s2, 0x30002")
    e("s_bfe_u32 s39, s2, 0x10001")
    e("s_and_b32 s40, s2, 1")
    e("s_lshl_b32 s37, s37, 7")
    e("s_lshl_b32 s39, s39, 6")
    e("s_add_u32 s37, s37, s39")
    e("s_and_b32 s41, s35, 1")
    e("s_lshl_b32 s41, s41, 5")
    e("s_add_u32 s37, s37, s41")
    e("s_lshl_b32 s37, s37, 11")
    e("s_lshl_b32 s38, s38, 8")
    e("s_lshl_b32 s40, s40, 7")
    e("s_add_u32 s38, s38, s40")
    e("s_lshr_b32 s41, s35, 1")
    e("s_lshl_b32 s41, s41, 6")
    e("s_add_u32 s38, s38, s41")
    e("s_add_u32 s37, s37, s38")
    e("v_and_b32 v4, 31, v2")
    e("v_lshlrev_b32 v4, 11, v4")
    e("v_lshrrev_b32 v5, 5, v2")
    e("v_lshl_add_u32 v4, v5, 4, v4")
    e("s_waitcnt vmcnt(0)")
    for r in range(16):
        e(f"v_add_f32 v{16+r}, v{16+r}, v{32+r}")
    P = 48
    for i in range(8):
        e(f"v_cvt_pk_bf16_f32 v{P+i}, v{16+2*i}, v{16+2*i+1}")
    e("s_nop 1")
    e(f"v_permlane32_swap_b32 v{P+0}, v{P+2}")
    e(f"v_permlane32_swap_b32 v{P+1}, v{P+3}")
    e(f"v_permlane32_swap_b32 v{P+4}, v{P+6}")
    e(f"v_permlane32_swap_b32 v{P+5}, v{P+7}")
    e(f"buffer_store_dwordx4 v[{P}:{P+3}], v4, s[4:7], s37 offen")
    e(f"buffer_store_dwordx4 v[{P+4}:{P+7}], v4, s[4:7], s37 offen offset:32")
    e.label("K4_END")
    e("s_endpgm")
    return kn, e.text(), kernel_desc(kn, 64, 64), (512, 256, 0)


def main():
    kernels = [gen_k1(), gen_k3()]
    which = sys.argv[2] if len(sys.argv) > 2 else None
    out = []
    for kn, _, _, (g, b, lds) in kernels:
        out.append(f"; @launch kernel={kn} grid=({g},1,1) block=({b},1,1) lds={lds}")
    out.append('.amdgcn_target "amdgcn-amd-amdhsa--gfx950"')
    out.append(".text")
    for kn, body, desc, _ in kernels:
        out.append(body)
        out.append(desc)
    open(sys.argv[1], "w").write("\n".join(out))


if __name__ == "__main__":
    main()
```

```python
import sys, os
EXP = os.environ.get("EXP", "")
MODE = int(os.environ.get("MODE", "1"))

NAME = "gated_mix__linear_attn_block__glu_gated_bilinear__prompt"

PQ_OFF = 0
A2_OFF = 4 << 20
KVP_OFF = 24 << 20
G_OFF = 27 << 20
P_OFF = 28 << 20
FLG_OFF = (27 << 20) + 65536
A2_LD = 4608 * 2

LOG2E = 0x3fb8aa3b
EPS6 = 0x358637bd


class E:
    def __init__(self):
        self.lines = []
        self.vmlog = []
        self.tag = None

    def __call__(self, s):
        self.lines.append("    " + s)
        if s.startswith("buffer_"):
            self.vmlog.append(self.tag)

    def vm_needed(self, tags):
        last = -1
        for i, t in enumerate(self.vmlog):
            if t in tags:
                last = i
        return len(self.vmlog) - 1 - last

    def capture(self, fn):
        saved, savedlog = self.lines, self.vmlog
        self.lines, self.vmlog = [], []
        fn()
        out, self.lines, self.vmlog = self.lines, saved, savedlog
        groups, cur = [], None
        for l in out:
            l = l.strip()
            if l == "{":
                cur = []
            elif l == "}":
                groups.append(cur)
                cur = None
            elif cur is not None:
                cur.append(l)
            else:
                groups.append([l])
        return groups

    def label(self, s):
        self.lines.append(s + ":")

    def raw(self, s):
        self.lines.append(s)

    def text(self):
        return "\n".join(self.lines) + "\n"


def srd(e, d, base_lo, base_hi, nbytes):
    e(f"s_mov_b32 s{d}, s{base_lo}")
    e(f"s_and_b32 s{d+1}, s{base_hi}, 0xffff")
    e(f"s_mov_b32 s{d+2}, {nbytes:#x}")
    e(f"s_mov_b32 s{d+3}, 0x00020000")


def kernel_desc(name, vgpr, accum, sgpr=102):
    return f""".section .rodata,"a"
.p2align 6
.amdhsa_kernel {name}
  .amdhsa_next_free_vgpr {vgpr}
  .amdhsa_next_free_sgpr {sgpr}
  .amdhsa_accum_offset {accum}
  .amdhsa_group_segment_fixed_size 0
  .amdhsa_kernarg_size 88
  .amdhsa_user_sgpr_count 2
  .amdhsa_user_sgpr_kernarg_segment_ptr 1
  .amdhsa_system_sgpr_workgroup_id_x 1
.end_amdhsa_kernel
.text
"""


def interleave(e, mfmas, fillers, per_gap=None, start=0):
    n = len(mfmas)
    fi = 0
    nf = len(fillers)
    for i, m in enumerate(mfmas):
        e(m)
        if i < start:
            continue
        if per_gap is None:
            tgt = nf * (i + 1 - start) // max(1, (n - start))
        else:
            tgt = min(nf, per_gap * (i + 1 - start))
        while fi < tgt:
            for s in fillers[fi]:
                e(s)
            fi += 1
    while fi < nf:
        for s in fillers[fi]:
            e(s)
        fi += 1


def stamp_end(e, srd_ws, wave_sgpr, lane_v):
    e("s_waitcnt vmcnt(0)")
    e("s_memtime s[86:87]")
    e("s_memrealtime s[90:91]")
    e("s_waitcnt lgkmcnt(0)")
    for i in range(12):
        e(f"v_mov_b32 v{32+i}, s{80+i}")
    e("s_lshl_b32 s3, s2, 8")
    e(f"s_lshl_b32 s92, s{wave_sgpr}, 6")
    e("s_add_u32 s3, s3, s92")
    e(f"s_add_u32 s3, s3, {200<<20}")
    e("v_mov_b32 v3, 0")
    e(f"v_cmp_eq_u32 vcc, 0, v{lane_v}")
    e("s_and_saveexec_b64 s[92:93], vcc")
    for i in range(3):
        e(f"buffer_store_dwordx4 v[{32+4*i}:{35+4*i}], v3, s[{srd_ws}:{srd_ws+3}], s3 offen offset:{16*i}")


def gen_k1():
    e = E()
    kn = "k1_gemm1_kernel"
    STG = 36864
    BOFF = 16384
    NS = 4
    e.raw(f".globl {kn}\n.p2align 8\n.type {kn},@function")
    e.label(kn)
    e("s_cmp_ge_u32 s2, 256")
    e("s_cbranch_scc1 K1_END")
    if "stamp" in EXP:
        e("s_memtime s[80:81]")
        e("s_memrealtime s[88:89]")
    e("s_load_dwordx4 s[64:67], s[0:1], 0")
    e("s_load_dwordx4 s[68:71], s[0:1], 32")
    e("s_load_dwordx2 s[72:73], s[0:1], 80")
    e("s_load_dwordx2 s[96:97], s[0:1], 16")
    e("s_load_dwordx2 s[98:99], s[0:1], 48")
    e("s_and_b32 s3, s2, 7")
    e("s_lshr_b32 s32, s2, 3")
    e("s_and_b32 s33, s32, 7")
    e("s_lshr_b32 s32, s32, 3")
    e("s_lshl_b32 s3, s3, 2")
    e("s_add_u32 s34, s3, s32")
    e("v_lshrrev_b32 v1, 6, v0")
    e("v_and_b32 v2, 63, v0")
    e("v_readfirstlane_b32 s35, v1")
    e("s_and_b32 s37, s34, 1")
    e("s_lshr_b32 s38, s34, 1")
    e("s_mul_i32 s39, s38, 7")
    e("s_lshl_b32 s40, s37, 2")
    e("s_add_u32 s40, s39, s40")
    e("s_add_u32 s41, s39, 3")
    e("s_lshl_b32 s42, s34, 6")
    e("s_add_u32 s48, s42, 2048")
    e("s_add_u32 s49, s42, 4096")
    e("s_lshl_b32 s43, s38, 7")
    e("s_add_u32 s47, s43, 64")
    e("s_lshl_b32 s44, s41, 6")
    e("s_cmp_eq_u32 s37, 0")
    e("s_cselect_b32 s50, s43, s44")
    e("s_cselect_b32 s51, s47, s44")
    e(f"s_mov_b32 s58, {32*7168}")
    e(f"s_cselect_b32 s58, {32*6144}, s58")
    e("s_lshl_b32 s44, s40, 6")
    for j in range(3):
        e(f"s_add_u32 s{52+2*j}, s44, {64*j}")
        e(f"s_add_u32 s{53+2*j}, s44, {64*j}")
    e("s_lshr_b32 s36, s35, 1")
    e("s_cmp_eq_u32 s36, 0")
    for i in range(5):
        e(f"s_cselect_b32 s{74+i}, s{48+2*i}, s{49+2*i}")
    e("s_waitcnt lgkmcnt(0)")
    e("s_lshl_b32 s3, s33, 19")
    e("s_add_u32 s64, s64, s3")
    e("s_addc_u32 s65, s65, 0")
    srd(e, 4, 64, 65, 256 * 2048)
    srd(e, 8, 66, 67, 1024 * 6144)
    srd(e, 12, 68, 69, 1024 * 7168)
    srd(e, 16, 70, 71, 1024 * 7168)
    srd(e, 28, 72, 73, 0x10000000)
    e("s_cmp_eq_u32 s36, 0")
    for i in range(4):
        e(f"s_cselect_b32 s{20+i}, s{12+i}, s{16+i}")
    e("s_cmp_eq_u32 s37, 0")
    for i in range(4):
        e(f"s_cselect_b32 s{24+i}, s{8+i}, s{20+i}")
    if "nostag" in EXP:
        e("s_mov_b32 s79, 0")
    else:
        e("s_lshl_b32 s79, s33, 2")
        e("s_and_b32 s3, s34, 3")
        e("s_add_u32 s79, s79, s3")
    e("s_lshl_b32 s59, s79, 6")
    e(f"s_mul_i32 s60, s79, {32*6144}")
    e(f"s_mul_i32 s61, s79, {32*7168}")
    e("s_mul_i32 s62, s79, s58")
    e("s_lshl_b32 s45, s35, 12")
    e("s_lshl_b32 s46, s35, 10")
    e(f"s_add_u32 s46, s46, {BOFF}")
    e("v_lshrrev_b32 v3, 2, v2")
    e("v_lshlrev_b32 v4, 6, v1")
    e("v_add_u32 v4, v3, v4")
    e("v_lshlrev_b32 v4, 11, v4")
    e("v_lshrrev_b32 v5, 4, v2")
    e("v_lshlrev_b32 v7, 1, v5")
    e("v_and_b32 v7, 3, v7")
    e("v_lshrrev_b32 v5, 1, v5")
    e("v_mul_u32_u24 v5, 3, v5")
    e("v_xor_b32 v5, v5, v7")
    e("v_and_b32 v6, 3, v2")
    e("v_xor_b32 v7, v6, v5")
    e("v_lshl_add_u32 v10, v7, 4, v4")
    e("v_and_b32 v4, 1, v1")
    e("v_lshlrev_b32 v4, 4, v4")
    e("v_add_u32 v3, v3, v4")
    e("v_lshrrev_b32 v4, 5, v2")
    e("v_lshlrev_b32 v4, 1, v4")
    e("v_xor_b32 v4, v4, v6")
    e("v_lshlrev_b32 v4, 4, v4")
    e("s_movk_i32 s3, 6144")
    e("v_mul_lo_u32 v11, v3, s3")
    e("v_add_u32 v11, v11, v4")
    e("s_movk_i32 s3, 7168")
    e("v_mul_lo_u32 v12, v3, s3")
    e("v_add_u32 v12, v12, v4")
    e("s_cmp_eq_u32 s37, 0")
    e("s_cselect_b64 vcc, -1, 0")
    e("s_nop 1")
    e("v_cndmask_b32 v13, v12, v11, vcc")

    dsrd = [8, 24, 20, 20, 20]
    dvoff = [11, 13, 12, 12, 12]
    dkrun = [60, 62, 61, 61, 61]

    def dma_groups(stage):
        g = []
        for i in range(4):
            g.append([f"s_add_u32 m0, s45, {stage*STG + i*1024}",
                      f"s_add_u32 s3, s59, {i*32768}",
                      f"buffer_load_dwordx4 v10, s[4:7], s3 offen lds"])
        for i in range(5):
            g.append([f"s_add_u32 m0, s46, {stage*STG + i*4096}",
                      f"s_add_u32 s3, s{dkrun[i]}, s{74+i}",
                      f"buffer_load_dwordx4 v{dvoff[i]}, s[{dsrd[i]}:{dsrd[i]+3}], s3 offen lds"])
        g[-1] = g[-1] + ["s_add_u32 s79, s79, 1",
                         "s_and_b32 s79, s79, 31",
                         "s_lshl_b32 s59, s79, 6",
                         f"s_mul_i32 s60, s79, {32*6144}",
                         f"s_mul_i32 s61, s79, {32*7168}",
                         "s_mul_i32 s62, s79, s58"]
        order = [0, 4, 1, 5, 2, 6, 3, 7, 8]
        return [g[i] for i in order]

    if "dopf" in EXP:
        e("v_lshlrev_b32 v3, 4, v0")
        e("s_lshl_b32 s3, s34, 14")
        n = 0
        for (sr, per, base) in ((4, 4, "s3"), (8, 6, None), (12, 7, None), (16, 7, None)):
            if base is None:
                e(f"s_mul_i32 s3, s2, {per*4096}")
            for i in range(per):
                e(f"buffer_load_dwordx4 a[{96+4*n}:{99+4*n}], v3, s[{sr}:{sr+3}], s3 offen")
                if i + 1 < per:
                    e("s_add_u32 s3, s3, 4096")
                n += 1
    NPRE = 2 if "pre2" in EXP else (1 if "pre1" in EXP else NS)
    for st in range(NPRE):
        for g in dma_groups(st):
            for s in g:
                e(s)

    e("v_and_b32 v3, 15, v2")
    e("v_lshlrev_b32 v4, 6, v1")
    e("v_add_u32 v4, v4, v3")
    e("v_lshlrev_b32 v4, 6, v4")
    e("v_lshrrev_b32 v5, 2, v3")
    e("v_lshlrev_b32 v7, 1, v5")
    e("v_and_b32 v7, 3, v7")
    e("v_lshrrev_b32 v5, 1, v5")
    e("v_mul_u32_u24 v5, 3, v5")
    e("v_xor_b32 v5, v5, v7")
    e("v_lshrrev_b32 v6, 4, v2")
    e("v_xor_b32 v7, v6, v5")
    e("v_lshl_add_u32 v14, v7, 4, v4")
    for q in range(1, NS):
        e(f"v_add_u32 v{14+q}, {q*STG}, v14")
    e("v_lshrrev_b32 v3, 5, v2")
    e("v_lshlrev_b32 v3, 10, v3")
    e("v_bfe_u32 v4, v2, 4, 1")
    e("v_lshl_add_u32 v3, v4, 9, v3")
    e("v_bfe_u32 v5, v2, 2, 2")
    e("v_lshl_add_u32 v3, v5, 6, v3")
    e("v_lshl_add_u32 v3, v4, 5, v3")
    e("v_and_b32 v5, 3, v2")
    e("v_lshl_add_u32 v3, v5, 3, v3")
    e("v_xor_b32 v4, 32, v3")
    for q in range(NS):
        e(f"v_add_u32 v{18+2*q}, {BOFF+q*STG}, v3")
        e(f"v_add_u32 v{19+2*q}, {BOFF+q*STG}, v4")

    AF = 96
    BF = 128

    def base(b):
        return ("a", 32 * b) if b < 3 else ("v", 32 + 32 * (b - 3))

    def tile(rb, cb):
        k, o = base(cb >> 1)
        o += rb * 8 + (cb & 1) * 4
        return f"{k}[{o}:{o+3}]"

    for r in range(96):
        e(f"v_accvgpr_write_b32 a{r}, 0")
    for r in range(32, 256):
        e(f"v_mov_b32 v{r}, 0")

    def a_reads(stage, abuf):
        return [[f"ds_read_b128 a[{AF+abuf*16+rb*4}:{AF+abuf*16+rb*4+3}], v{14+stage} offset:{rb*1024}"] for rb in range(4)]

    def b_reads(stage, half):
        g = []
        for i in range(10):
            cb = half * 10 + i
            d = BF + half * 40 + i * 4
            vb = 18 + 2 * stage + (cb & 1)
            o = (cb >> 1) * 2048
            g.append([f"ds_read_b64_tr_b16 a[{d}:{d+1}], v{vb} offset:{o}"])
            g.append([f"ds_read_b64_tr_b16 a[{d+2}:{d+3}], v{vb} offset:{o+256}"])
        return g

    def mfmas(half, abuf):
        m = []
        for i in range(10):
            cb = half * 10 + i
            for rb in range(4):
                a = AF + abuf * 16 + rb * 4
                bb = BF + half * 40 + i * 4
                t = tile(rb, cb)
                if cb < 4:
                    m.append(f"v_mfma_f32_16x16x32_bf16 {t}, a[{a}:{a+3}], a[{bb}:{bb+3}], {t}")
                else:
                    m.append(f"v_mfma_f32_16x16x32_bf16 {t}, a[{bb}:{bb+3}], a[{a}:{a+3}], {t}")
        return m

    def merge(reads, dmas, nm):
        slots = [[] for _ in range(nm)]
        flat = [x for g in dmas for x in g]
        nr = len(reads)
        if MODE == 0:
            for i, g in enumerate(reads):
                slots[i].append(g)
            free = nm - nr
            for j, x in enumerate(flat):
                slots[min(nm - 1, nr + (j * free) // max(1, len(flat)))].append([x])
        else:
            for i, g in enumerate(reads):
                slots[min(nm - 1, (i * 3) // 2)].append(g)
            used = [len(x) for x in slots]
            pos = [i for i in range(nm) if used[i] == 0]
            for j, x in enumerate(flat):
                slots[pos[min(len(pos) - 1, (j * len(pos)) // max(1, len(flat)))]].append([x])
        return slots

    def emit_sub(mf, slots):
        for m, sl in zip(mf, slots):
            e(m)
            for g in sl:
                for s in g:
                    e(s)

    def k32step(q, dma_first, dma_second, wait_n, last):
        nodma = "nodma" in EXP
        ab = q & 1
        d0 = dma_groups((q - 1) % NS)[5:] if (dma_first and not nodma) else []
        e("s_waitcnt lgkmcnt(0)")
        emit_sub(mfmas(0, ab), merge(b_reads(q, 1), d0, 40))
        if not last:
            e(f"s_waitcnt vmcnt({wait_n}) lgkmcnt(0)")
            e("s_barrier")
        else:
            e("s_waitcnt lgkmcnt(0)")
        d1 = dma_groups(q)[:5] if (dma_second and not nodma) else []
        rd = (a_reads((q + 1) % NS, ab ^ 1) + b_reads((q + 1) % NS, 0)) if not last else []
        emit_sub(mfmas(1, ab), merge(rd, d1, 40))

    e(f"s_waitcnt vmcnt({9*(NPRE-1)})")
    e("s_barrier")
    for g in a_reads(0, 0) + b_reads(0, 0):
        for s in g:
            e(s)
    for st in range(NPRE, NS):
        for g in dma_groups(st):
            for s in g:
                e(s)
    e("s_mov_b32 s63, 0")
    if "stamp" in EXP:
        e("s_memtime s[82:83]")
    k32step(0, False, True, 18, False)
    e.label("K1_LOOP")
    for j in range(4):
        k32step((1 + j) % NS, True, True, 18, False)
    e("s_add_u32 s63, s63, 1")
    e("s_cmp_lt_u32 s63, 6")
    e("s_cbranch_scc1 K1_LOOP")
    k32step(1, True, True, 18, False)
    k32step(2, True, True, 18, False)
    k32step(3, True, True, 18, False)
    k32step(0, True, False, 18, False)
    k32step(1, False, False, 9, False)
    k32step(2, False, False, 0, False)
    k32step(3, False, False, 0, True)
    e("s_nop 15")

    if "stamp" in EXP:
        e("s_memtime s[84:85]")
    e("v_mov_b32 v3, 0")
    e("v_lshlrev_b32 v4, 2, v0")
    e("s_lshl_b32 s3, s2, 7")
    e(f"s_add_u32 s3, s3, {FLG_OFF}")
    e("v_cmp_gt_u32 vcc, 32, v0")
    e("s_and_saveexec_b64 s[92:93], vcc")
    e("buffer_store_dword v3, v4, s[28:31], s3 offen")
    e("s_mov_b64 exec, s[92:93]")
    if "nopf3" not in EXP:
        srd(e, 8, 96, 97, 1024 * 2048)
        srd(e, 12, 98, 99, 3584 * 2048)
        e("v_lshlrev_b32 v3, 4, v0")
        e("s_lshl_b32 s3, s2, 13")
        for i in range(2):
            e(f"buffer_load_dwordx4 a[{96+4*i}:{99+4*i}], v3, s[8:11], s3 offen")
            e("s_add_u32 s3, s3, 4096")
        e("s_mul_i32 s3, s2, 28672")
        for i in range(7):
            e(f"buffer_load_dwordx4 a[{104+4*i}:{107+4*i}], v3, s[12:15], s3 offen")
            e("s_add_u32 s3, s3, 4096")
    e("v_and_b32 v3, 15, v2")
    e("v_lshlrev_b32 v4, 6, v1")
    e("v_add_u32 v3, v3, v4")
    e("v_bfe_u32 v5, v2, 4, 1")
    e("v_lshlrev_b32 v5, 5, v5")
    e("v_lshrrev_b32 v4, 5, v2")
    e("v_lshl_add_u32 v5, v4, 4, v5")
    e(f"s_movk_i32 s3, {A2_LD}")
    e("v_mul_lo_u32 v26, v3, s3")
    e("v_add_u32 v26, v26, v5")
    e("v_lshlrev_b32 v27, 11, v3")
    e("v_add_u32 v27, v27, v5")
    e(f"s_mul_i32 s64, s33, {256*A2_LD}")
    e(f"s_add_u32 s64, s64, {A2_OFF + 2048}")
    e("s_lshl_b32 s65, s33, 19")
    e(f"s_add_u32 s65, s65, {PQ_OFF}")

    def pack_store(src, dst, vaddr, sbase, scol, ld):
        for rb in range(4):
            for i in range(4):
                e(f"v_cvt_pk_bf16_f32 v{dst+4*rb+i}, v{src+8*rb+2*i}, v{src+8*rb+2*i+1}")
        e("s_nop 0")
        for rb in range(4):
            e(f"v_permlane16_swap_b32 v{dst+4*rb}, v{dst+4*rb+2}")
            e(f"v_permlane16_swap_b32 v{dst+4*rb+1}, v{dst+4*rb+3}")
        e(f"s_add_u32 s3, {sbase}, {scol}")
        for rb in range(4):
            e(f"buffer_store_dwordx4 v[{dst+4*rb}:{dst+4*rb+3}], v{vaddr}, s[28:31], s3 offen")
            if rb < 3:
                e(f"s_add_u32 s3, s3, {16*ld}")

    def glu_v(bg, scol):
        _, G = base(bg)
        _, U = base(bg + 1)
        for i in range(16):
            e(f"v_pk_mul_f32 v[{G+2*i}:{G+2*i+1}], v[{G+2*i}:{G+2*i+1}], v[{U+2*i}:{U+2*i+1}]")
        pack_store(G, U, 26, "s64", scol, A2_LD)

    glu_v(8, "s56")
    glu_v(6, "s54")
    T = 192
    T2 = 128
    PK = 240
    PV = 176
    ONES = 28
    for i in range(4):
        e(f"v_mov_b32 v{ONES+i}, 0x3f803f80")
    for r in range(32):
        e(f"v_accvgpr_read_b32 v{T+r}, a{r}")
    for r in range(32):
        e(f"v_mul_f32 v{T2+r}, {LOG2E:#x}, v{T+r}")
    for r in range(32):
        e(f"v_min_f32 v{T2+r}, 0, v{T2+r}")
    for r in range(32):
        e(f"v_exp_f32 v{T2+r}, v{T2+r}")
    for r in range(32):
        e(f"v_max_f32 v{T+r}, 0, v{T+r}")
    for r in range(32):
        e(f"v_add_f32 v{T+r}, {EPS6:#x}, v{T+r}")
    for r in range(32):
        e(f"v_add_f32 v{T+r}, v{T+r}, v{T2+r}")

    def kvpack(dst):
        for m in range(2):
            for h in range(2):
                for rr in range(2):
                    o = T + (2 * m + rr) * 8 + h * 4
                    d = dst + (m * 2 + h) * 4 + rr * 2
                    e(f"v_cvt_pk_bf16_f32 v{d}, v{o}, v{o+1}")
                    e(f"v_cvt_pk_bf16_f32 v{d+1}, v{o+2}, v{o+3}")
    kvpack(PK)
    for r in range(32):
        e(f"v_accvgpr_read_b32 v{T+r}, a{32+r}")
    kvpack(PV)
    e("s_nop 1")
    KVA = T2
    for m in range(2):
        for dh in range(2):
            pa = PK + (m * 2 + dh) * 4
            for eh in range(2):
                pb = PV + (m * 2 + eh) * 4
                t = KVA + (dh * 2 + eh) * 4
                c = "0" if m == 0 else f"v[{t}:{t+3}]"
                e(f"v_mfma_f32_16x16x32_bf16 v[{t}:{t+3}], v[{pa}:{pa+3}], v[{pb}:{pb+3}], {c}")
            t = KVA + 16 + dh * 4
            c = "0" if m == 0 else f"v[{t}:{t+3}]"
            e(f"v_mfma_f32_16x16x32_bf16 v[{t}:{t+3}], v[{pa}:{pa+3}], v[{ONES}:{ONES+3}], {c}")
    e("s_barrier")
    e("v_lshlrev_b32 v3, 4, v2")
    e("v_lshlrev_b32 v4, 13, v1")
    e("v_add_u32 v3, v3, v4")
    e("s_nop 7")
    for t in range(4):
        e(f"ds_write_b128 v3, v[{KVA+4*t}:{KVA+4*t+3}] offset:{t*1024}")
    for t in range(4):
        z = KVA + 16 + (t >> 1) * 4
        e(f"ds_write_b128 v3, v[{z}:{z+3}] offset:{4096+t*1024}")
    glu_v(4, "s52")
    for r in range(32):
        e(f"v_accvgpr_read_b32 v{T+r}, a{64+r}")
    e("s_cmp_eq_u32 s37, 0")
    e("s_cbranch_scc0 K1_SLOT1_GLU")
    pack_store(T, 64, 27, "s65", "s50", 2048)
    pack_store(32, 80, 27, "s65", "s51", 2048)
    e("s_branch K1_SLOT1_DONE")
    e.label("K1_SLOT1_GLU")
    for i in range(16):
        e(f"v_pk_mul_f32 v[{T+2*i}:{T+2*i+1}], v[{T+2*i}:{T+2*i+1}], v[{32+2*i}:{32+2*i+1}]")
    pack_store(T, 64, 26, "s64", "s50", A2_LD)
    e.label("K1_SLOT1_DONE")

    e("s_waitcnt lgkmcnt(0)")
    e("s_barrier")
    e("v_lshlrev_b32 v3, 4, v0")
    R = 160
    for w in range(4):
        e(f"ds_read_b128 v[{R+4*w}:{R+4*w+3}], v3 offset:{w*8192}")
        e(f"ds_read_b128 v[{R+16+4*w}:{R+16+4*w+3}], v3 offset:{w*8192+4096}")
    e("s_waitcnt lgkmcnt(0)")
    for half in range(2):
        b = R + 16 * half
        for i in range(4):
            e(f"v_add_f32 v{b+i}, v{b+i}, v{b+4+i}")
            e(f"v_add_f32 v{b+8+i}, v{b+8+i}, v{b+12+i}")
        for i in range(4):
            e(f"v_add_f32 v{b+i}, v{b+i}, v{b+8+i}")
    e("s_lshl_b32 s3, s34, 3")
    e("s_add_u32 s3, s3, s33")
    e("s_lshl_b32 s3, s3, 13")
    e(f"s_add_u32 s3, s3, {KVP_OFF}")
    e(f"buffer_store_dwordx4 v[{R}:{R+3}], v3, s[28:31], s3 offen")
    e("s_add_u32 s3, s3, 4096")
    e(f"buffer_store_dwordx4 v[{R+16}:{R+19}], v3, s[28:31], s3 offen")
    if "stamp" in EXP:
        stamp_end(e, 28, 35, 2)
    e.label("K1_END")
    e("s_endpgm")
    return kn, e.text(), kernel_desc(kn, 464, 256), (256, 256, 147456)


def gen_k2():
    e = E()
    kn = "k2_attn_kernel"
    e.raw(f".globl {kn}\n.p2align 8\n.type {kn},@function")
    e.label(kn)
    e("s_cmp_ge_u32 s2, 512")
    e("s_cbranch_scc1 K2_END")
    e("s_cmp_ge_u32 s2, 256")
    e("s_cbranch_scc0 K2_MAIN")
    e("s_load_dwordx2 s[64:65], s[0:1], 16")
    e("s_load_dwordx2 s[66:67], s[0:1], 48")
    e("s_sub_u32 s3, s2, 256")
    e("v_lshlrev_b32 v1, 4, v0")
    e("s_waitcnt lgkmcnt(0)")
    srd(e, 4, 64, 65, 1024 * 2048)
    srd(e, 8, 66, 67, 3584 * 2048)
    e("s_lshl_b32 s32, s3, 13")
    e("s_mul_i32 s33, s3, 28672")
    for i in range(2):
        e(f"buffer_load_dwordx4 v[{4+4*i}:{7+4*i}], v1, s[4:7], s32 offen")
        e("s_add_u32 s32, s32, 4096")
    for i in range(7):
        e(f"buffer_load_dwordx4 v[{12+4*i}:{15+4*i}], v1, s[8:11], s33 offen")
        e("s_add_u32 s33, s33, 4096")
    e("s_waitcnt vmcnt(0)")
    e("s_branch K2_END")
    e.label("K2_MAIN")
    e("s_load_dwordx2 s[64:65], s[0:1], 0")
    e("s_load_dwordx2 s[66:67], s[0:1], 56")
    e("s_load_dwordx2 s[72:73], s[0:1], 80")
    e("s_and_b32 s33, s2, 31")
    e("s_lshr_b32 s34, s2, 5")
    e("v_lshrrev_b32 v1, 6, v0")
    e("v_and_b32 v2, 63, v0")
    e("v_readfirstlane_b32 s35, v1")
    e("s_waitcnt lgkmcnt(0)")
    srd(e, 4, 64, 65, 2048 * 2048)
    srd(e, 8, 66, 67, 2048)
    srd(e, 28, 72, 73, 0x10000000)
    e("v_and_b32 v3, 31, v2")
    e("v_lshlrev_b32 v4, 6, v1")
    e("v_add_u32 v3, v3, v4")
    e("v_lshrrev_b32 v5, 5, v2")
    e("v_lshlrev_b32 v5, 4, v5")
    e("v_lshlrev_b32 v6, 11, v3")
    e("v_add_u32 v6, v6, v5")
    e("s_lshl_b32 s36, s34, 19")
    e("s_lshl_b32 s37, s33, 6")
    e("s_add_u32 s36, s36, s37")
    e(f"s_add_u32 s36, s36, {PQ_OFF}")
    e(f"s_add_u32 s38, s36, {32*2048}")
    Q = 32
    e(f"buffer_load_dwordx4 v[{Q}:{Q+3}], v6, s[28:31], s36 offen")
    e(f"buffer_load_dwordx4 v[{Q+4}:{Q+7}], v6, s[28:31], s36 offen offset:32")
    e(f"buffer_load_dwordx4 v[{Q+8}:{Q+11}], v6, s[28:31], s38 offen")
    e(f"buffer_load_dwordx4 v[{Q+12}:{Q+15}], v6, s[28:31], s38 offen offset:32")
    e("v_lshlrev_b32 v7, 4, v0")
    e("s_lshl_b32 s39, s33, 16")
    e(f"s_add_u32 s39, s39, {KVP_OFF}")
    PL = 64
    for rt in range(8):
        e(f"s_add_u32 s3, s39, {rt*8192}")
        e(f"buffer_load_dwordx4 v[{PL+8*rt}:{PL+8*rt+3}], v7, s[28:31], s3 offen")
        e(f"s_add_u32 s3, s39, {rt*8192+4096}")
        e(f"buffer_load_dwordx4 v[{PL+8*rt+4}:{PL+8*rt+7}], v7, s[28:31], s3 offen")
    e("v_lshlrev_b32 v8, 5, v2")
    e("s_lshl_b32 s40, s2, 3")
    e("s_lshl_b32 s41, s35, 1")
    e("s_add_u32 s40, s40, s41")
    e("s_lshl_b32 s41, s40, 11")
    e("s_add_u32 s42, s41, 2048")
    GX = 128
    e(f"buffer_load_dwordx4 v[{GX}:{GX+3}], v8, s[4:7], s41 offen")
    e(f"buffer_load_dwordx4 v[{GX+4}:{GX+7}], v8, s[4:7], s41 offen offset:16")
    e(f"buffer_load_dwordx4 v[{GX+8}:{GX+11}], v8, s[4:7], s42 offen")
    e(f"buffer_load_dwordx4 v[{GX+12}:{GX+15}], v8, s[4:7], s42 offen offset:16")
    e(f"buffer_load_dwordx4 v[{GX+16}:{GX+19}], v8, s[8:11], 0 offen")
    e(f"buffer_load_dwordx4 v[{GX+20}:{GX+23}], v8, s[8:11], 0 offen offset:16")
    e("s_waitcnt vmcnt(22)")
    PQ = 48
    T = 160
    for blk in range(2):
        for i in range(8):
            src = Q + 8 * blk + i
            e(f"v_lshlrev_b32 v{T+2*i}, 16, v{src}")
            e(f"v_and_b32 v{T+2*i+1}, 0xffff0000, v{src}")
        for r in range(16):
            e(f"v_mul_f32 v{T+16+r}, {LOG2E:#x}, v{T+r}")
        for r in range(16):
            e(f"v_min_f32 v{T+16+r}, 0, v{T+16+r}")
        for r in range(16):
            e(f"v_exp_f32 v{T+16+r}, v{T+16+r}")
        for r in range(16):
            e(f"v_max_f32 v{T+r}, 0, v{T+r}")
        for r in range(16):
            e(f"v_add_f32 v{T+r}, {EPS6:#x}, v{T+r}")
        for r in range(16):
            e(f"v_add_f32 v{T+r}, v{T+r}, v{T+16+r}")
        for i in range(8):
            e(f"v_cvt_pk_bf16_f32 v{PQ+8*blk+i}, v{T+2*i}, v{T+2*i+1}")
    e("s_waitcnt vmcnt(6)")
    for rt in range(1, 8):
        for i in range(8):
            e(f"v_add_f32 v{PL+i}, v{PL+i}, v{PL+8*rt+i}")
    for i in range(4):
        e(f"v_cvt_pk_bf16_f32 v{T+i}, v{PL+2*i}, v{PL+2*i+1}")
    e("v_and_b32 v9, 31, v2")
    e("v_lshlrev_b32 v9, 6, v9")
    e("v_lshlrev_b32 v10, 4, v1")
    e("v_add_u32 v9, v9, v10")
    e("v_lshrrev_b32 v10, 5, v2")
    e("v_lshlrev_b32 v10, 3, v10")
    e("v_add_u32 v9, v9, v10")
    e(f"ds_write_b64 v9, v[{T}:{T+1}]")
    e(f"ds_write_b64 v9, v[{T+2}:{T+3}] offset:2048")
    e("s_waitcnt vmcnt(0)")
    e("v_mov_b32 v12, 0")
    e("v_mov_b32 v13, 0")
    for i in range(8):
        e(f"v_dot2_f32_bf16 v12, v{GX+i}, v{GX+16+i}, v12")
        e(f"v_dot2_f32_bf16 v13, v{GX+8+i}, v{GX+16+i}, v13")
    e("s_waitcnt lgkmcnt(0)")
    e("s_barrier")
    e("v_and_b32 v9, 31, v2")
    e("v_lshlrev_b32 v9, 6, v9")
    e("v_add_u32 v9, v9, v5")
    KA = 64
    e(f"ds_read_b128 v[{KA}:{KA+3}], v9")
    e(f"ds_read_b128 v[{KA+4}:{KA+7}], v9 offset:32")
    e(f"ds_read_b128 v[{KA+8}:{KA+11}], v9 offset:2048")
    e(f"ds_read_b128 v[{KA+12}:{KA+15}], v9 offset:2080")
    for off in (0x041F, 0x081F, 0x101F, 0x201F, 0x401F):
        e(f"ds_swizzle_b32 v14, v12 offset:{off:#x}")
        e(f"ds_swizzle_b32 v15, v13 offset:{off:#x}")
        e("s_waitcnt lgkmcnt(0)")
        e("v_add_f32 v12, v12, v14")
        e("v_add_f32 v13, v13, v15")
    e("s_nop 0")
    e("v_readlane_b32 s44, v12, 32")
    e("v_readlane_b32 s45, v13, 32")
    e("s_nop 1")
    e("v_add_f32 v12, s44, v12")
    e("v_add_f32 v13, s45, v13")
    e(f"v_mul_f32 v12, {LOG2E | 0x80000000:#x}, v12")
    e(f"v_mul_f32 v13, {LOG2E | 0x80000000:#x}, v13")
    e("v_exp_f32 v12, v12")
    e("v_exp_f32 v13, v13")
    e("s_nop 0")
    e("v_add_f32 v12, 1.0, v12")
    e("v_add_f32 v13, 1.0, v13")
    e("v_rcp_f32 v12, v12")
    e("v_rcp_f32 v13, v13")
    e("s_lshl_b32 s3, s40, 2")
    e(f"s_add_u32 s3, s3, {G_OFF}")
    e("v_mov_b32 v14, 0")
    e("v_cmp_eq_u32 vcc, 0, v2")
    e("s_and_saveexec_b64 s[46:47], vcc")
    e("buffer_store_dwordx2 v[12:13], v14, s[28:31], s3 offen")
    e("s_mov_b64 exec, s[46:47]")
    NUM = 96
    for rb in range(2):
        for m in range(2):
            b = PQ + 8 * rb + 4 * m
            n = NUM + 16 * rb
            d = NUM + 32 + 16 * rb
            c1 = "0" if m == 0 else f"v[{n}:{n+15}]"
            c2 = "0" if m == 0 else f"v[{d}:{d+15}]"
            e(f"v_mfma_f32_32x32x16_bf16 v[{n}:{n+15}], v[{KA+4*m}:{KA+4*m+3}], v[{b}:{b+3}], {c1}")
            e(f"v_mfma_f32_32x32x16_bf16 v[{d}:{d+15}], v[{KA+8+4*m}:{KA+8+4*m+3}], v[{b}:{b+3}], {c2}")
    e(f"s_movk_i32 s3, {A2_LD}")
    e("v_mul_lo_u32 v16, v3, s3")
    e("v_add_u32 v16, v16, v5")
    e(f"s_mul_i32 s48, s34, {256*A2_LD}")
    e("s_add_u32 s48, s48, s37")
    e(f"s_add_u32 s48, s48, {A2_OFF}")
    e(f"s_add_u32 s49, s48, {32*A2_LD}")
    e("s_nop 15")
    for rb in range(2):
        n = NUM + 16 * rb
        d = NUM + 32 + 16 * rb
        e(f"v_add_f32 v17, {EPS6:#x}, v{d}")
        e("v_rcp_f32 v17, v17")
        e("s_nop 0")
        for r in range(16):
            e(f"v_mul_f32 v{n+r}, v{n+r}, v17")
        P = T + 8 * rb
        for i in range(8):
            e(f"v_cvt_pk_bf16_f32 v{P+i}, v{n+2*i}, v{n+2*i+1}")
        e("s_nop 1")
        e(f"v_permlane32_swap_b32 v{P+0}, v{P+2}")
        e(f"v_permlane32_swap_b32 v{P+1}, v{P+3}")
        e(f"v_permlane32_swap_b32 v{P+4}, v{P+6}")
        e(f"v_permlane32_swap_b32 v{P+5}, v{P+7}")
        e(f"buffer_store_dwordx4 v[{P}:{P+3}], v16, s[28:31], s{48+rb} offen")
        e(f"buffer_store_dwordx4 v[{P+4}:{P+7}], v16, s[28:31], s{48+rb} offen offset:32")
    e.label("K2_END")
    e("s_endpgm")
    return kn, e.text(), kernel_desc(kn, 192, 192), (512, 256, 4096)


X_OFF = 28 << 20
O_OFF = 40 << 20


def gen_k3():
    e = E()
    kn = "k3_gemm2_kernel"
    STP = [64, 66, 40, 42, 76, 92, 94, 8]
    stn = [0]

    def stamp():
        if "fine" in EXP:
            e(f"s_memtime s[{STP[stn[0]]}:{STP[stn[0]]+1}]")
            stn[0] += 1
    STG = 32768
    BOFF = 16384
    NS = 4
    SCR = 131072
    e.raw(f".globl {kn}\n.p2align 8\n.type {kn},@function")
    e.label(kn)
    e("s_cmp_ge_u32 s2, 256")
    e("s_cbranch_scc1 K3_END")
    if "stamp3" in EXP:
        e("s_memtime s[80:81]")
        e("s_memrealtime s[88:89]")
    e("s_load_dwordx2 s[64:65], s[0:1], 16")
    e("s_load_dwordx2 s[66:67], s[0:1], 48")
    e("s_load_dwordx4 s[72:75], s[0:1], 72")
    e("s_load_dwordx2 s[76:77], s[0:1], 0")
    e("s_load_dwordx4 s[96:99], s[0:1], 56")
    e("s_and_b32 s36, s2, 1")
    e("s_bfe_u32 s3, s2, 0x20001")
    e("s_lshr_b32 s32, s2, 3")
    e("s_and_b32 s33, s32, 3")
    e("s_lshl_b32 s3, s3, 2")
    e("s_add_u32 s33, s33, s3")
    e("s_lshr_b32 s34, s32, 2")
    e("v_lshrrev_b32 v1, 6, v0")
    e("v_and_b32 v2, 63, v0")
    e("v_readfirstlane_b32 s35, v1")
    e("s_waitcnt lgkmcnt(0)")
    srd(e, 28, 74, 75, 0x10000000)
    srd(e, 16, 72, 73, 256)
    e(f"s_mul_i32 s3, s33, {128*A2_LD}")
    e(f"s_add_u32 s3, s3, {A2_OFF}")
    e("s_add_u32 s68, s74, s3")
    e("s_addc_u32 s69, s75, 0")
    srd(e, 4, 68, 69, 128 * A2_LD)
    srd(e, 8, 64, 65, 1024 * 2048)
    srd(e, 12, 66, 67, 3584 * 2048)
    for i in range(4):
        e(f"s_mov_b32 s{20+i}, s{12+i}")
    e("s_cmp_eq_u32 s36, 0")
    for i in range(3):
        e(f"s_cselect_b32 s{24+i}, s{8+i}, s{12+i}")
    e(f"s_mul_i32 s60, s36, {1280*2048}")
    e(f"s_mul_i32 s61, s36, {2560*2048}")
    e("s_lshl_b32 s3, s34, 8")
    e("s_add_u32 s60, s60, s3")
    e("s_add_u32 s61, s61, s3")
    e(f"s_mul_i32 s59, s36, {1280*2}")
    e("s_add_u32 s59, s59, 2048")
    e(f"s_mul_i32 s57, s36, {3584*2}")
    e("s_mov_b32 s62, 0")
    e("s_mov_b32 s38, s98")
    e("s_mov_b32 s39, s99")
    e("s_mov_b32 s100, s59")
    e("s_mov_b32 s101, s60")
    if "stag3" not in EXP:
        e("s_mov_b32 s99, 0")
    else:
        e("s_and_b32 s3, s33, 3")
        e("s_mul_i32 s99, s3, 5")
        e("s_lshl_b32 s3, s34, 1")
        e("s_add_u32 s99, s99, s3")
        e("s_sub_u32 s3, s99, 20")
        e("s_cmp_ge_u32 s99, 20")
        e("s_cselect_b32 s99, s3, s99")
    e("s_lshl_b32 s3, s99, 7")
    e("s_add_u32 s59, s59, s3")
    e("s_lshl_b32 s3, s99, 17")
    e("s_add_u32 s60, s60, s3")
    srd(e, 68, 38, 39, 2048 * 2048)
    e("s_lshl_b32 s45, s35, 12")
    e("s_lshl_b32 s46, s35, 12")
    e(f"s_add_u32 s46, s46, {BOFF}")
    e("v_lshrrev_b32 v3, 3, v2")
    e("v_lshlrev_b32 v4, 5, v1")
    e("v_add_u32 v3, v3, v4")
    e(f"s_movk_i32 s3, {A2_LD}")
    e("v_mul_lo_u32 v3, v3, s3")
    e("v_lshrrev_b32 v5, 4, v2")
    e("v_and_b32 v6, 7, v2")
    e("v_xor_b32 v7, v6, v5")
    e("v_lshl_add_u32 v10, v7, 4, v3")
    e("v_xor_b32 v7, 4, v7")
    e("v_lshl_add_u32 v11, v7, 4, v3")
    e("v_lshrrev_b32 v3, 4, v2")
    e("v_lshlrev_b32 v4, 4, v1")
    e("v_add_u32 v4, v3, v4")
    e("v_lshlrev_b32 v4, 11, v4")
    e("v_bfe_u32 v5, v2, 2, 2")
    e("v_xor_b32 v5, v5, v3")
    e("v_lshl_add_u32 v4, v5, 6, v4")
    e("v_and_b32 v5, 3, v2")
    e("v_lshl_add_u32 v12, v5, 4, v4")

    def dma_groups(stage, ph2=False):
        g = []
        for i in range(4):
            g.append([f"s_add_u32 m0, s45, {stage*STG + i*1024}",
                      (f"s_add_u32 s3, s59, s{52+i}" if ph2 else f"s_add_u32 s3, s59, {i*8*A2_LD}"),
                      f"buffer_load_dwordx4 v{10+(i&1)}, s[4:7], s3 offen lds"])
            g.append([f"s_add_u32 m0, s46, {stage*STG + i*1024}",
                      f"s_add_u32 s3, s60, {i*4*2048}",
                      f"buffer_load_dwordx4 v12, s[20:23], s3 offen lds"])
        if ph2:
            g[-1] = g[-1] + ["s_add_u32 s59, s59, s27",
                             f"s_add_u32 s60, s60, {64*2048}"]
        else:
            g[-1] = g[-1] + ["s_add_u32 s59, s59, 128",
                             f"s_add_u32 s60, s60, {64*2048}",
                             "s_add_u32 s99, s99, 1",
                             "s_cmp_eq_u32 s99, 20",
                             "s_cselect_b32 s59, s100, s59",
                             "s_cselect_b32 s60, s101, s60",
                             "s_add_u32 s62, s62, 1",
                             "s_cmp_eq_u32 s62, 20",
                             "s_cselect_b32 s60, s61, s60",
                             "s_cselect_b32 s59, s57, s59",
                             "s_cselect_b32 s20, s24, s20",
                             "s_cselect_b32 s21, s25, s21",
                             "s_cselect_b32 s22, s26, s22"]
        return g

    for st in range(NS - 1):
        e.tag = ("D", st)
        for g in dma_groups(st):
            for s in g:
                e(s)

    e("s_and_b32 s50, s2, 31")
    e("s_lshr_b32 s51, s2, 5")
    srd(e, 40, 76, 77, 2048 * 2048)
    srd(e, 52, 96, 97, 2048)
    R3, R5, R9 = 192, 193, 194
    G0, G1, G2, G3 = 195, 196, 197, 198
    PQ = 200
    T = 216
    PS = 248
    Q, PL, GX = 0, 16, 80
    def att_loads():
        e(f"v_and_b32 v{R3}, 31, v2")
        e("v_lshlrev_b32 v4, 6, v1")
        e(f"v_add_u32 v{R3}, v{R3}, v4")
        e(f"v_lshrrev_b32 v{R5}, 5, v2")
        e(f"v_lshlrev_b32 v{R5}, 4, v{R5}")
        e(f"v_lshlrev_b32 v6, 11, v{R3}")
        e(f"v_add_u32 v6, v6, v{R5}")
        e("s_lshl_b32 s38, s51, 19")
        e("s_lshl_b32 s37, s50, 6")
        e("s_add_u32 s38, s38, s37")
        e(f"s_add_u32 s38, s38, {PQ_OFF}")
        e(f"s_add_u32 s39, s38, {32*2048}")
        e(f"buffer_load_dwordx4 a[{Q}:{Q+3}], v6, s[28:31], s38 offen")
        e(f"buffer_load_dwordx4 a[{Q+4}:{Q+7}], v6, s[28:31], s38 offen offset:32")
        e(f"buffer_load_dwordx4 a[{Q+8}:{Q+11}], v6, s[28:31], s39 offen")
        e(f"buffer_load_dwordx4 a[{Q+12}:{Q+15}], v6, s[28:31], s39 offen offset:32")
        e("v_lshlrev_b32 v7, 4, v0")
        e("s_lshl_b32 s39, s50, 16")
        e(f"s_add_u32 s39, s39, {KVP_OFF}")
        for rt in range(8):
            e(f"s_add_u32 s27, s39, {rt*8192}")
            e(f"buffer_load_dwordx4 a[{PL+8*rt}:{PL+8*rt+3}], v7, s[28:31], s27 offen")
            e(f"s_add_u32 s27, s39, {rt*8192+4096}")
            e(f"buffer_load_dwordx4 a[{PL+8*rt+4}:{PL+8*rt+7}], v7, s[28:31], s27 offen")
        e("v_lshlrev_b32 v8, 5, v2")
        e("s_lshl_b32 s48, s51, 8")
        e("s_lshl_b32 s27, s50, 3")
        e("s_add_u32 s48, s48, s27")
        e("s_lshl_b32 s27, s35, 1")
        e("s_add_u32 s48, s48, s27")
        e("s_lshl_b32 s47, s48, 11")
        e("s_add_u32 s49, s47, 2048")
        e(f"buffer_load_dwordx4 a[{GX}:{GX+3}], v8, s[40:43], s47 offen")
        e(f"buffer_load_dwordx4 a[{GX+4}:{GX+7}], v8, s[40:43], s47 offen offset:16")
        e(f"buffer_load_dwordx4 a[{GX+8}:{GX+11}], v8, s[40:43], s49 offen")
        e(f"buffer_load_dwordx4 a[{GX+12}:{GX+15}], v8, s[40:43], s49 offen offset:16")
        e(f"buffer_load_dwordx4 a[{GX+16}:{GX+19}], v8, s[52:55], 0 offen")
        e(f"buffer_load_dwordx4 a[{GX+20}:{GX+23}], v8, s[52:55], 0 offen offset:16")

    def att_a():
        for blk in range(2):
            for i in range(8):
                e(f"v_accvgpr_read_b32 v{T+2*i+1}, a{Q+8*blk+i}")
            for i in range(8):
                e(f"v_lshlrev_b32 v{T+2*i}, 16, v{T+2*i+1}")
                e(f"v_and_b32 v{T+2*i+1}, 0xffff0000, v{T+2*i+1}")
            for r in range(16):
                e(f"v_mul_f32 v{T+16+r}, {LOG2E:#x}, v{T+r}")
            for r in range(16):
                e(f"v_min_f32 v{T+16+r}, 0, v{T+16+r}")
            for r in range(16):
                e(f"v_exp_f32 v{T+16+r}, v{T+16+r}")
            for r in range(16):
                e(f"v_max_f32 v{T+r}, 0, v{T+r}")
            for r in range(16):
                e(f"v_add_f32 v{T+r}, {EPS6:#x}, v{T+r}")
            for r in range(16):
                e(f"v_add_f32 v{T+r}, v{T+r}, v{T+16+r}")
            for i in range(8):
                e(f"v_cvt_pk_bf16_f32 v{PQ+8*blk+i}, v{T+2*i}, v{T+2*i+1}")
        for i in range(8):
            e(f"v_accvgpr_read_b32 v{PS+i}, a{PL+i}")
        for half in range(2):
            n = 32 if half == 0 else 24
            for i in range(n):
                e(f"v_accvgpr_read_b32 v{T+i}, a{PL+8+32*half+i}")
            for i in range(n):
                e(f"v_add_f32 v{PS+(i&7)}, v{PS+(i&7)}, v{T+i}")
        for i in range(4):
            e(f"v_cvt_pk_bf16_f32 v{T+24+i}, v{PS+2*i}, v{PS+2*i+1}")
        e(f"v_and_b32 v{R9}, 15, v2")
        e(f"v_lshlrev_b32 v{R9}, 6, v{R9}")
        e(f"v_and_b32 v{G2}, 1, v1")
        e(f"v_lshl_add_u32 v{R9}, v{G2}, 10, v{R9}")
        e(f"v_lshrrev_b32 v{G2}, 1, v1")
        e(f"v_lshl_add_u32 v{R9}, v{G2}, 5, v{R9}")
        e(f"v_lshrrev_b32 v{G2}, 4, v2")
        e(f"v_lshl_add_u32 v{R9}, v{G2}, 3, v{R9}")
        e(f"v_add_u32 v{R9}, {SCR}, v{R9}")
        e(f"ds_write_b64 v{R9}, v[{T+24}:{T+25}]")
        e(f"ds_write_b64 v{R9}, v[{T+26}:{T+27}] offset:2048")
        for i in range(24):
            e(f"v_accvgpr_read_b32 v{T+i}, a{GX+i}")
        e(f"v_mov_b32 v{G0}, 0")
        e(f"v_mov_b32 v{G1}, 0")
        for i in range(8):
            e(f"v_dot2_f32_bf16 v{G0}, v{T+i}, v{T+16+i}, v{G0}")
            e(f"v_dot2_f32_bf16 v{G1}, v{T+8+i}, v{T+16+i}, v{G1}")

    def att_b():
        KA = T
        e(f"v_and_b32 v{R9}, 31, v2")
        e(f"v_lshlrev_b32 v{R9}, 6, v{R9}")
        e(f"v_add_u32 v{R9}, v{R9}, v{R5}")
        e(f"v_add_u32 v{R9}, {SCR}, v{R9}")
        e(f"ds_read_b128 v[{KA}:{KA+3}], v{R9}")
        e(f"ds_read_b128 v[{KA+4}:{KA+7}], v{R9} offset:32")
        e(f"ds_read_b128 v[{KA+8}:{KA+11}], v{R9} offset:2048")
        e(f"ds_read_b128 v[{KA+12}:{KA+15}], v{R9} offset:2080")
        for off in (0x041F, 0x081F, 0x101F, 0x201F, 0x401F):
            e(f"ds_swizzle_b32 v{G2}, v{G0} offset:{off:#x}")
            e(f"ds_swizzle_b32 v{G3}, v{G1} offset:{off:#x}")
            e("s_waitcnt lgkmcnt(0)")
            e(f"v_add_f32 v{G0}, v{G0}, v{G2}")
            e(f"v_add_f32 v{G1}, v{G1}, v{G3}")
        for rb in range(2):
            for m in range(2):
                b = PQ + 8 * rb + 4 * m
                n = 16 * rb
                d = 32 + 16 * rb
                c1 = "0" if m == 0 else f"a[{n}:{n+15}]"
                c2 = "0" if m == 0 else f"a[{d}:{d+15}]"
                e(f"v_mfma_f32_32x32x16_bf16 a[{n}:{n+15}], v[{KA+4*m}:{KA+4*m+3}], v[{b}:{b+3}], {c1}")
                e(f"v_mfma_f32_32x32x16_bf16 a[{d}:{d+15}], v[{KA+8+4*m}:{KA+8+4*m+3}], v[{b}:{b+3}], {c2}")
        e(f"v_readlane_b32 s56, v{G0}, 32")
        e(f"v_readlane_b32 s58, v{G1}, 32")
        e("s_nop 1")
        e(f"v_add_f32 v{G0}, s56, v{G0}")
        e(f"v_add_f32 v{G1}, s58, v{G1}")
        e(f"v_mul_f32 v{G0}, {LOG2E | 0x80000000:#x}, v{G0}")
        e(f"v_mul_f32 v{G1}, {LOG2E | 0x80000000:#x}, v{G1}")
        e(f"v_exp_f32 v{G0}, v{G0}")
        e(f"v_exp_f32 v{G1}, v{G1}")
        e("s_nop 0")
        e(f"v_add_f32 v{G0}, 1.0, v{G0}")
        e(f"v_add_f32 v{G1}, 1.0, v{G1}")
        e(f"v_rcp_f32 v{PS}, v{G0}")
        e(f"v_rcp_f32 v{PS+1}, v{G1}")
        e("s_lshl_b32 s27, s48, 2")
        e(f"s_add_u32 s27, s27, {G_OFF}")
        e(f"v_mov_b32 v{G0}, 0")
        e.raw("{")
        e("v_cmp_eq_u32 vcc, 0, v2")
        e("s_and_saveexec_b64 s[78:79], vcc")
        e(f"buffer_store_dwordx2 v[{PS}:{PS+1}], v{G0}, s[28:31], s27 offen sc1")
        e("s_mov_b64 exec, s[78:79]")
        e.raw("}")
        e(f"v_and_b32 v{R9}, 31, v2")
        e(f"v_lshlrev_b32 v{R9}, 5, v{R9}")
        e(f"v_add_u32 v{R9}, v{R9}, v{R5}")
        e("s_lshl_b32 s48, s51, 3")
        e("s_lshl_b32 s27, s35, 1")
        e("s_add_u32 s48, s48, s27")
        e("s_lshl_b32 s48, s48, 5")
        e("s_add_u32 s48, s48, s50")
        e("s_lshl_b32 s48, s48, 11")
        e(f"s_add_u32 s48, s48, {O_OFF}")
        e("s_add_u32 s49, s48, 65536")
        e("s_nop 7")
        for rb in range(2):
            n = 16 * rb
            d = 32 + 16 * rb
            e(f"v_accvgpr_read_b32 v{G1}, a{d}")
            for r in range(16):
                e(f"v_accvgpr_read_b32 v{T+r}, a{n+r}")
            e(f"v_add_f32 v{G1}, {EPS6:#x}, v{G1}")
            e(f"v_rcp_f32 v{G1}, v{G1}")
            e("s_nop 0")
            for r in range(16):
                e(f"v_mul_f32 v{T+r}, v{T+r}, v{G1}")
            P = T + 16 + 8 * rb
            for i in range(8):
                e(f"v_cvt_pk_bf16_f32 v{P+i}, v{T+2*i}, v{T+2*i+1}")
            e("s_nop 1")
            e(f"v_permlane32_swap_b32 v{P+0}, v{P+2}")
            e(f"v_permlane32_swap_b32 v{P+1}, v{P+3}")
            e(f"v_permlane32_swap_b32 v{P+4}, v{P+6}")
            e(f"v_permlane32_swap_b32 v{P+5}, v{P+7}")
            e(f"buffer_store_dwordx4 v[{P}:{P+3}], v{R9}, s[28:31], s{48+rb} offen sc1")
            e(f"buffer_store_dwordx4 v[{P+4}:{P+7}], v{R9}, s[28:31], s{48+rb} offen offset:1024 sc1")

    e("v_and_b32 v3, 31, v2")
    e("v_lshrrev_b32 v4, 1, v1")
    e("v_lshlrev_b32 v4, 6, v4")
    e("v_add_u32 v4, v4, v3")
    e("v_lshlrev_b32 v4, 7, v4")
    e("v_bfe_u32 v5, v3, 1, 3")
    e("v_lshrrev_b32 v6, 5, v2")
    for s in range(4):
        e(f"v_add_u32 v7, {2*s}, v6")
        e("v_xor_b32 v7, v7, v5")
        e(f"v_lshl_add_u32 v{14+s}, v7, 4, v4")
        e(f"v_add_u32 v{18+s}, {2*STG}, v{14+s}")
    e("v_lshrrev_b32 v3, 5, v2")
    e("v_lshlrev_b32 v3, 11, v3")
    e("v_bfe_u32 v4, v2, 2, 2")
    e("v_lshl_add_u32 v3, v4, 8, v3")
    e("v_bfe_u32 v5, v2, 4, 1")
    e("v_lshl_add_u32 v3, v5, 5, v3")
    e("v_and_b32 v5, 3, v2")
    e("v_lshl_add_u32 v3, v5, 3, v3")
    e("v_and_b32 v5, 1, v1")
    e("v_lshlrev_b32 v5, 1, v5")
    for j in range(2):
        e(f"v_add_u32 v6, {j}, v5")
        e("v_xor_b32 v6, v6, v4")
        e("v_lshl_add_u32 v6, v6, 6, v3")
        e(f"v_add_u32 v{22+j}, {BOFF}, v6")
        e(f"v_add_u32 v{28+j}, {BOFF+2*STG}, v6")

    AF = 32
    BF = 48
    ACC = 64
    for r in range(128):
        e(f"v_mov_b32 v{ACC+r}, 0")

    def read_groups(stage, s, buf):
        g = []
        va = 14 + 4 * (stage >> 1) + s
        so = (stage & 1) * STG
        for rb in range(2):
            d = AF + buf * 8 + rb * 4
            g.append([f"ds_read_b128 v[{d}:{d+3}], v{va} offset:{so + rb*4096}"])
        for b in range(2):
            vb = (22 if stage < 2 else 28) + b
            d = BF + buf * 8 + b * 4
            g.append([f"ds_read_b64_tr_b16 v[{d}:{d+1}], v{vb} offset:{so + 4*s*1024}"])
            g.append([f"ds_read_b64_tr_b16 v[{d+2}:{d+3}], v{vb} offset:{so + 4*s*1024+1024}"])
        return g

    def mfmas(buf, aset):
        m = []
        for b in range(2):
            for rb in range(2):
                a = AF + buf * 8 + rb * 4
                bb = BF + buf * 8 + b * 4
                c = ACC + aset * 64 + (b * 2 + rb) * 16
                m.append(f"v_mfma_f32_32x32x16_bf16 v[{c}:{c+15}], v[{bb}:{bb+3}], v[{a}:{a+3}], v[{c}:{c+15}]")
        return m

    def kstep(q, aset, dma, wait_n, last, after_barrier=None, ph2=False, t=None, extra=None, need=()):
        dg = dma_groups((q + 3) % NS, ph2) if (dma and "n3dma" not in EXP) else []
        extra = list(extra or [])
        per = (len(extra) + 15) // 16

        def ex():
            for _ in range(per):
                if extra:
                    tg, e.tag = e.tag, "att"
                    for x in extra.pop(0):
                        e(x)
                    e.tag = tg
        for s in range(4):
            cur = s & 1
            if s < 3:
                rd = read_groups(q, s + 1, cur ^ 1)
            elif not last:
                rd = read_groups((q + 1) % NS, 0, cur ^ 1)
            else:
                rd = []
            e("s_waitcnt lgkmcnt(0)")
            mf = mfmas(cur, aset)
            dd = dg[2 * s:2 * s + 2]
            e.tag = ("D", None if t is None else t + 3)
            e(mf[0])
            for g in rd[0:3]:
                for x in g:
                    e(x)
            ex()
            e(mf[1])
            for g in rd[3:6]:
                for x in g:
                    e(x)
            ex()
            e(mf[2])
            for g in dd[0:1]:
                for x in g:
                    e(x)
            ex()
            e(mf[3])
            for g in dd[1:2]:
                for x in g:
                    e(x)
            ex()
            if s == 2 and not last:
                if wait_n is None:
                    wn = e.vm_needed([("D", t + 1)] + list(need))
                else:
                    wn = wait_n
                e(f"s_waitcnt vmcnt({wn}) lgkmcnt(0)")
                e("s_barrier")
                if after_barrier:
                    after_barrier()

    def signal():
        e("s_cmp_eq_u32 s35, 0")
        e("s_cbranch_scc0 K3_NOSIG")
        e("v_mov_b32 v30, 1")
        e("v_mov_b32 v31, 0")
        e("s_lshl_b32 s3, s51, 2")
        e("v_cmp_eq_u32 vcc, 0, v2")
        e("s_and_saveexec_b64 s[78:79], vcc")
        e("buffer_atomic_add v30, v31, s[16:19], s3 offen sc1")
        e("s_mov_b64 exec, s[78:79]")
        e.label("K3_NOSIG")

    e("s_waitcnt vmcnt(16)")
    e("s_barrier")
    for g in read_groups(0, 0, 0):
        for s in g:
            e(s)
    if "stamp3" in EXP:
        e("s_memtime s[82:83]")
    e("s_lshr_b32 s44, s33, 1")
    e("s_lshl_b32 s44, s44, 2")
    L = e.capture(att_loads)
    A = e.capture(att_a)
    B = e.capture(att_b)

    def split(lst, n):
        k = (len(lst) + n - 1) // n
        return [lst[i * k:(i + 1) * k] for i in range(n)]
    A0, A1 = split(A, 2)
    B0, B1 = split(B, 2)
    kstep(0, 1, True, None, False, t=0, extra=L)
    kstep(1, 1, True, None, False, t=1)
    kstep(2, 1, True, None, False, t=2, need=["att"])
    stamp()
    kstep(3, 1, True, None, False, t=3, extra=A0)
    kstep(0, 1, True, None, False, t=4, extra=A1)
    stamp()
    kstep(1, 1, True, None, False, t=5)
    stamp()
    kstep(2, 1, True, None, False, t=6, extra=B0)
    kstep(3, 1, True, None, False, t=7, extra=B1)
    stamp()
    kstep(0, 1, True, None, False, t=8)
    kstep(1, 1, True, None, False, t=9, need=["att"], after_barrier=signal)
    kstep(2, 1, True, None, False, t=10)
    kstep(3, 1, True, None, False, t=11)
    stamp()
    stamp()
    for q in range(3):
        kstep(q, 1, True, 14, False)
    e("v_mov_b32 v31, 0")
    e("buffer_load_dword v30, v31, s[16:19], s44 offen sc1")
    kstep(3, 1, True, 14, False)
    kstep(0, 1, True, 14, False)
    e("v_readfirstlane_b32 s3, v30")
    e("s_cmp_ge_u32 s3, 32")
    e("s_cbranch_scc1 K3_READY")
    e("s_mov_b32 s47, 0")
    e.label("K3_SPIN")
    e("s_sleep 8")
    e("buffer_load_dword v30, v31, s[16:19], s44 offen sc1")
    e("s_waitcnt vmcnt(0)")
    e("v_readfirstlane_b32 s3, v30")
    e("s_add_u32 s47, s47, 1")
    e("s_cmp_ge_u32 s47, 0x20000")
    e("s_cbranch_scc1 K3_READY")
    e("s_cmp_ge_u32 s3, 32")
    e("s_cbranch_scc0 K3_SPIN")
    e.label("K3_READY")
    for i in range(4):
        e(f"s_mov_b32 s{52+i}, {i*8*A2_LD}")
    e("s_movk_i32 s27, 128")
    e("s_cmp_eq_u32 s36, 0")
    e("s_cbranch_scc0 K3_NOSW")
    for i in range(4):
        e(f"s_movk_i32 s{52+i}, {i*256}")
    e("s_movk_i32 s27, 4096")
    e("s_lshl_b32 s3, s33, 18")
    e(f"s_add_u32 s3, s3, {O_OFF}")
    e("s_add_u32 s4, s74, s3")
    e("s_addc_u32 s5, s75, 0")
    e("s_and_b32 s5, s5, 0xffff")
    e("s_mov_b32 s6, 0x40000")
    e("v_lshrrev_b32 v3, 3, v2")
    e("v_lshlrev_b32 v3, 5, v3")
    e("v_lshlrev_b32 v4, 16, v1")
    e("v_add_u32 v3, v3, v4")
    e("v_lshrrev_b32 v5, 4, v2")
    e("v_and_b32 v6, 7, v2")
    e("v_xor_b32 v7, v6, v5")
    for par in range(2):
        if par:
            e("v_xor_b32 v7, 4, v7")
        e("v_lshrrev_b32 v8, 1, v7")
        e("v_lshl_add_u32 v8, v8, 10, v3")
        e("v_and_b32 v9, 1, v7")
        e(f"v_lshl_add_u32 v{10+par}, v9, 4, v8")
    e.label("K3_NOSW")
    e("v_and_b32 v3, 31, v2")
    e("v_lshrrev_b32 v4, 1, v1")
    e("v_lshlrev_b32 v4, 6, v4")
    e("v_add_u32 v3, v3, v4")
    e("v_lshlrev_b32 v4, 2, v3")
    e("s_lshl_b32 s3, s33, 9")
    e(f"s_add_u32 s3, s3, {G_OFF}")
    e("buffer_load_dword v24, v4, s[28:31], s3 offen sc1")
    e("buffer_load_dword v25, v4, s[28:31], s3 offen offset:128 sc1")
    kstep(1, 1, True, 14, False, ph2=True)
    kstep(2, 1, True, 14, False, ph2=True)
    kstep(3, 1, True, 14, False, ph2=True)
    stamp()
    e("s_mov_b32 s63, 0")
    e.label("K3_LOOP2")
    for q in range(4):
        kstep(q, 0, True, 14, False, ph2=True)
    e("s_add_u32 s63, s63, 1")
    e("s_cmp_lt_u32 s63, 3")
    e("s_cbranch_scc1 K3_LOOP2")
    kstep(0, 0, True, 14, False, ph2=True)
    kstep(1, 0, False, 8, False)
    kstep(2, 0, False, 0, False)
    kstep(3, 0, False, 0, True)
    if "stamp3" in EXP:
        e("s_memtime s[84:85]")
    e("v_and_b32 v3, 31, v2")
    e("v_lshrrev_b32 v4, 1, v1")
    e("v_lshlrev_b32 v4, 6, v4")
    e("v_add_u32 v3, v3, v4")
    e("v_sub_f32 v26, 1.0, v24")
    e("v_sub_f32 v27, 1.0, v25")
    e("s_cmp_eq_u32 s36, 0")
    e("s_cselect_b64 vcc, -1, 0")
    e("s_nop 1")
    e("v_cndmask_b32 v24, v26, v24, vcc")
    e("v_cndmask_b32 v25, v27, v25, vcc")
    e("s_nop 3")
    for t in range(4):
        rb = t & 1
        c1 = ACC + t * 16
        c2 = ACC + 64 + t * 16
        for r in range(16):
            e(f"v_mul_f32 v{c1+r}, v{c1+r}, v{24+rb}")
        for r in range(16):
            e(f"v_fmac_f32 v{c1+r}, v{c2+r}, v{26+rb}")
    e("s_lshl_b32 s3, s33, 3")
    e("s_add_u32 s3, s3, s34")
    e("s_lshl_b32 s3, s3, 1")
    e("s_add_u32 s38, s3, s36")
    e("s_xor_b32 s39, s38, 1")
    for r_ in (38, 39):
        e(f"s_lshl_b32 s{r_}, s{r_}, 2")
        e(f"s_add_u32 s{r_}, s{r_}, s35")
        e(f"s_lshl_b32 s{r_}, s{r_}, 13")
        e(f"s_add_u32 s{r_}, s{r_}, {X_OFF}")
    e("v_lshlrev_b32 v5, 4, v2")
    e("v_lshlrev_b32 v6, 11, v3")
    e("v_lshrrev_b32 v7, 5, v2")
    e("v_lshl_add_u32 v6, v7, 4, v6")
    e("s_lshl_b32 s47, s33, 18")
    e("s_lshl_b32 s3, s36, 16")
    e("s_add_u32 s47, s47, s3")
    e("s_lshl_b32 s3, s34, 8")
    e("s_add_u32 s47, s47, s3")
    e("s_and_b32 s3, s35, 1")
    e("s_lshl_b32 s3, s3, 7")
    e("s_add_u32 s47, s47, s3")
    e("s_cmp_eq_u32 s36, 0")
    e("s_cbranch_scc0 K3_S1")
    for sp in range(2):
        if sp == 1:
            e.label("K3_S1")
        keep = sp
        send = sp ^ 1
        for j in range(2):
            c = ACC + (j * 2 + send) * 16
            for rg in range(4):
                e(f"buffer_store_dwordx4 v[{c+4*rg}:{c+4*rg+3}], v5, s[28:31], s39 offen offset:{rg*1024} sc1")
            if j == 0:
                e("s_add_u32 s39, s39, 4096")
        e("s_waitcnt vmcnt(0)")
        e("s_barrier")
        e("s_cmp_eq_u32 s35, 0")
        e(f"s_cbranch_scc0 K3_NOFLAG{sp}")
        e("v_mov_b32 v30, 1")
        e("v_mov_b32 v31, 0")
        e("s_lshl_b32 s3, s2, 7")
        e(f"s_add_u32 s3, s3, {FLG_OFF}")
        e("v_cmp_eq_u32 vcc, 0, v2")
        e("s_and_saveexec_b64 s[78:79], vcc")
        e("buffer_store_dword v30, v31, s[28:31], s3 offen sc1")
        e("s_mov_b64 exec, s[78:79]")
        e.label(f"K3_NOFLAG{sp}")
        e("s_xor_b32 s49, s2, 1")
        e("s_lshl_b32 s49, s49, 7")
        e(f"s_add_u32 s49, s49, {FLG_OFF}")
        e("v_mov_b32 v31, 0")
        e("s_mov_b32 s56, 0")
        e.label(f"K3_XSPIN{sp}")
        e("buffer_load_dword v30, v31, s[28:31], s49 offen sc1")
        e("s_waitcnt vmcnt(0)")
        e("v_readfirstlane_b32 s3, v30")
        e("s_add_u32 s56, s56, 1")
        e("s_cmp_ge_u32 s56, 0x20000")
        e(f"s_cbranch_scc1 K3_XGO{sp}")
        e("s_cmp_eq_u32 s3, 1")
        e(f"s_cbranch_scc1 K3_XGO{sp}")
        e("s_sleep 2")
        e(f"s_branch K3_XSPIN{sp}")
        e.label(f"K3_XGO{sp}")
        RX = 128
        for j in range(2):
            for rg in range(4):
                e(f"buffer_load_dwordx4 v[{RX+16*j+4*rg}:{RX+16*j+4*rg+3}], v5, s[28:31], s38 offen offset:{rg*1024} sc1")
            if j == 0:
                e("s_add_u32 s38, s38, 4096")
        for j in range(2):
            e(f"s_waitcnt vmcnt({4*(1-j)})")
            c = ACC + (j * 2 + keep) * 16
            for r in range(16):
                e(f"v_add_f32 v{c+r}, v{c+r}, v{RX+16*j+r}")
            P = 32 + 8 * j
            for i in range(8):
                e(f"v_cvt_pk_bf16_f32 v{P+i}, v{c+2*i}, v{c+2*i+1}")
            e("s_nop 1")
            e(f"v_permlane32_swap_b32 v{P+0}, v{P+2}")
            e(f"v_permlane32_swap_b32 v{P+1}, v{P+3}")
            e(f"v_permlane32_swap_b32 v{P+4}, v{P+6}")
            e(f"v_permlane32_swap_b32 v{P+5}, v{P+7}")
            e(f"buffer_store_dwordx4 v[{P}:{P+3}], v6, s[68:71], s47 offen offset:{64*j}")
            e(f"buffer_store_dwordx4 v[{P+4}:{P+7}], v6, s[68:71], s47 offen offset:{64*j+32}")
        if sp == 0:
            e("s_branch K3_FIN")
    e.label("K3_FIN")
    if "fine" in EXP:
        e("s_waitcnt lgkmcnt(0)")
        for i in range(7):
            e(f"v_mov_b32 v{48+2*i}, s{STP[i]}")
            e(f"v_mov_b32 v{49+2*i}, s{STP[i]+1}")
        e("s_lshl_b32 s3, s2, 8")
        e("s_lshl_b32 s64, s35, 6")
        e("s_add_u32 s3, s3, s64")
        e(f"s_add_u32 s3, s3, {201<<20}")
        e("v_mov_b32 v3, 0")
        e("v_cmp_eq_u32 vcc, 0, v2")
        e("s_and_saveexec_b64 s[64:65], vcc")
        for i in range(4):
            e(f"buffer_store_dwordx4 v[{48+4*i}:{51+4*i}], v3, s[28:31], s3 offen offset:{16*i}")
        e("s_mov_b64 exec, s[64:65]")
    if "stamp3" in EXP:
        stamp_end(e, 28, 35, 2)
    e.label("K3_END")
    e("s_endpgm")
    return kn, e.text(), kernel_desc(kn, 360, 256), (256, 256, 135168)


def gen_k4():
    e = E()
    kn = "k4_comb_kernel"
    e.raw(f".globl {kn}\n.p2align 8\n.type {kn},@function")
    e.label(kn)
    e("s_cmp_ge_u32 s2, 512")
    e("s_cbranch_scc1 K4_END")
    e("s_load_dwordx2 s[64:65], s[0:1], 64")
    e("s_load_dwordx2 s[72:73], s[0:1], 80")
    e("v_lshrrev_b32 v1, 6, v0")
    e("v_and_b32 v2, 63, v0")
    e("v_readfirstlane_b32 s35, v1")
    e("s_waitcnt lgkmcnt(0)")
    srd(e, 28, 72, 73, 0x10000000)
    srd(e, 4, 64, 65, 2048 * 2048)
    e("s_lshl_b32 s3, s2, 2")
    e("s_add_u32 s3, s3, s35")
    e("s_lshl_b32 s3, s3, 12")
    e(f"s_add_u32 s3, s3, {P_OFF}")
    e(f"s_add_u32 s36, s3, {1<<23}")
    e("v_lshlrev_b32 v3, 4, v2")
    for rg in range(4):
        e(f"buffer_load_dwordx4 v[{16+4*rg}:{19+4*rg}], v3, s[28:31], s3 offen offset:{rg*1024}")
        e(f"buffer_load_dwordx4 v[{32+4*rg}:{35+4*rg}], v3, s[28:31], s36 offen offset:{rg*1024}")
    e("s_lshr_b32 s37, s2, 5")
    e("s_bfe_u32 s38, s2, 0x30002")
    e("s_bfe_u32 s39, s2, 0x10001")
    e("s_and_b32 s40, s2, 1")
    e("s_lshl_b32 s37, s37, 7")
    e("s_lshl_b32 s39, s39, 6")
    e("s_add_u32 s37, s37, s39")
    e("s_and_b32 s41, s35, 1")
    e("s_lshl_b32 s41, s41, 5")
    e("s_add_u32 s37, s37, s41")
    e("s_lshl_b32 s37, s37, 11")
    e("s_lshl_b32 s38, s38, 8")
    e("s_lshl_b32 s40, s40, 7")
    e("s_add_u32 s38, s38, s40")
    e("s_lshr_b32 s41, s35, 1")
    e("s_lshl_b32 s41, s41, 6")
    e("s_add_u32 s38, s38, s41")
    e("s_add_u32 s37, s37, s38")
    e("v_and_b32 v4, 31, v2")
    e("v_lshlrev_b32 v4, 11, v4")
    e("v_lshrrev_b32 v5, 5, v2")
    e("v_lshl_add_u32 v4, v5, 4, v4")
    e("s_waitcnt vmcnt(0)")
    for r in range(16):
        e(f"v_add_f32 v{16+r}, v{16+r}, v{32+r}")
    P = 48
    for i in range(8):
        e(f"v_cvt_pk_bf16_f32 v{P+i}, v{16+2*i}, v{16+2*i+1}")
    e("s_nop 1")
    e(f"v_permlane32_swap_b32 v{P+0}, v{P+2}")
    e(f"v_permlane32_swap_b32 v{P+1}, v{P+3}")
    e(f"v_permlane32_swap_b32 v{P+4}, v{P+6}")
    e(f"v_permlane32_swap_b32 v{P+5}, v{P+7}")
    e(f"buffer_store_dwordx4 v[{P}:{P+3}], v4, s[4:7], s37 offen")
    e(f"buffer_store_dwordx4 v[{P+4}:{P+7}], v4, s[4:7], s37 offen offset:32")
    e.label("K4_END")
    e("s_endpgm")
    return kn, e.text(), kernel_desc(kn, 64, 64), (512, 256, 0)


def main():
    kernels = [gen_k1(), gen_k3()]
    which = sys.argv[2] if len(sys.argv) > 2 else None
    out = []
    for kn, _, _, (g, b, lds) in kernels:
        out.append(f"; @launch kernel={kn} grid=({g},1,1) block=({b},1,1) lds={lds}")
    out.append('.amdgcn_target "amdgcn-amd-amdhsa--gfx950"')
    out.append(".text")
    for kn, body, desc, _ in kernels:
        out.append(body)
        out.append(desc)
    open(sys.argv[1], "w").write("\n".join(out))


if __name__ == "__main__":
    main()
```

```python
import sys, os
EXP = os.environ.get("EXP", "")
MODE = int(os.environ.get("MODE", "1"))

NAME = "gated_mix__linear_attn_block__glu_gated_bilinear__prompt"

PQ_OFF = 0
A2_OFF = 4 << 20
KVP_OFF = 24 << 20
G_OFF = 27 << 20
P_OFF = 28 << 20
FLG_OFF = (27 << 20) + 65536
A2_LD = 4608 * 2 + int(os.environ.get("PAD", "128"))

LOG2E = 0x3fb8aa3b
EPS6 = 0x358637bd


class E:
    def __init__(self):
        self.lines = []
        self.vmlog = []
        self.tag = None

    def __call__(self, s):
        self.lines.append("    " + s)
        if s.startswith("buffer_"):
            self.vmlog.append(self.tag)

    def vm_needed(self, tags):
        last = -1
        for i, t in enumerate(self.vmlog):
            if t in tags:
                last = i
        return len(self.vmlog) - 1 - last

    def capture(self, fn):
        saved, savedlog = self.lines, self.vmlog
        self.lines, self.vmlog = [], []
        fn()
        out, self.lines, self.vmlog = self.lines, saved, savedlog
        groups, cur = [], None
        for l in out:
            l = l.strip()
            if l == "{":
                cur = []
            elif l == "}":
                groups.append(cur)
                cur = None
            elif cur is not None:
                cur.append(l)
            else:
                groups.append([l])
        return groups

    def label(self, s):
        self.lines.append(s + ":")

    def raw(self, s):
        self.lines.append(s)

    def text(self):
        return "\n".join(self.lines) + "\n"


def srd(e, d, base_lo, base_hi, nbytes):
    e(f"s_mov_b32 s{d}, s{base_lo}")
    e(f"s_and_b32 s{d+1}, s{base_hi}, 0xffff")
    e(f"s_mov_b32 s{d+2}, {nbytes:#x}")
    e(f"s_mov_b32 s{d+3}, 0x00020000")


def kernel_desc(name, vgpr, accum, sgpr=102):
    return f""".section .rodata,"a"
.p2align 6
.amdhsa_kernel {name}
  .amdhsa_next_free_vgpr {vgpr}
  .amdhsa_next_free_sgpr {sgpr}
  .amdhsa_accum_offset {accum}
  .amdhsa_group_segment_fixed_size 0
  .amdhsa_kernarg_size 88
  .amdhsa_user_sgpr_count 2
  .amdhsa_user_sgpr_kernarg_segment_ptr 1
  .amdhsa_system_sgpr_workgroup_id_x 1
.end_amdhsa_kernel
.text
"""


def interleave(e, mfmas, fillers, per_gap=None, start=0):
    n = len(mfmas)
    fi = 0
    nf = len(fillers)
    for i, m in enumerate(mfmas):
        e(m)
        if i < start:
            continue
        if per_gap is None:
            tgt = nf * (i + 1 - start) // max(1, (n - start))
        else:
            tgt = min(nf, per_gap * (i + 1 - start))
        while fi < tgt:
            for s in fillers[fi]:
                e(s)
            fi += 1
    while fi < nf:
        for s in fillers[fi]:
            e(s)
        fi += 1


def stamp_end(e, srd_ws, wave_sgpr, lane_v):
    e("s_waitcnt vmcnt(0)")
    e("s_memtime s[86:87]")
    e("s_memrealtime s[90:91]")
    e("s_waitcnt lgkmcnt(0)")
    for i in range(12):
        e(f"v_mov_b32 v{32+i}, s{80+i}")
    e("s_lshl_b32 s3, s2, 8")
    e(f"s_lshl_b32 s92, s{wave_sgpr}, 6")
    e("s_add_u32 s3, s3, s92")
    e(f"s_add_u32 s3, s3, {200<<20}")
    e("v_mov_b32 v3, 0")
    e(f"v_cmp_eq_u32 vcc, 0, v{lane_v}")
    e("s_and_saveexec_b64 s[92:93], vcc")
    for i in range(3):
        e(f"buffer_store_dwordx4 v[{32+4*i}:{35+4*i}], v3, s[{srd_ws}:{srd_ws+3}], s3 offen offset:{16*i}")


def gen_k1():
    e = E()
    kn = "k1_gemm1_kernel"
    STG = 36864
    BOFF = 16384
    NS = 4
    e.raw(f".globl {kn}\n.p2align 8\n.type {kn},@function")
    e.label(kn)
    e("s_cmp_ge_u32 s2, 256")
    e("s_cbranch_scc1 K1_END")
    if "stamp" in EXP:
        e("s_memtime s[80:81]")
        e("s_memrealtime s[88:89]")
    e("s_load_dwordx4 s[64:67], s[0:1], 0")
    e("s_load_dwordx4 s[68:71], s[0:1], 32")
    e("s_load_dwordx2 s[72:73], s[0:1], 80")
    e("s_load_dwordx2 s[96:97], s[0:1], 16")
    e("s_load_dwordx2 s[98:99], s[0:1], 48")
    e("s_and_b32 s3, s2, 7")
    e("s_lshr_b32 s32, s2, 3")
    e("s_and_b32 s33, s32, 7")
    e("s_lshr_b32 s32, s32, 3")
    e("s_lshl_b32 s3, s3, 2")
    e("s_add_u32 s34, s3, s32")
    e("v_lshrrev_b32 v1, 6, v0")
    e("v_and_b32 v2, 63, v0")
    e("v_readfirstlane_b32 s35, v1")
    e("s_and_b32 s37, s34, 1")
    e("s_lshr_b32 s38, s34, 1")
    e("s_mul_i32 s39, s38, 7")
    e("s_lshl_b32 s40, s37, 2")
    e("s_add_u32 s40, s39, s40")
    e("s_add_u32 s41, s39, 3")
    e("s_lshl_b32 s42, s34, 6")
    e("s_add_u32 s48, s42, 2048")
    e("s_add_u32 s49, s42, 4096")
    e("s_lshl_b32 s43, s38, 7")
    e("s_add_u32 s47, s43, 64")
    e("s_lshl_b32 s44, s41, 6")
    e("s_cmp_eq_u32 s37, 0")
    e("s_cselect_b32 s50, s43, s44")
    e("s_cselect_b32 s51, s47, s44")
    e(f"s_mov_b32 s58, {32*7168}")
    e(f"s_cselect_b32 s58, {32*6144}, s58")
    e("s_lshl_b32 s44, s40, 6")
    for j in range(3):
        e(f"s_add_u32 s{52+2*j}, s44, {64*j}")
        e(f"s_add_u32 s{53+2*j}, s44, {64*j}")
    e("s_lshr_b32 s36, s35, 1")
    e("s_cmp_eq_u32 s36, 0")
    for i in range(5):
        e(f"s_cselect_b32 s{74+i}, s{48+2*i}, s{49+2*i}")
    e("s_waitcnt lgkmcnt(0)")
    e("s_lshl_b32 s3, s33, 19")
    e("s_add_u32 s64, s64, s3")
    e("s_addc_u32 s65, s65, 0")
    srd(e, 4, 64, 65, 256 * 2048)
    srd(e, 8, 66, 67, 1024 * 6144)
    srd(e, 12, 68, 69, 1024 * 7168)
    srd(e, 16, 70, 71, 1024 * 7168)
    srd(e, 28, 72, 73, 0x10000000)
    e("s_cmp_eq_u32 s36, 0")
    for i in range(4):
        e(f"s_cselect_b32 s{20+i}, s{12+i}, s{16+i}")
    e("s_cmp_eq_u32 s37, 0")
    for i in range(4):
        e(f"s_cselect_b32 s{24+i}, s{8+i}, s{20+i}")
    if "nostag" in EXP:
        e("s_mov_b32 s79, 0")
    else:
        e("s_lshl_b32 s79, s33, 2")
        e("s_and_b32 s3, s34, 3")
        e("s_add_u32 s79, s79, s3")
    e("s_lshl_b32 s59, s79, 6")
    e(f"s_mul_i32 s60, s79, {32*6144}")
    e(f"s_mul_i32 s61, s79, {32*7168}")
    e("s_mul_i32 s62, s79, s58")
    e("s_lshl_b32 s45, s35, 12")
    e("s_lshl_b32 s46, s35, 10")
    e(f"s_add_u32 s46, s46, {BOFF}")
    e("v_lshrrev_b32 v3, 2, v2")
    e("v_lshlrev_b32 v4, 6, v1")
    e("v_add_u32 v4, v3, v4")
    e("v_lshlrev_b32 v4, 11, v4")
    e("v_lshrrev_b32 v5, 4, v2")
    e("v_lshlrev_b32 v7, 1, v5")
    e("v_and_b32 v7, 3, v7")
    e("v_lshrrev_b32 v5, 1, v5")
    e("v_mul_u32_u24 v5, 3, v5")
    e("v_xor_b32 v5, v5, v7")
    e("v_and_b32 v6, 3, v2")
    e("v_xor_b32 v7, v6, v5")
    e("v_lshl_add_u32 v10, v7, 4, v4")
    e("v_and_b32 v4, 1, v1")
    e("v_lshlrev_b32 v4, 4, v4")
    e("v_add_u32 v3, v3, v4")
    e("v_lshrrev_b32 v4, 5, v2")
    e("v_lshlrev_b32 v4, 1, v4")
    e("v_xor_b32 v4, v4, v6")
    e("v_lshlrev_b32 v4, 4, v4")
    e("s_movk_i32 s3, 6144")
    e("v_mul_lo_u32 v11, v3, s3")
    e("v_add_u32 v11, v11, v4")
    e("s_movk_i32 s3, 7168")
    e("v_mul_lo_u32 v12, v3, s3")
    e("v_add_u32 v12, v12, v4")
    e("s_cmp_eq_u32 s37, 0")
    e("s_cselect_b64 vcc, -1, 0")
    e("s_nop 1")
    e("v_cndmask_b32 v13, v12, v11, vcc")

    dsrd = [8, 24, 20, 20, 20]
    dvoff = [11, 13, 12, 12, 12]
    dkrun = [60, 62, 61, 61, 61]

    def dma_groups(stage):
        g = []
        for i in range(4):
            g.append([f"s_add_u32 m0, s45, {stage*STG + i*1024}",
                      f"s_add_u32 s3, s59, {i*32768}",
                      f"buffer_load_dwordx4 v10, s[4:7], s3 offen lds"])
        for i in range(5):
            g.append([f"s_add_u32 m0, s46, {stage*STG + i*4096}",
                      f"s_add_u32 s3, s{dkrun[i]}, s{74+i}",
                      f"buffer_load_dwordx4 v{dvoff[i]}, s[{dsrd[i]}:{dsrd[i]+3}], s3 offen lds"])
        g[-1] = g[-1] + ["s_add_u32 s79, s79, 1",
                         "s_and_b32 s79, s79, 31",
                         "s_lshl_b32 s59, s79, 6",
                         f"s_mul_i32 s60, s79, {32*6144}",
                         f"s_mul_i32 s61, s79, {32*7168}",
                         "s_mul_i32 s62, s79, s58"]
        order = [0, 4, 1, 5, 2, 6, 3, 7, 8]
        return [g[i] for i in order]

    if "dopf" in EXP:
        e("v_lshlrev_b32 v3, 4, v0")
        e("s_lshl_b32 s3, s34, 14")
        n = 0
        for (sr, per, base) in ((4, 4, "s3"), (8, 6, None), (12, 7, None), (16, 7, None)):
            if base is None:
                e(f"s_mul_i32 s3, s2, {per*4096}")
            for i in range(per):
                e(f"buffer_load_dwordx4 a[{96+4*n}:{99+4*n}], v3, s[{sr}:{sr+3}], s3 offen")
                if i + 1 < per:
                    e("s_add_u32 s3, s3, 4096")
                n += 1
    NPRE = 2 if "pre2" in EXP else (NS if "pre4" in EXP else 1)
    for st in range(NPRE):
        for g in dma_groups(st):
            for s in g:
                e(s)

    e("v_and_b32 v3, 15, v2")
    e("v_lshlrev_b32 v4, 6, v1")
    e("v_add_u32 v4, v4, v3")
    e("v_lshlrev_b32 v4, 6, v4")
    e("v_lshrrev_b32 v5, 2, v3")
    e("v_lshlrev_b32 v7, 1, v5")
    e("v_and_b32 v7, 3, v7")
    e("v_lshrrev_b32 v5, 1, v5")
    e("v_mul_u32_u24 v5, 3, v5")
    e("v_xor_b32 v5, v5, v7")
    e("v_lshrrev_b32 v6, 4, v2")
    e("v_xor_b32 v7, v6, v5")
    e("v_lshl_add_u32 v14, v7, 4, v4")
    for q in range(1, NS):
        e(f"v_add_u32 v{14+q}, {q*STG}, v14")
    e("v_lshrrev_b32 v3, 5, v2")
    e("v_lshlrev_b32 v3, 10, v3")
    e("v_bfe_u32 v4, v2, 4, 1")
    e("v_lshl_add_u32 v3, v4, 9, v3")
    e("v_bfe_u32 v5, v2, 2, 2")
    e("v_lshl_add_u32 v3, v5, 6, v3")
    e("v_lshl_add_u32 v3, v4, 5, v3")
    e("v_and_b32 v5, 3, v2")
    e("v_lshl_add_u32 v3, v5, 3, v3")
    e("v_xor_b32 v4, 32, v3")
    for q in range(NS):
        e(f"v_add_u32 v{18+2*q}, {BOFF+q*STG}, v3")
        e(f"v_add_u32 v{19+2*q}, {BOFF+q*STG}, v4")

    AF = 96
    BF = 128

    def base(b):
        return ("a", 32 * b) if b < 3 else ("v", 32 + 32 * (b - 3))

    def tile(rb, cb):
        k, o = base(cb >> 1)
        o += rb * 8 + (cb & 1) * 4
        return f"{k}[{o}:{o+3}]"

    for r in range(96):
        e(f"v_accvgpr_write_b32 a{r}, 0")
    for r in range(32, 256):
        e(f"v_mov_b32 v{r}, 0")

    def a_reads(stage, abuf):
        return [[f"ds_read_b128 a[{AF+abuf*16+rb*4}:{AF+abuf*16+rb*4+3}], v{14+stage} offset:{rb*1024}"] for rb in range(4)]

    def b_reads(stage, half):
        g = []
        for i in range(10):
            cb = half * 10 + i
            d = BF + half * 40 + i * 4
            vb = 18 + 2 * stage + (cb & 1)
            o = (cb >> 1) * 2048
            g.append([f"ds_read_b64_tr_b16 a[{d}:{d+1}], v{vb} offset:{o}"])
            g.append([f"ds_read_b64_tr_b16 a[{d+2}:{d+3}], v{vb} offset:{o+256}"])
        return g

    def mfmas(half, abuf):
        m = []
        for i in range(10):
            cb = half * 10 + i
            for rb in range(4):
                a = AF + abuf * 16 + rb * 4
                bb = BF + half * 40 + i * 4
                t = tile(rb, cb)
                if cb < 4:
                    m.append(f"v_mfma_f32_16x16x32_bf16 {t}, a[{a}:{a+3}], a[{bb}:{bb+3}], {t}")
                else:
                    m.append(f"v_mfma_f32_16x16x32_bf16 {t}, a[{bb}:{bb+3}], a[{a}:{a+3}], {t}")
        return m

    def merge(reads, dmas, nm):
        slots = [[] for _ in range(nm)]
        flat = [x for g in dmas for x in g]
        nr = len(reads)
        if MODE == 0:
            for i, g in enumerate(reads):
                slots[i].append(g)
            free = nm - nr
            for j, x in enumerate(flat):
                slots[min(nm - 1, nr + (j * free) // max(1, len(flat)))].append([x])
        else:
            for i, g in enumerate(reads):
                slots[min(nm - 1, (i * 3) // 2)].append(g)
            used = [len(x) for x in slots]
            pos = [i for i in range(nm) if used[i] == 0]
            for j, x in enumerate(flat):
                slots[pos[min(len(pos) - 1, (j * len(pos)) // max(1, len(flat)))]].append([x])
        return slots

    def emit_sub(mf, slots):
        for m, sl in zip(mf, slots):
            e(m)
            for g in sl:
                for s in g:
                    e(s)

    def k32step(q, dma_first, dma_second, wait_n, last):
        nodma = "nodma" in EXP
        ab = q & 1
        d0 = dma_groups((q - 1) % NS)[5:] if (dma_first and not nodma) else []
        e("s_waitcnt lgkmcnt(0)")
        emit_sub(mfmas(0, ab), merge(b_reads(q, 1), d0, 40))
        if not last:
            e(f"s_waitcnt vmcnt({wait_n}) lgkmcnt(0)")
            e("s_barrier")
        else:
            e("s_waitcnt lgkmcnt(0)")
        d1 = dma_groups(q)[:5] if (dma_second and not nodma) else []
        rd = (a_reads((q + 1) % NS, ab ^ 1) + b_reads((q + 1) % NS, 0)) if not last else []
        emit_sub(mfmas(1, ab), merge(rd, d1, 40))

    e(f"s_waitcnt vmcnt({9*(NPRE-1)})")
    e("s_barrier")
    for g in a_reads(0, 0) + b_reads(0, 0):
        for s in g:
            e(s)
    EARLY = "early" in EXP
    for st in range(NPRE, 2 if EARLY else NS):
        for g in dma_groups(st):
            for s in g:
                e(s)
    e("s_mov_b32 s63, 0")
    if "stamp" in EXP:
        e("s_memtime s[82:83]")
    if EARLY:
        e("s_waitcnt lgkmcnt(0)")
        emit_sub(mfmas(0, 0), merge(b_reads(0, 1), dma_groups(2), 40))
        e("s_waitcnt vmcnt(9) lgkmcnt(0)")
        e("s_barrier")
        emit_sub(mfmas(1, 0), merge(a_reads(1, 1) + b_reads(1, 0), dma_groups(3) + dma_groups(0)[:5], 40))
    else:
        k32step(0, False, True, 18, False)
    e.label("K1_LOOP")
    for j in range(4):
        k32step((1 + j) % NS, True, True, 18, False)
    e("s_add_u32 s63, s63, 1")
    e("s_cmp_lt_u32 s63, 6")
    e("s_cbranch_scc1 K1_LOOP")
    k32step(1, True, True, 18, False)
    k32step(2, True, True, 18, False)
    k32step(3, True, True, 18, False)
    k32step(0, True, False, 18, False)
    k32step(1, False, False, 9, False)
    k32step(2, False, False, 0, False)
    k32step(3, False, False, 0, True)
    e("s_nop 15")

    if "stamp" in EXP:
        e("s_memtime s[84:85]")
    e("v_mov_b32 v3, 0")
    e("v_lshlrev_b32 v4, 2, v0")
    e("s_lshl_b32 s3, s2, 7")
    e(f"s_add_u32 s3, s3, {FLG_OFF}")
    e("v_cmp_gt_u32 vcc, 32, v0")
    e("s_and_saveexec_b64 s[92:93], vcc")
    e("buffer_store_dword v3, v4, s[28:31], s3 offen")
    e("s_mov_b64 exec, s[92:93]")
    if "nopf3" not in EXP:
        srd(e, 8, 96, 97, 1024 * 2048)
        srd(e, 12, 98, 99, 3584 * 2048)
        e("v_lshlrev_b32 v3, 4, v0")
        e("s_lshl_b32 s3, s2, 13")
        for i in range(2):
            e(f"buffer_load_dwordx4 a[{96+4*i}:{99+4*i}], v3, s[8:11], s3 offen")
            e("s_add_u32 s3, s3, 4096")
        e("s_mul_i32 s3, s2, 28672")
        for i in range(7):
            e(f"buffer_load_dwordx4 a[{104+4*i}:{107+4*i}], v3, s[12:15], s3 offen")
            e("s_add_u32 s3, s3, 4096")
    e("v_and_b32 v3, 15, v2")
    e("v_lshlrev_b32 v4, 6, v1")
    e("v_add_u32 v3, v3, v4")
    e("v_bfe_u32 v5, v2, 4, 1")
    e("v_lshlrev_b32 v5, 5, v5")
    e("v_lshrrev_b32 v4, 5, v2")
    e("v_lshl_add_u32 v5, v4, 4, v5")
    e(f"s_movk_i32 s3, {A2_LD}")
    e("v_mul_lo_u32 v26, v3, s3")
    e("v_add_u32 v26, v26, v5")
    e("v_lshlrev_b32 v27, 11, v3")
    e("v_add_u32 v27, v27, v5")
    e(f"s_mul_i32 s64, s33, {256*A2_LD}")
    e(f"s_add_u32 s64, s64, {A2_OFF + 2048}")
    e("s_lshl_b32 s65, s33, 19")
    e(f"s_add_u32 s65, s65, {PQ_OFF}")

    def pack_store(src, dst, vaddr, sbase, scol, ld):
        for rb in range(4):
            for i in range(4):
                e(f"v_cvt_pk_bf16_f32 v{dst+4*rb+i}, v{src+8*rb+2*i}, v{src+8*rb+2*i+1}")
        e("s_nop 0")
        for rb in range(4):
            e(f"v_permlane16_swap_b32 v{dst+4*rb}, v{dst+4*rb+2}")
            e(f"v_permlane16_swap_b32 v{dst+4*rb+1}, v{dst+4*rb+3}")
        e(f"s_add_u32 s3, {sbase}, {scol}")
        for rb in range(4):
            e(f"buffer_store_dwordx4 v[{dst+4*rb}:{dst+4*rb+3}], v{vaddr}, s[28:31], s3 offen")
            if rb < 3:
                e(f"s_add_u32 s3, s3, {16*ld}")

    def glu_v(bg, scol):
        _, G = base(bg)
        _, U = base(bg + 1)
        for i in range(16):
            e(f"v_pk_mul_f32 v[{G+2*i}:{G+2*i+1}], v[{G+2*i}:{G+2*i+1}], v[{U+2*i}:{U+2*i+1}]")
        pack_store(G, U, 26, "s64", scol, A2_LD)

    glu_v(8, "s56")
    glu_v(6, "s54")
    T = 192
    T2 = 128
    PK = 240
    PV = 176
    ONES = 28
    for i in range(4):
        e(f"v_mov_b32 v{ONES+i}, 0x3f803f80")
    for r in range(32):
        e(f"v_accvgpr_read_b32 v{T+r}, a{r}")
    for r in range(32):
        e(f"v_mul_f32 v{T2+r}, {LOG2E:#x}, v{T+r}")
    for r in range(32):
        e(f"v_min_f32 v{T2+r}, 0, v{T2+r}")
    for r in range(32):
        e(f"v_exp_f32 v{T2+r}, v{T2+r}")
    for r in range(32):
        e(f"v_max_f32 v{T+r}, 0, v{T+r}")
    for r in range(32):
        e(f"v_add_f32 v{T+r}, {EPS6:#x}, v{T+r}")
    for r in range(32):
        e(f"v_add_f32 v{T+r}, v{T+r}, v{T2+r}")

    def kvpack(dst):
        for m in range(2):
            for h in range(2):
                for rr in range(2):
                    o = T + (2 * m + rr) * 8 + h * 4
                    d = dst + (m * 2 + h) * 4 + rr * 2
                    e(f"v_cvt_pk_bf16_f32 v{d}, v{o}, v{o+1}")
                    e(f"v_cvt_pk_bf16_f32 v{d+1}, v{o+2}, v{o+3}")
    kvpack(PK)
    for r in range(32):
        e(f"v_accvgpr_read_b32 v{T+r}, a{32+r}")
    kvpack(PV)
    e("s_nop 1")
    KVA = T2
    for m in range(2):
        for dh in range(2):
            pa = PK + (m * 2 + dh) * 4
            for eh in range(2):
                pb = PV + (m * 2 + eh) * 4
                t = KVA + (dh * 2 + eh) * 4
                c = "0" if m == 0 else f"v[{t}:{t+3}]"
                e(f"v_mfma_f32_16x16x32_bf16 v[{t}:{t+3}], v[{pa}:{pa+3}], v[{pb}:{pb+3}], {c}")
            t = KVA + 16 + dh * 4
            c = "0" if m == 0 else f"v[{t}:{t+3}]"
            e(f"v_mfma_f32_16x16x32_bf16 v[{t}:{t+3}], v[{pa}:{pa+3}], v[{ONES}:{ONES+3}], {c}")
    e("s_barrier")
    e("v_lshlrev_b32 v3, 4, v2")
    e("v_lshlrev_b32 v4, 13, v1")
    e("v_add_u32 v3, v3, v4")
    e("s_nop 7")
    for t in range(4):
        e(f"ds_write_b128 v3, v[{KVA+4*t}:{KVA+4*t+3}] offset:{t*1024}")
    for t in range(4):
        z = KVA + 16 + (t >> 1) * 4
        e(f"ds_write_b128 v3, v[{z}:{z+3}] offset:{4096+t*1024}")
    glu_v(4, "s52")
    for r in range(32):
        e(f"v_accvgpr_read_b32 v{T+r}, a{64+r}")
    e("s_cmp_eq_u32 s37, 0")
    e("s_cbranch_scc0 K1_SLOT1_GLU")
    pack_store(T, 64, 27, "s65", "s50", 2048)
    pack_store(32, 80, 27, "s65", "s51", 2048)
    e("s_branch K1_SLOT1_DONE")
    e.label("K1_SLOT1_GLU")
    for i in range(16):
        e(f"v_pk_mul_f32 v[{T+2*i}:{T+2*i+1}], v[{T+2*i}:{T+2*i+1}], v[{32+2*i}:{32+2*i+1}]")
    pack_store(T, 64, 26, "s64", "s50", A2_LD)
    e.label("K1_SLOT1_DONE")

    e("s_waitcnt lgkmcnt(0)")
    e("s_barrier")
    e("v_lshlrev_b32 v3, 4, v0")
    R = 160
    for w in range(4):
        e(f"ds_read_b128 v[{R+4*w}:{R+4*w+3}], v3 offset:{w*8192}")
        e(f"ds_read_b128 v[{R+16+4*w}:{R+16+4*w+3}], v3 offset:{w*8192+4096}")
    e("s_waitcnt lgkmcnt(0)")
    for half in range(2):
        b = R + 16 * half
        for i in range(4):
            e(f"v_add_f32 v{b+i}, v{b+i}, v{b+4+i}")
            e(f"v_add_f32 v{b+8+i}, v{b+8+i}, v{b+12+i}")
        for i in range(4):
            e(f"v_add_f32 v{b+i}, v{b+i}, v{b+8+i}")
    e("s_lshl_b32 s3, s34, 3")
    e("s_add_u32 s3, s3, s33")
    e("s_lshl_b32 s3, s3, 13")
    e(f"s_add_u32 s3, s3, {KVP_OFF}")
    e(f"buffer_store_dwordx4 v[{R}:{R+3}], v3, s[28:31], s3 offen")
    e("s_add_u32 s3, s3, 4096")
    e(f"buffer_store_dwordx4 v[{R+16}:{R+19}], v3, s[28:31], s3 offen")
    if "stamp" in EXP:
        stamp_end(e, 28, 35, 2)
    e.label("K1_END")
    e("s_endpgm")
    return kn, e.text(), kernel_desc(kn, 464, 256), (256, 256, 147456)


def gen_k2():
    e = E()
    kn = "k2_attn_kernel"
    e.raw(f".globl {kn}\n.p2align 8\n.type {kn},@function")
    e.label(kn)
    e("s_cmp_ge_u32 s2, 512")
    e("s_cbranch_scc1 K2_END")
    e("s_cmp_ge_u32 s2, 256")
    e("s_cbranch_scc0 K2_MAIN")
    e("s_load_dwordx2 s[64:65], s[0:1], 16")
    e("s_load_dwordx2 s[66:67], s[0:1], 48")
    e("s_sub_u32 s3, s2, 256")
    e("v_lshlrev_b32 v1, 4, v0")
    e("s_waitcnt lgkmcnt(0)")
    srd(e, 4, 64, 65, 1024 * 2048)
    srd(e, 8, 66, 67, 3584 * 2048)
    e("s_lshl_b32 s32, s3, 13")
    e("s_mul_i32 s33, s3, 28672")
    for i in range(2):
        e(f"buffer_load_dwordx4 v[{4+4*i}:{7+4*i}], v1, s[4:7], s32 offen")
        e("s_add_u32 s32, s32, 4096")
    for i in range(7):
        e(f"buffer_load_dwordx4 v[{12+4*i}:{15+4*i}], v1, s[8:11], s33 offen")
        e("s_add_u32 s33, s33, 4096")
    e("s_waitcnt vmcnt(0)")
    e("s_branch K2_END")
    e.label("K2_MAIN")
    e("s_load_dwordx2 s[64:65], s[0:1], 0")
    e("s_load_dwordx2 s[66:67], s[0:1], 56")
    e("s_load_dwordx2 s[72:73], s[0:1], 80")
    e("s_and_b32 s33, s2, 31")
    e("s_lshr_b32 s34, s2, 5")
    e("v_lshrrev_b32 v1, 6, v0")
    e("v_and_b32 v2, 63, v0")
    e("v_readfirstlane_b32 s35, v1")
    e("s_waitcnt lgkmcnt(0)")
    srd(e, 4, 64, 65, 2048 * 2048)
    srd(e, 8, 66, 67, 2048)
    srd(e, 28, 72, 73, 0x10000000)
    e("v_and_b32 v3, 31, v2")
    e("v_lshlrev_b32 v4, 6, v1")
    e("v_add_u32 v3, v3, v4")
    e("v_lshrrev_b32 v5, 5, v2")
    e("v_lshlrev_b32 v5, 4, v5")
    e("v_lshlrev_b32 v6, 11, v3")
    e("v_add_u32 v6, v6, v5")
    e("s_lshl_b32 s36, s34, 19")
    e("s_lshl_b32 s37, s33, 6")
    e("s_add_u32 s36, s36, s37")
    e(f"s_add_u32 s36, s36, {PQ_OFF}")
    e(f"s_add_u32 s38, s36, {32*2048}")
    Q = 32
    e(f"buffer_load_dwordx4 v[{Q}:{Q+3}], v6, s[28:31], s36 offen")
    e(f"buffer_load_dwordx4 v[{Q+4}:{Q+7}], v6, s[28:31], s36 offen offset:32")
    e(f"buffer_load_dwordx4 v[{Q+8}:{Q+11}], v6, s[28:31], s38 offen")
    e(f"buffer_load_dwordx4 v[{Q+12}:{Q+15}], v6, s[28:31], s38 offen offset:32")
    e("v_lshlrev_b32 v7, 4, v0")
    e("s_lshl_b32 s39, s33, 16")
    e(f"s_add_u32 s39, s39, {KVP_OFF}")
    PL = 64
    for rt in range(8):
        e(f"s_add_u32 s3, s39, {rt*8192}")
        e(f"buffer_load_dwordx4 v[{PL+8*rt}:{PL+8*rt+3}], v7, s[28:31], s3 offen")
        e(f"s_add_u32 s3, s39, {rt*8192+4096}")
        e(f"buffer_load_dwordx4 v[{PL+8*rt+4}:{PL+8*rt+7}], v7, s[28:31], s3 offen")
    e("v_lshlrev_b32 v8, 5, v2")
    e("s_lshl_b32 s40, s2, 3")
    e("s_lshl_b32 s41, s35, 1")
    e("s_add_u32 s40, s40, s41")
    e("s_lshl_b32 s41, s40, 11")
    e("s_add_u32 s42, s41, 2048")
    GX = 128
    e(f"buffer_load_dwordx4 v[{GX}:{GX+3}], v8, s[4:7], s41 offen")
    e(f"buffer_load_dwordx4 v[{GX+4}:{GX+7}], v8, s[4:7], s41 offen offset:16")
    e(f"buffer_load_dwordx4 v[{GX+8}:{GX+11}], v8, s[4:7], s42 offen")
    e(f"buffer_load_dwordx4 v[{GX+12}:{GX+15}], v8, s[4:7], s42 offen offset:16")
    e(f"buffer_load_dwordx4 v[{GX+16}:{GX+19}], v8, s[8:11], 0 offen")
    e(f"buffer_load_dwordx4 v[{GX+20}:{GX+23}], v8, s[8:11], 0 offen offset:16")
    e("s_waitcnt vmcnt(22)")
    PQ = 48
    T = 160
    for blk in range(2):
        for i in range(8):
            src = Q + 8 * blk + i
            e(f"v_lshlrev_b32 v{T+2*i}, 16, v{src}")
            e(f"v_and_b32 v{T+2*i+1}, 0xffff0000, v{src}")
        for r in range(16):
            e(f"v_mul_f32 v{T+16+r}, {LOG2E:#x}, v{T+r}")
        for r in range(16):
            e(f"v_min_f32 v{T+16+r}, 0, v{T+16+r}")
        for r in range(16):
            e(f"v_exp_f32 v{T+16+r}, v{T+16+r}")
        for r in range(16):
            e(f"v_max_f32 v{T+r}, 0, v{T+r}")
        for r in range(16):
            e(f"v_add_f32 v{T+r}, {EPS6:#x}, v{T+r}")
        for r in range(16):
            e(f"v_add_f32 v{T+r}, v{T+r}, v{T+16+r}")
        for i in range(8):
            e(f"v_cvt_pk_bf16_f32 v{PQ+8*blk+i}, v{T+2*i}, v{T+2*i+1}")
    e("s_waitcnt vmcnt(6)")
    for rt in range(1, 8):
        for i in range(8):
            e(f"v_add_f32 v{PL+i}, v{PL+i}, v{PL+8*rt+i}")
    for i in range(4):
        e(f"v_cvt_pk_bf16_f32 v{T+i}, v{PL+2*i}, v{PL+2*i+1}")
    e("v_and_b32 v9, 31, v2")
    e("v_lshlrev_b32 v9, 6, v9")
    e("v_lshlrev_b32 v10, 4, v1")
    e("v_add_u32 v9, v9, v10")
    e("v_lshrrev_b32 v10, 5, v2")
    e("v_lshlrev_b32 v10, 3, v10")
    e("v_add_u32 v9, v9, v10")
    e(f"ds_write_b64 v9, v[{T}:{T+1}]")
    e(f"ds_write_b64 v9, v[{T+2}:{T+3}] offset:2048")
    e("s_waitcnt vmcnt(0)")
    e("v_mov_b32 v12, 0")
    e("v_mov_b32 v13, 0")
    for i in range(8):
        e(f"v_dot2_f32_bf16 v12, v{GX+i}, v{GX+16+i}, v12")
        e(f"v_dot2_f32_bf16 v13, v{GX+8+i}, v{GX+16+i}, v13")
    e("s_waitcnt lgkmcnt(0)")
    e("s_barrier")
    e("v_and_b32 v9, 31, v2")
    e("v_lshlrev_b32 v9, 6, v9")
    e("v_add_u32 v9, v9, v5")
    KA = 64
    e(f"ds_read_b128 v[{KA}:{KA+3}], v9")
    e(f"ds_read_b128 v[{KA+4}:{KA+7}], v9 offset:32")
    e(f"ds_read_b128 v[{KA+8}:{KA+11}], v9 offset:2048")
    e(f"ds_read_b128 v[{KA+12}:{KA+15}], v9 offset:2080")
    for off in (0x041F, 0x081F, 0x101F, 0x201F, 0x401F):
        e(f"ds_swizzle_b32 v14, v12 offset:{off:#x}")
        e(f"ds_swizzle_b32 v15, v13 offset:{off:#x}")
        e("s_waitcnt lgkmcnt(0)")
        e("v_add_f32 v12, v12, v14")
        e("v_add_f32 v13, v13, v15")
    e("s_nop 0")
    e("v_readlane_b32 s44, v12, 32")
    e("v_readlane_b32 s45, v13, 32")
    e("s_nop 1")
    e("v_add_f32 v12, s44, v12")
    e("v_add_f32 v13, s45, v13")
    e(f"v_mul_f32 v12, {LOG2E | 0x80000000:#x}, v12")
    e(f"v_mul_f32 v13, {LOG2E | 0x80000000:#x}, v13")
    e("v_exp_f32 v12, v12")
    e("v_exp_f32 v13, v13")
    e("s_nop 0")
    e("v_add_f32 v12, 1.0, v12")
    e("v_add_f32 v13, 1.0, v13")
    e("v_rcp_f32 v12, v12")
    e("v_rcp_f32 v13, v13")
    e("s_lshl_b32 s3, s40, 2")
    e(f"s_add_u32 s3, s3, {G_OFF}")
    e("v_mov_b32 v14, 0")
    e("v_cmp_eq_u32 vcc, 0, v2")
    e("s_and_saveexec_b64 s[46:47], vcc")
    e("buffer_store_dwordx2 v[12:13], v14, s[28:31], s3 offen")
    e("s_mov_b64 exec, s[46:47]")
    NUM = 96
    for rb in range(2):
        for m in range(2):
            b = PQ + 8 * rb + 4 * m
            n = NUM + 16 * rb
            d = NUM + 32 + 16 * rb
            c1 = "0" if m == 0 else f"v[{n}:{n+15}]"
            c2 = "0" if m == 0 else f"v[{d}:{d+15}]"
            e(f"v_mfma_f32_32x32x16_bf16 v[{n}:{n+15}], v[{KA+4*m}:{KA+4*m+3}], v[{b}:{b+3}], {c1}")
            e(f"v_mfma_f32_32x32x16_bf16 v[{d}:{d+15}], v[{KA+8+4*m}:{KA+8+4*m+3}], v[{b}:{b+3}], {c2}")
    e(f"s_movk_i32 s3, {A2_LD}")
    e("v_mul_lo_u32 v16, v3, s3")
    e("v_add_u32 v16, v16, v5")
    e(f"s_mul_i32 s48, s34, {256*A2_LD}")
    e("s_add_u32 s48, s48, s37")
    e(f"s_add_u32 s48, s48, {A2_OFF}")
    e(f"s_add_u32 s49, s48, {32*A2_LD}")
    e("s_nop 15")
    for rb in range(2):
        n = NUM + 16 * rb
        d = NUM + 32 + 16 * rb
        e(f"v_add_f32 v17, {EPS6:#x}, v{d}")
        e("v_rcp_f32 v17, v17")
        e("s_nop 0")
        for r in range(16):
            e(f"v_mul_f32 v{n+r}, v{n+r}, v17")
        P = T + 8 * rb
        for i in range(8):
            e(f"v_cvt_pk_bf16_f32 v{P+i}, v{n+2*i}, v{n+2*i+1}")
        e("s_nop 1")
        e(f"v_permlane32_swap_b32 v{P+0}, v{P+2}")
        e(f"v_permlane32_swap_b32 v{P+1}, v{P+3}")
        e(f"v_permlane32_swap_b32 v{P+4}, v{P+6}")
        e(f"v_permlane32_swap_b32 v{P+5}, v{P+7}")
        e(f"buffer_store_dwordx4 v[{P}:{P+3}], v16, s[28:31], s{48+rb} offen")
        e(f"buffer_store_dwordx4 v[{P+4}:{P+7}], v16, s[28:31], s{48+rb} offen offset:32")
    e.label("K2_END")
    e("s_endpgm")
    return kn, e.text(), kernel_desc(kn, 192, 192), (512, 256, 4096)


X_OFF = 28 << 20
O_OFF = 40 << 20


def gen_k3():
    e = E()
    kn = "k3_gemm2_kernel"
    STP = [64, 66, 40, 42, 76, 92, 94, 8]
    stn = [0]

    def stamp():
        if "fine" in EXP:
            e(f"s_memtime s[{STP[stn[0]]}:{STP[stn[0]]+1}]")
            stn[0] += 1
    STG = 32768
    BOFF = 16384
    NS = 4
    SCR = 131072
    e.raw(f".globl {kn}\n.p2align 8\n.type {kn},@function")
    e.label(kn)
    e("s_cmp_ge_u32 s2, 256")
    e("s_cbranch_scc1 K3_END")
    if "stamp3" in EXP:
        e("s_memtime s[80:81]")
        e("s_memrealtime s[88:89]")
    e("s_load_dwordx2 s[64:65], s[0:1], 16")
    e("s_load_dwordx2 s[66:67], s[0:1], 48")
    e("s_load_dwordx4 s[72:75], s[0:1], 72")
    e("s_load_dwordx2 s[76:77], s[0:1], 0")
    e("s_load_dwordx4 s[96:99], s[0:1], 56")
    e("s_and_b32 s36, s2, 1")
    e("s_bfe_u32 s3, s2, 0x20001")
    e("s_lshr_b32 s32, s2, 3")
    e("s_and_b32 s33, s32, 3")
    e("s_lshl_b32 s3, s3, 2")
    e("s_add_u32 s33, s33, s3")
    e("s_lshr_b32 s34, s32, 2")
    e("v_lshrrev_b32 v1, 6, v0")
    e("v_and_b32 v2, 63, v0")
    e("v_readfirstlane_b32 s35, v1")
    e("s_waitcnt lgkmcnt(0)")
    srd(e, 28, 74, 75, 0x10000000)
    srd(e, 16, 72, 73, 256)
    e(f"s_mul_i32 s3, s33, {128*A2_LD}")
    e(f"s_add_u32 s3, s3, {A2_OFF}")
    e("s_add_u32 s68, s74, s3")
    e("s_addc_u32 s69, s75, 0")
    srd(e, 4, 68, 69, 128 * A2_LD)
    srd(e, 8, 64, 65, 1024 * 2048)
    srd(e, 12, 66, 67, 3584 * 2048)
    for i in range(4):
        e(f"s_mov_b32 s{20+i}, s{12+i}")
    e("s_cmp_eq_u32 s36, 0")
    for i in range(3):
        e(f"s_cselect_b32 s{24+i}, s{8+i}, s{12+i}")
    e(f"s_mul_i32 s60, s36, {1280*2048}")
    e(f"s_mul_i32 s61, s36, {2560*2048}")
    e("s_lshl_b32 s3, s34, 8")
    e("s_add_u32 s60, s60, s3")
    e("s_add_u32 s61, s61, s3")
    e(f"s_mul_i32 s59, s36, {1280*2}")
    e("s_add_u32 s59, s59, 2048")
    e(f"s_mul_i32 s57, s36, {3584*2}")
    e("s_mov_b32 s62, 0")
    e("s_mov_b32 s38, s98")
    e("s_mov_b32 s39, s99")
    e("s_mov_b32 s100, s59")
    e("s_mov_b32 s101, s60")
    if "stag3" not in EXP:
        e("s_mov_b32 s99, 0")
    else:
        e("s_and_b32 s3, s33, 3")
        e("s_mul_i32 s99, s3, 5")
        e("s_lshl_b32 s3, s34, 1")
        e("s_add_u32 s99, s99, s3")
        e("s_sub_u32 s3, s99, 20")
        e("s_cmp_ge_u32 s99, 20")
        e("s_cselect_b32 s99, s3, s99")
    e("s_lshl_b32 s3, s99, 7")
    e("s_add_u32 s59, s59, s3")
    e("s_lshl_b32 s3, s99, 17")
    e("s_add_u32 s60, s60, s3")
    srd(e, 68, 38, 39, 2048 * 2048)
    e("s_lshl_b32 s45, s35, 12")
    e("s_lshl_b32 s46, s35, 12")
    e(f"s_add_u32 s46, s46, {BOFF}")
    e("v_lshrrev_b32 v3, 3, v2")
    e("v_lshlrev_b32 v4, 5, v1")
    e("v_add_u32 v3, v3, v4")
    e(f"s_movk_i32 s3, {A2_LD}")
    e("v_mul_lo_u32 v3, v3, s3")
    e("v_lshrrev_b32 v5, 4, v2")
    e("v_and_b32 v6, 7, v2")
    e("v_xor_b32 v7, v6, v5")
    e("v_lshl_add_u32 v10, v7, 4, v3")
    e("v_xor_b32 v7, 4, v7")
    e("v_lshl_add_u32 v11, v7, 4, v3")
    e("v_lshrrev_b32 v3, 4, v2")
    e("v_lshlrev_b32 v4, 4, v1")
    e("v_add_u32 v4, v3, v4")
    e("v_lshlrev_b32 v4, 11, v4")
    e("v_bfe_u32 v5, v2, 2, 2")
    e("v_xor_b32 v5, v5, v3")
    e("v_lshl_add_u32 v4, v5, 6, v4")
    e("v_and_b32 v5, 3, v2")
    e("v_lshl_add_u32 v12, v5, 4, v4")

    def dma_groups(stage, ph2=False):
        g = []
        for i in range(4):
            g.append([f"s_add_u32 m0, s45, {stage*STG + i*1024}",
                      (f"s_add_u32 s3, s59, s{52+i}" if ph2 else f"s_add_u32 s3, s59, {i*8*A2_LD}"),
                      f"buffer_load_dwordx4 v{10+(i&1)}, s[4:7], s3 offen lds"])
            g.append([f"s_add_u32 m0, s46, {stage*STG + i*1024}",
                      f"s_add_u32 s3, s60, {i*4*2048}",
                      f"buffer_load_dwordx4 v12, s[20:23], s3 offen lds"])
        if ph2:
            g[-1] = g[-1] + ["s_add_u32 s59, s59, s27",
                             f"s_add_u32 s60, s60, {64*2048}"]
        else:
            g[-1] = g[-1] + ["s_add_u32 s59, s59, 128",
                             f"s_add_u32 s60, s60, {64*2048}",
                             "s_add_u32 s99, s99, 1",
                             "s_cmp_eq_u32 s99, 20",
                             "s_cselect_b32 s59, s100, s59",
                             "s_cselect_b32 s60, s101, s60",
                             "s_add_u32 s62, s62, 1",
                             "s_cmp_eq_u32 s62, 20",
                             "s_cselect_b32 s60, s61, s60",
                             "s_cselect_b32 s59, s57, s59",
                             "s_cselect_b32 s20, s24, s20",
                             "s_cselect_b32 s21, s25, s21",
                             "s_cselect_b32 s22, s26, s22"]
        return g

    for st in range(NS - 1):
        e.tag = ("D", st)
        for g in dma_groups(st):
            for s in g:
                e(s)

    e("s_and_b32 s50, s2, 31")
    e("s_lshr_b32 s51, s2, 5")
    srd(e, 40, 76, 77, 2048 * 2048)
    srd(e, 52, 96, 97, 2048)
    R3, R5, R9 = 192, 193, 194
    G0, G1, G2, G3 = 195, 196, 197, 198
    PQ = 200
    T = 216
    PS = 248
    Q, PL, GX = 0, 16, 80
    def att_loads():
        e(f"v_and_b32 v{R3}, 31, v2")
        e("v_lshlrev_b32 v4, 6, v1")
        e(f"v_add_u32 v{R3}, v{R3}, v4")
        e(f"v_lshrrev_b32 v{R5}, 5, v2")
        e(f"v_lshlrev_b32 v{R5}, 4, v{R5}")
        e(f"v_lshlrev_b32 v6, 11, v{R3}")
        e(f"v_add_u32 v6, v6, v{R5}")
        e("s_lshl_b32 s38, s51, 19")
        e("s_lshl_b32 s37, s50, 6")
        e("s_add_u32 s38, s38, s37")
        e(f"s_add_u32 s38, s38, {PQ_OFF}")
        e(f"s_add_u32 s39, s38, {32*2048}")
        e(f"buffer_load_dwordx4 a[{Q}:{Q+3}], v6, s[28:31], s38 offen")
        e(f"buffer_load_dwordx4 a[{Q+4}:{Q+7}], v6, s[28:31], s38 offen offset:32")
        e(f"buffer_load_dwordx4 a[{Q+8}:{Q+11}], v6, s[28:31], s39 offen")
        e(f"buffer_load_dwordx4 a[{Q+12}:{Q+15}], v6, s[28:31], s39 offen offset:32")
        e("v_lshlrev_b32 v7, 4, v0")
        e("s_lshl_b32 s39, s50, 16")
        e(f"s_add_u32 s39, s39, {KVP_OFF}")
        for rt in range(8):
            e(f"s_add_u32 s27, s39, {rt*8192}")
            e(f"buffer_load_dwordx4 a[{PL+8*rt}:{PL+8*rt+3}], v7, s[28:31], s27 offen")
            e(f"s_add_u32 s27, s39, {rt*8192+4096}")
            e(f"buffer_load_dwordx4 a[{PL+8*rt+4}:{PL+8*rt+7}], v7, s[28:31], s27 offen")
        e("v_lshlrev_b32 v8, 5, v2")
        e("s_lshl_b32 s48, s51, 8")
        e("s_lshl_b32 s27, s50, 3")
        e("s_add_u32 s48, s48, s27")
        e("s_lshl_b32 s27, s35, 1")
        e("s_add_u32 s48, s48, s27")
        e("s_lshl_b32 s47, s48, 11")
        e("s_add_u32 s49, s47, 2048")
        e(f"buffer_load_dwordx4 a[{GX}:{GX+3}], v8, s[40:43], s47 offen")
        e(f"buffer_load_dwordx4 a[{GX+4}:{GX+7}], v8, s[40:43], s47 offen offset:16")
        e(f"buffer_load_dwordx4 a[{GX+8}:{GX+11}], v8, s[40:43], s49 offen")
        e(f"buffer_load_dwordx4 a[{GX+12}:{GX+15}], v8, s[40:43], s49 offen offset:16")
        e(f"buffer_load_dwordx4 a[{GX+16}:{GX+19}], v8, s[52:55], 0 offen")
        e(f"buffer_load_dwordx4 a[{GX+20}:{GX+23}], v8, s[52:55], 0 offen offset:16")

    def att_a():
        for blk in range(2):
            for i in range(8):
                e(f"v_accvgpr_read_b32 v{T+2*i+1}, a{Q+8*blk+i}")
            for i in range(8):
                e(f"v_lshlrev_b32 v{T+2*i}, 16, v{T+2*i+1}")
                e(f"v_and_b32 v{T+2*i+1}, 0xffff0000, v{T+2*i+1}")
            for r in range(16):
                e(f"v_mul_f32 v{T+16+r}, {LOG2E:#x}, v{T+r}")
            for r in range(16):
                e(f"v_min_f32 v{T+16+r}, 0, v{T+16+r}")
            for r in range(16):
                e(f"v_exp_f32 v{T+16+r}, v{T+16+r}")
            for r in range(16):
                e(f"v_max_f32 v{T+r}, 0, v{T+r}")
            for r in range(16):
                e(f"v_add_f32 v{T+r}, {EPS6:#x}, v{T+r}")
            for r in range(16):
                e(f"v_add_f32 v{T+r}, v{T+r}, v{T+16+r}")
            for i in range(8):
                e(f"v_cvt_pk_bf16_f32 v{PQ+8*blk+i}, v{T+2*i}, v{T+2*i+1}")
        for i in range(8):
            e(f"v_accvgpr_read_b32 v{PS+i}, a{PL+i}")
        for half in range(2):
            n = 32 if half == 0 else 24
            for i in range(n):
                e(f"v_accvgpr_read_b32 v{T+i}, a{PL+8+32*half+i}")
            for i in range(n):
                e(f"v_add_f32 v{PS+(i&7)}, v{PS+(i&7)}, v{T+i}")
        for i in range(4):
            e(f"v_cvt_pk_bf16_f32 v{T+24+i}, v{PS+2*i}, v{PS+2*i+1}")
        e(f"v_and_b32 v{R9}, 15, v2")
        e(f"v_lshlrev_b32 v{R9}, 6, v{R9}")
        e(f"v_and_b32 v{G2}, 1, v1")
        e(f"v_lshl_add_u32 v{R9}, v{G2}, 10, v{R9}")
        e(f"v_lshrrev_b32 v{G2}, 1, v1")
        e(f"v_lshl_add_u32 v{R9}, v{G2}, 5, v{R9}")
        e(f"v_lshrrev_b32 v{G2}, 4, v2")
        e(f"v_lshl_add_u32 v{R9}, v{G2}, 3, v{R9}")
        e(f"v_add_u32 v{R9}, {SCR}, v{R9}")
        e(f"ds_write_b64 v{R9}, v[{T+24}:{T+25}]")
        e(f"ds_write_b64 v{R9}, v[{T+26}:{T+27}] offset:2048")
        for i in range(24):
            e(f"v_accvgpr_read_b32 v{T+i}, a{GX+i}")
        e(f"v_mov_b32 v{G0}, 0")
        e(f"v_mov_b32 v{G1}, 0")
        for i in range(8):
            e(f"v_dot2_f32_bf16 v{G0}, v{T+i}, v{T+16+i}, v{G0}")
            e(f"v_dot2_f32_bf16 v{G1}, v{T+8+i}, v{T+16+i}, v{G1}")

    def att_b():
        KA = T
        e(f"v_and_b32 v{R9}, 31, v2")
        e(f"v_lshlrev_b32 v{R9}, 6, v{R9}")
        e(f"v_add_u32 v{R9}, v{R9}, v{R5}")
        e(f"v_add_u32 v{R9}, {SCR}, v{R9}")
        e(f"ds_read_b128 v[{KA}:{KA+3}], v{R9}")
        e(f"ds_read_b128 v[{KA+4}:{KA+7}], v{R9} offset:32")
        e(f"ds_read_b128 v[{KA+8}:{KA+11}], v{R9} offset:2048")
        e(f"ds_read_b128 v[{KA+12}:{KA+15}], v{R9} offset:2080")
        for off in (0x041F, 0x081F, 0x101F, 0x201F, 0x401F):
            e(f"ds_swizzle_b32 v{G2}, v{G0} offset:{off:#x}")
            e(f"ds_swizzle_b32 v{G3}, v{G1} offset:{off:#x}")
            e("s_waitcnt lgkmcnt(0)")
            e(f"v_add_f32 v{G0}, v{G0}, v{G2}")
            e(f"v_add_f32 v{G1}, v{G1}, v{G3}")
        for rb in range(2):
            for m in range(2):
                b = PQ + 8 * rb + 4 * m
                n = 16 * rb
                d = 32 + 16 * rb
                c1 = "0" if m == 0 else f"a[{n}:{n+15}]"
                c2 = "0" if m == 0 else f"a[{d}:{d+15}]"
                e(f"v_mfma_f32_32x32x16_bf16 a[{n}:{n+15}], v[{KA+4*m}:{KA+4*m+3}], v[{b}:{b+3}], {c1}")
                e(f"v_mfma_f32_32x32x16_bf16 a[{d}:{d+15}], v[{KA+8+4*m}:{KA+8+4*m+3}], v[{b}:{b+3}], {c2}")
        e(f"v_readlane_b32 s56, v{G0}, 32")
        e(f"v_readlane_b32 s58, v{G1}, 32")
        e("s_nop 1")
        e(f"v_add_f32 v{G0}, s56, v{G0}")
        e(f"v_add_f32 v{G1}, s58, v{G1}")
        e(f"v_mul_f32 v{G0}, {LOG2E | 0x80000000:#x}, v{G0}")
        e(f"v_mul_f32 v{G1}, {LOG2E | 0x80000000:#x}, v{G1}")
        e(f"v_exp_f32 v{G0}, v{G0}")
        e(f"v_exp_f32 v{G1}, v{G1}")
        e("s_nop 0")
        e(f"v_add_f32 v{G0}, 1.0, v{G0}")
        e(f"v_add_f32 v{G1}, 1.0, v{G1}")
        e(f"v_rcp_f32 v{PS}, v{G0}")
        e(f"v_rcp_f32 v{PS+1}, v{G1}")
        e("s_lshl_b32 s27, s48, 2")
        e(f"s_add_u32 s27, s27, {G_OFF}")
        e(f"v_mov_b32 v{G0}, 0")
        e.raw("{")
        e("v_cmp_eq_u32 vcc, 0, v2")
        e("s_and_saveexec_b64 s[78:79], vcc")
        e(f"buffer_store_dwordx2 v[{PS}:{PS+1}], v{G0}, s[28:31], s27 offen sc1")
        e("s_mov_b64 exec, s[78:79]")
        e.raw("}")
        e(f"v_and_b32 v{R9}, 31, v2")
        e(f"v_lshlrev_b32 v{R9}, 5, v{R9}")
        e(f"v_add_u32 v{R9}, v{R9}, v{R5}")
        e("s_lshl_b32 s48, s51, 3")
        e("s_lshl_b32 s27, s35, 1")
        e("s_add_u32 s48, s48, s27")
        e("s_lshl_b32 s48, s48, 5")
        e("s_add_u32 s48, s48, s50")
        e("s_lshl_b32 s48, s48, 11")
        e(f"s_add_u32 s48, s48, {O_OFF}")
        e("s_add_u32 s49, s48, 65536")
        e("s_nop 7")
        for rb in range(2):
            n = 16 * rb
            d = 32 + 16 * rb
            e(f"v_accvgpr_read_b32 v{G1}, a{d}")
            for r in range(16):
                e(f"v_accvgpr_read_b32 v{T+r}, a{n+r}")
            e(f"v_add_f32 v{G1}, {EPS6:#x}, v{G1}")
            e(f"v_rcp_f32 v{G1}, v{G1}")
            e("s_nop 0")
            for r in range(16):
                e(f"v_mul_f32 v{T+r}, v{T+r}, v{G1}")
            P = T + 16 + 8 * rb
            for i in range(8):
                e(f"v_cvt_pk_bf16_f32 v{P+i}, v{T+2*i}, v{T+2*i+1}")
            e("s_nop 1")
            e(f"v_permlane32_swap_b32 v{P+0}, v{P+2}")
            e(f"v_permlane32_swap_b32 v{P+1}, v{P+3}")
            e(f"v_permlane32_swap_b32 v{P+4}, v{P+6}")
            e(f"v_permlane32_swap_b32 v{P+5}, v{P+7}")
            e(f"buffer_store_dwordx4 v[{P}:{P+3}], v{R9}, s[28:31], s{48+rb} offen sc1")
            e(f"buffer_store_dwordx4 v[{P+4}:{P+7}], v{R9}, s[28:31], s{48+rb} offen offset:1024 sc1")

    e("v_and_b32 v3, 31, v2")
    e("v_lshrrev_b32 v4, 1, v1")
    e("v_lshlrev_b32 v4, 6, v4")
    e("v_add_u32 v4, v4, v3")
    e("v_lshlrev_b32 v4, 7, v4")
    e("v_bfe_u32 v5, v3, 1, 3")
    e("v_lshrrev_b32 v6, 5, v2")
    for s in range(4):
        e(f"v_add_u32 v7, {2*s}, v6")
        e("v_xor_b32 v7, v7, v5")
        e(f"v_lshl_add_u32 v{14+s}, v7, 4, v4")
        e(f"v_add_u32 v{18+s}, {2*STG}, v{14+s}")
    e("v_lshrrev_b32 v3, 5, v2")
    e("v_lshlrev_b32 v3, 11, v3")
    e("v_bfe_u32 v4, v2, 2, 2")
    e("v_lshl_add_u32 v3, v4, 8, v3")
    e("v_bfe_u32 v5, v2, 4, 1")
    e("v_lshl_add_u32 v3, v5, 5, v3")
    e("v_and_b32 v5, 3, v2")
    e("v_lshl_add_u32 v3, v5, 3, v3")
    e("v_and_b32 v5, 1, v1")
    e("v_lshlrev_b32 v5, 1, v5")
    for j in range(2):
        e(f"v_add_u32 v6, {j}, v5")
        e("v_xor_b32 v6, v6, v4")
        e("v_lshl_add_u32 v6, v6, 6, v3")
        e(f"v_add_u32 v{22+j}, {BOFF}, v6")
        e(f"v_add_u32 v{28+j}, {BOFF+2*STG}, v6")

    AF = 32
    BF = 48
    ACC = 64
    for r in range(128):
        e(f"v_mov_b32 v{ACC+r}, 0")

    def read_groups(stage, s, buf):
        g = []
        va = 14 + 4 * (stage >> 1) + s
        so = (stage & 1) * STG
        for rb in range(2):
            d = AF + buf * 8 + rb * 4
            g.append([f"ds_read_b128 v[{d}:{d+3}], v{va} offset:{so + rb*4096}"])
        for b in range(2):
            vb = (22 if stage < 2 else 28) + b
            d = BF + buf * 8 + b * 4
            g.append([f"ds_read_b64_tr_b16 v[{d}:{d+1}], v{vb} offset:{so + 4*s*1024}"])
            g.append([f"ds_read_b64_tr_b16 v[{d+2}:{d+3}], v{vb} offset:{so + 4*s*1024+1024}"])
        return g

    def mfmas(buf, aset):
        m = []
        for b in range(2):
            for rb in range(2):
                a = AF + buf * 8 + rb * 4
                bb = BF + buf * 8 + b * 4
                c = ACC + aset * 64 + (b * 2 + rb) * 16
                m.append(f"v_mfma_f32_32x32x16_bf16 v[{c}:{c+15}], v[{bb}:{bb+3}], v[{a}:{a+3}], v[{c}:{c+15}]")
        return m

    def kstep(q, aset, dma, wait_n, last, after_barrier=None, ph2=False, t=None, extra=None, need=()):
        dg = dma_groups((q + 3) % NS, ph2) if (dma and "n3dma" not in EXP) else []
        extra = list(extra or [])
        per = (len(extra) + 15) // 16

        def ex():
            for _ in range(per):
                if extra:
                    tg, e.tag = e.tag, "att"
                    for x in extra.pop(0):
                        e(x)
                    e.tag = tg
        for s in range(4):
            cur = s & 1
            if s < 3:
                rd = read_groups(q, s + 1, cur ^ 1)
            elif not last:
                rd = read_groups((q + 1) % NS, 0, cur ^ 1)
            else:
                rd = []
            e("s_waitcnt lgkmcnt(0)")
            mf = mfmas(cur, aset)
            dd = dg[2 * s:2 * s + 2]
            e.tag = ("D", None if t is None else t + 3)
            e(mf[0])
            for g in rd[0:3]:
                for x in g:
                    e(x)
            ex()
            e(mf[1])
            for g in rd[3:6]:
                for x in g:
                    e(x)
            ex()
            e(mf[2])
            for g in dd[0:1]:
                for x in g:
                    e(x)
            ex()
            e(mf[3])
            for g in dd[1:2]:
                for x in g:
                    e(x)
            ex()
            if s == 2 and not last:
                if wait_n is None:
                    wn = e.vm_needed([("D", t + 1)] + list(need))
                else:
                    wn = wait_n
                e(f"s_waitcnt vmcnt({wn}) lgkmcnt(0)")
                e("s_barrier")
                if after_barrier:
                    after_barrier()

    def signal():
        e("s_cmp_eq_u32 s35, 0")
        e("s_cbranch_scc0 K3_NOSIG")
        e("v_mov_b32 v30, 1")
        e("v_mov_b32 v31, 0")
        e("s_lshl_b32 s3, s51, 2")
        e("v_cmp_eq_u32 vcc, 0, v2")
        e("s_and_saveexec_b64 s[78:79], vcc")
        e("buffer_atomic_add v30, v31, s[16:19], s3 offen sc1")
        e("s_mov_b64 exec, s[78:79]")
        e.label("K3_NOSIG")

    e("s_waitcnt vmcnt(16)")
    e("s_barrier")
    for g in read_groups(0, 0, 0):
        for s in g:
            e(s)
    if "stamp3" in EXP:
        e("s_memtime s[82:83]")
    e("s_lshr_b32 s44, s33, 1")
    e("s_lshl_b32 s44, s44, 2")
    L = e.capture(att_loads)
    A = e.capture(att_a)
    B = e.capture(att_b)

    def split(lst, n):
        k = (len(lst) + n - 1) // n
        return [lst[i * k:(i + 1) * k] for i in range(n)]
    A0, A1 = split(A, 2)
    B0, B1 = split(B, 2)
    kstep(0, 1, True, None, False, t=0, extra=L)
    kstep(1, 1, True, None, False, t=1)
    kstep(2, 1, True, None, False, t=2, need=["att"])
    stamp()
    kstep(3, 1, True, None, False, t=3, extra=A0)
    kstep(0, 1, True, None, False, t=4, extra=A1)
    stamp()
    kstep(1, 1, True, None, False, t=5)
    stamp()
    kstep(2, 1, True, None, False, t=6, extra=B0)
    kstep(3, 1, True, None, False, t=7, extra=B1)
    stamp()
    kstep(0, 1, True, None, False, t=8)
    kstep(1, 1, True, None, False, t=9, need=["att"], after_barrier=signal)
    kstep(2, 1, True, None, False, t=10)
    kstep(3, 1, True, None, False, t=11)
    stamp()
    stamp()
    for q in range(3):
        kstep(q, 1, True, 14, False)
    e("v_mov_b32 v31, 0")
    e("buffer_load_dword v30, v31, s[16:19], s44 offen sc1")
    kstep(3, 1, True, 14, False)
    kstep(0, 1, True, 14, False)
    e("v_readfirstlane_b32 s3, v30")
    e("s_cmp_ge_u32 s3, 33" if "forcespin" in EXP else "s_cmp_ge_u32 s3, 32")
    e("s_cbranch_scc1 K3_READY")
    e("s_mov_b32 s47, 0")
    e.label("K3_SPIN")
    e("s_sleep 8")
    e("buffer_load_dword v30, v31, s[16:19], s44 offen sc1")
    e("s_waitcnt vmcnt(0)")
    e("v_readfirstlane_b32 s3, v30")
    e("s_add_u32 s47, s47, 1")
    e("s_cmp_ge_u32 s47, 0x20000")
    e("s_cbranch_scc1 K3_READY")
    e("s_cmp_ge_u32 s3, 32")
    e("s_cbranch_scc0 K3_SPIN")
    e.label("K3_READY")
    for i in range(4):
        e(f"s_mov_b32 s{52+i}, {i*8*A2_LD}")
    e("s_movk_i32 s27, 128")
    e("s_cmp_eq_u32 s36, 0")
    e("s_cbranch_scc0 K3_NOSW")
    for i in range(4):
        e(f"s_movk_i32 s{52+i}, {i*256}")
    e("s_movk_i32 s27, 4096")
    e("s_lshl_b32 s3, s33, 18")
    e(f"s_add_u32 s3, s3, {O_OFF}")
    e("s_add_u32 s4, s74, s3")
    e("s_addc_u32 s5, s75, 0")
    e("s_and_b32 s5, s5, 0xffff")
    e("s_mov_b32 s6, 0x40000")
    e("v_lshrrev_b32 v3, 3, v2")
    e("v_lshlrev_b32 v3, 5, v3")
    e("v_lshlrev_b32 v4, 16, v1")
    e("v_add_u32 v3, v3, v4")
    e("v_lshrrev_b32 v5, 4, v2")
    e("v_and_b32 v6, 7, v2")
    e("v_xor_b32 v7, v6, v5")
    for par in range(2):
        if par:
            e("v_xor_b32 v7, 4, v7")
        e("v_lshrrev_b32 v8, 1, v7")
        e("v_lshl_add_u32 v8, v8, 10, v3")
        e("v_and_b32 v9, 1, v7")
        e(f"v_lshl_add_u32 v{10+par}, v9, 4, v8")
    e.label("K3_NOSW")
    e("v_and_b32 v3, 31, v2")
    e("v_lshrrev_b32 v4, 1, v1")
    e("v_lshlrev_b32 v4, 6, v4")
    e("v_add_u32 v3, v3, v4")
    e("v_lshlrev_b32 v4, 2, v3")
    e("s_lshl_b32 s3, s33, 9")
    e(f"s_add_u32 s3, s3, {G_OFF}")
    e("buffer_load_dword v24, v4, s[28:31], s3 offen sc1")
    e("buffer_load_dword v25, v4, s[28:31], s3 offen offset:128 sc1")
    kstep(1, 1, True, 14, False, ph2=True)
    kstep(2, 1, True, 14, False, ph2=True)
    kstep(3, 1, True, 14, False, ph2=True)
    stamp()
    e("s_mov_b32 s63, 0")
    e.label("K3_LOOP2")
    for q in range(4):
        kstep(q, 0, True, 14, False, ph2=True)
    e("s_add_u32 s63, s63, 1")
    e("s_cmp_lt_u32 s63, 3")
    e("s_cbranch_scc1 K3_LOOP2")
    kstep(0, 0, True, 14, False, ph2=True)
    kstep(1, 0, False, 8, False)
    kstep(2, 0, False, 0, False)
    kstep(3, 0, False, 0, True)
    if "stamp3" in EXP:
        e("s_memtime s[84:85]")
    e("v_and_b32 v3, 31, v2")
    e("v_lshrrev_b32 v4, 1, v1")
    e("v_lshlrev_b32 v4, 6, v4")
    e("v_add_u32 v3, v3, v4")
    e("v_sub_f32 v26, 1.0, v24")
    e("v_sub_f32 v27, 1.0, v25")
    e("s_cmp_eq_u32 s36, 0")
    e("s_cselect_b64 vcc, -1, 0")
    e("s_nop 1")
    e("v_cndmask_b32 v24, v26, v24, vcc")
    e("v_cndmask_b32 v25, v27, v25, vcc")
    e("s_nop 3")
    for t in range(4):
        rb = t & 1
        c1 = ACC + t * 16
        c2 = ACC + 64 + t * 16
        for r in range(16):
            e(f"v_mul_f32 v{c1+r}, v{c1+r}, v{24+rb}")
        for r in range(16):
            e(f"v_fmac_f32 v{c1+r}, v{c2+r}, v{26+rb}")
    e("s_lshl_b32 s3, s33, 3")
    e("s_add_u32 s3, s3, s34")
    e("s_lshl_b32 s3, s3, 1")
    e("s_add_u32 s38, s3, s36")
    e("s_xor_b32 s39, s38, 1")
    for r_ in (38, 39):
        e(f"s_lshl_b32 s{r_}, s{r_}, 2")
        e(f"s_add_u32 s{r_}, s{r_}, s35")
        e(f"s_lshl_b32 s{r_}, s{r_}, 13")
        e(f"s_add_u32 s{r_}, s{r_}, {X_OFF}")
    e("v_lshlrev_b32 v5, 4, v2")
    e("v_lshlrev_b32 v6, 11, v3")
    e("v_lshrrev_b32 v7, 5, v2")
    e("v_lshl_add_u32 v6, v7, 4, v6")
    e("s_lshl_b32 s47, s33, 18")
    e("s_lshl_b32 s3, s36, 16")
    e("s_add_u32 s47, s47, s3")
    e("s_lshl_b32 s3, s34, 8")
    e("s_add_u32 s47, s47, s3")
    e("s_and_b32 s3, s35, 1")
    e("s_lshl_b32 s3, s3, 7")
    e("s_add_u32 s47, s47, s3")
    e("s_cmp_eq_u32 s36, 0")
    e("s_cbranch_scc0 K3_S1")
    for sp in range(2):
        if sp == 1:
            e.label("K3_S1")
        keep = sp
        send = sp ^ 1
        for j in range(2):
            c = ACC + (j * 2 + send) * 16
            for rg in range(4):
                e(f"buffer_store_dwordx4 v[{c+4*rg}:{c+4*rg+3}], v5, s[28:31], s39 offen offset:{rg*1024} sc1")
            if j == 0:
                e("s_add_u32 s39, s39, 4096")
        e("s_waitcnt vmcnt(0)")
        e("s_barrier")
        e("s_cmp_eq_u32 s35, 0")
        e(f"s_cbranch_scc0 K3_NOFLAG{sp}")
        e("v_mov_b32 v30, 1")
        e("v_mov_b32 v31, 0")
        e("s_lshl_b32 s3, s2, 7")
        e(f"s_add_u32 s3, s3, {FLG_OFF}")
        e("v_cmp_eq_u32 vcc, 0, v2")
        e("s_and_saveexec_b64 s[78:79], vcc")
        e("buffer_store_dword v30, v31, s[28:31], s3 offen sc1")
        e("s_mov_b64 exec, s[78:79]")
        e.label(f"K3_NOFLAG{sp}")
        e("s_xor_b32 s49, s2, 1")
        e("s_lshl_b32 s49, s49, 7")
        e(f"s_add_u32 s49, s49, {FLG_OFF}")
        e("v_mov_b32 v31, 0")
        e("s_mov_b32 s56, 0")
        e.label(f"K3_XSPIN{sp}")
        e("buffer_load_dword v30, v31, s[28:31], s49 offen sc1")
        e("s_waitcnt vmcnt(0)")
        e("v_readfirstlane_b32 s3, v30")
        e("s_add_u32 s56, s56, 1")
        e("s_cmp_ge_u32 s56, 0x20000")
        e(f"s_cbranch_scc1 K3_XGO{sp}")
        e("s_cmp_eq_u32 s3, 1")
        e(f"s_cbranch_scc1 K3_XGO{sp}")
        e("s_sleep 2")
        e(f"s_branch K3_XSPIN{sp}")
        e.label(f"K3_XGO{sp}")
        RX = 128
        for j in range(2):
            for rg in range(4):
                e(f"buffer_load_dwordx4 v[{RX+16*j+4*rg}:{RX+16*j+4*rg+3}], v5, s[28:31], s38 offen offset:{rg*1024} sc1")
            if j == 0:
                e("s_add_u32 s38, s38, 4096")
        for j in range(2):
            e(f"s_waitcnt vmcnt({4*(1-j)})")
            c = ACC + (j * 2 + keep) * 16
            for r in range(16):
                e(f"v_add_f32 v{c+r}, v{c+r}, v{RX+16*j+r}")
            P = 32 + 8 * j
            for i in range(8):
                e(f"v_cvt_pk_bf16_f32 v{P+i}, v{c+2*i}, v{c+2*i+1}")
            e("s_nop 1")
            e(f"v_permlane32_swap_b32 v{P+0}, v{P+2}")
            e(f"v_permlane32_swap_b32 v{P+1}, v{P+3}")
            e(f"v_permlane32_swap_b32 v{P+4}, v{P+6}")
            e(f"v_permlane32_swap_b32 v{P+5}, v{P+7}")
            e(f"buffer_store_dwordx4 v[{P}:{P+3}], v6, s[68:71], s47 offen offset:{64*j}")
            e(f"buffer_store_dwordx4 v[{P+4}:{P+7}], v6, s[68:71], s47 offen offset:{64*j+32}")
        if sp == 0:
            e("s_branch K3_FIN")
    e.label("K3_FIN")
    if "fine" in EXP:
        e("s_waitcnt lgkmcnt(0)")
        for i in range(7):
            e(f"v_mov_b32 v{48+2*i}, s{STP[i]}")
            e(f"v_mov_b32 v{49+2*i}, s{STP[i]+1}")
        e("s_lshl_b32 s3, s2, 8")
        e("s_lshl_b32 s64, s35, 6")
        e("s_add_u32 s3, s3, s64")
        e(f"s_add_u32 s3, s3, {201<<20}")
        e("v_mov_b32 v3, 0")
        e("v_cmp_eq_u32 vcc, 0, v2")
        e("s_and_saveexec_b64 s[64:65], vcc")
        for i in range(4):
            e(f"buffer_store_dwordx4 v[{48+4*i}:{51+4*i}], v3, s[28:31], s3 offen offset:{16*i}")
        e("s_mov_b64 exec, s[64:65]")
    if "stamp3" in EXP:
        stamp_end(e, 28, 35, 2)
    e.label("K3_END")
    e("s_endpgm")
    return kn, e.text(), kernel_desc(kn, 360, 256), (256, 256, 135168)


def gen_k4():
    e = E()
    kn = "k4_comb_kernel"
    e.raw(f".globl {kn}\n.p2align 8\n.type {kn},@function")
    e.label(kn)
    e("s_cmp_ge_u32 s2, 512")
    e("s_cbranch_scc1 K4_END")
    e("s_load_dwordx2 s[64:65], s[0:1], 64")
    e("s_load_dwordx2 s[72:73], s[0:1], 80")
    e("v_lshrrev_b32 v1, 6, v0")
    e("v_and_b32 v2, 63, v0")
    e("v_readfirstlane_b32 s35, v1")
    e("s_waitcnt lgkmcnt(0)")
    srd(e, 28, 72, 73, 0x10000000)
    srd(e, 4, 64, 65, 2048 * 2048)
    e("s_lshl_b32 s3, s2, 2")
    e("s_add_u32 s3, s3, s35")
    e("s_lshl_b32 s3, s3, 12")
    e(f"s_add_u32 s3, s3, {P_OFF}")
    e(f"s_add_u32 s36, s3, {1<<23}")
    e("v_lshlrev_b32 v3, 4, v2")
    for rg in range(4):
        e(f"buffer_load_dwordx4 v[{16+4*rg}:{19+4*rg}], v3, s[28:31], s3 offen offset:{rg*1024}")
        e(f"buffer_load_dwordx4 v[{32+4*rg}:{35+4*rg}], v3, s[28:31], s36 offen offset:{rg*1024}")
    e("s_lshr_b32 s37, s2, 5")
    e("s_bfe_u32 s38, s2, 0x30002")
    e("s_bfe_u32 s39, s2, 0x10001")
    e("s_and_b32 s40, s2, 1")
    e("s_lshl_b32 s37, s37, 7")
    e("s_lshl_b32 s39, s39, 6")
    e("s_add_u32 s37, s37, s39")
    e("s_and_b32 s41, s35, 1")
    e("s_lshl_b32 s41, s41, 5")
    e("s_add_u32 s37, s37, s41")
    e("s_lshl_b32 s37, s37, 11")
    e("s_lshl_b32 s38, s38, 8")
    e("s_lshl_b32 s40, s40, 7")
    e("s_add_u32 s38, s38, s40")
    e("s_lshr_b32 s41, s35, 1")
    e("s_lshl_b32 s41, s41, 6")
    e("s_add_u32 s38, s38, s41")
    e("s_add_u32 s37, s37, s38")
    e("v_and_b32 v4, 31, v2")
    e("v_lshlrev_b32 v4, 11, v4")
    e("v_lshrrev_b32 v5, 5, v2")
    e("v_lshl_add_u32 v4, v5, 4, v4")
    e("s_waitcnt vmcnt(0)")
    for r in range(16):
        e(f"v_add_f32 v{16+r}, v{16+r}, v{32+r}")
    P = 48
    for i in range(8):
        e(f"v_cvt_pk_bf16_f32 v{P+i}, v{16+2*i}, v{16+2*i+1}")
    e("s_nop 1")
    e(f"v_permlane32_swap_b32 v{P+0}, v{P+2}")
    e(f"v_permlane32_swap_b32 v{P+1}, v{P+3}")
    e(f"v_permlane32_swap_b32 v{P+4}, v{P+6}")
    e(f"v_permlane32_swap_b32 v{P+5}, v{P+7}")
    e(f"buffer_store_dwordx4 v[{P}:{P+3}], v4, s[4:7], s37 offen")
    e(f"buffer_store_dwordx4 v[{P+4}:{P+7}], v4, s[4:7], s37 offen offset:32")
    e.label("K4_END")
    e("s_endpgm")
    return kn, e.text(), kernel_desc(kn, 64, 64), (512, 256, 0)


def main():
    kernels = [gen_k1(), gen_k3()]
    which = sys.argv[2] if len(sys.argv) > 2 else None
    out = []
    for kn, _, _, (g, b, lds) in kernels:
        out.append(f"; @launch kernel={kn} grid=({g},1,1) block=({b},1,1) lds={lds}")
    out.append('.amdgcn_target "amdgcn-amd-amdhsa--gfx950"')
    out.append(".text")
    for kn, body, desc, _ in kernels:
        out.append(body)
        out.append(desc)
    open(sys.argv[1], "w").write("\n".join(out))


if __name__ == "__main__":
    main()
```
